```python
import torch

def _softmax(x, axis=-1):
    return torch.softmax(x, dim=axis)
def _gelu(x):
    return torch.nn.functional.gelu(x, approximate="tanh")
def _silu(x):
    return torch.nn.functional.silu(x)
def _sigmoid(x):
    return torch.sigmoid(x)
def _layernorm(x, axis=-1, eps=1e-5):
    m = x.mean(dim=axis, keepdim=True)
    v = x.var(dim=axis, keepdim=True, unbiased=False)
    return (x - m) / torch.sqrt(v + eps)
def _scatter_add(tgt, idx, src, axis=0):
    return tgt.clone().index_add_(axis, idx, src)
def _segment_sum(src, seg, n):
    out = torch.zeros((n,) + src.shape[1:], dtype=src.dtype)
    return out.index_add_(0, seg, src)
def _pad(x, pw):
    flat = tuple(v for pair in reversed(pw) for v in pair)
    return torch.nn.functional.pad(x, flat)

kernel_name = 'sequential_preLN__spectral_fnet__dense_activation_squared_relu__prompt'

def setup_inputs():

    _w = (lambda a: (lambda t: t.to(torch.bfloat16) if t.is_floating_point() else t)(torch.as_tensor(a)))
    def _A_setup():
        B, S, D = 1, 2048, 1024
        ns = torch.arange(S)[:, None] * torch.arange(S)[None, :]
        nd = torch.arange(D)[:, None] * torch.arange(D)[None, :]
        Ws_re = torch.cos(-2.0 * torch.pi * ns / S).to(float)
        Ws_im = torch.sin(-2.0 * torch.pi * ns / S).to(float)
        Wd_re = torch.cos(-2.0 * torch.pi * nd / D).to(float)
        Wd_im = torch.sin(-2.0 * torch.pi * nd / D).to(float)
        return {
            "x": _w((lambda *s: torch.randn(*s, dtype=torch.bfloat16) * 0.05)(B, S, D)),
            "dft_seq_re": _w(Ws_re),
            "dft_seq_im": _w(Ws_im),
            "dft_hid_re": _w(Wd_re),
            "dft_hid_im": _w(Wd_im),
        }
    _A_in = _A_setup()

    def _B_setup():
        B, S, D, F = 1, 2048, 1024, 3584
        return {
            "x": _w((lambda *s: torch.randn(*s, dtype=torch.bfloat16) * 0.05)(B, S, D)),
            "w1": _w((lambda *s: torch.randn(*s, dtype=torch.bfloat16) * 0.2)(D, F)),
            "b1": _w((lambda *s: torch.randn(*s, dtype=torch.bfloat16) * 0.2)(F)),
            "w2": _w((lambda *s: torch.randn(*s, dtype=torch.bfloat16) * 0.2)(F, D)),
            "b2": _w((lambda *s: torch.randn(*s, dtype=torch.bfloat16) * 0.2)(D)),
        }
    _B_in = _B_setup()

    return {
        "A_x": _A_in["x"],
        "A_dft_seq_re": _A_in["dft_seq_re"],
        "A_dft_seq_im": _A_in["dft_seq_im"],
        "A_dft_hid_re": _A_in["dft_hid_re"],
        "A_dft_hid_im": _A_in["dft_hid_im"],
        "B_x": _B_in["x"],
        "B_w1": _B_in["w1"],
        "B_b1": _B_in["b1"],
        "B_w2": _B_in["w2"],
        "B_b2": _B_in["b2"],
    }

def reference(A_x, A_dft_seq_re, A_dft_seq_im, A_dft_hid_re, A_dft_hid_im, B_x, B_w1, B_b1, B_w2, B_b2):
    def _A_ref(x, dft_seq_re, dft_seq_im, dft_hid_re, dft_hid_im):
        a = torch.einsum("bsd,ed->bse", x, dft_hid_re)
        b = torch.einsum("bsd,ed->bse", x, dft_hid_im)
        y = torch.einsum("ts,bse->bte", dft_seq_re, a) - torch.einsum("ts,bse->bte", dft_seq_im, b)
        return y

    def _B_ref(x, w1, b1, w2, b2):
        h = torch.einsum("bsd,df->bsf", x, w1) + b1
        zero = torch.zeros_like(h)
        r = torch.where(h > zero, h, zero)
        h = r * r
        out = torch.einsum("bsf,fd->bsd", h, w2) + b2
        return out

    x = A_x
    h = x + _A_ref(_layernorm(x, axis=-1), A_dft_seq_re, A_dft_seq_im, A_dft_hid_re, A_dft_hid_im)
    h2 = h + _B_ref(_layernorm(h, axis=-1), B_w1, B_b1, B_w2, B_b2)
    return h2
```

```python
class K:
    def __init__(self, name):
        self.name = name; self.L = []; self.vm = []; self.lg = []
        self.nlabel = 0
    def __call__(self, s):
        for line in s.split('\n'):
            line = line.strip()
            if line: self.L.append('  ' + line)
    def label(self, n): self.L.append(n + ':')
    def newlabel(self, p='L'):
        self.nlabel += 1; return f'{self.name}_{p}{self.nlabel}'
    def c(self, s): self.L.append('  ; ' + s)
    def vmem(self, s, tag=None):
        self(s); self.vm.append(tag)
    def lds(self, s, tag=None):
        self(s); self.lg.append(tag)
    def _cnt(self, q, tags):
        last = -1
        for i, t in enumerate(q):
            if t in tags: last = i
        if last < 0: return None
        return len(q) - 1 - last
    def wait(self, vm=(), lg=(), force=False):
        parts = []
        n = self._cnt(self.vm, set(vm)) if vm else None
        if n is not None:
            assert n <= 63, ('vmcnt overflow', n)
            parts.append(f'vmcnt({n})'); self.vm = self.vm[len(self.vm) - n:] if n else []
        m = self._cnt(self.lg, set(lg)) if lg else None
        if m is not None:
            if m > 15: m = 15
            parts.append(f'lgkmcnt({m})'); self.lg = self.lg[len(self.lg) - m:] if m else []
        if parts: self('s_waitcnt ' + ' '.join(parts))
    def wait_all(self, vm=True, lg=True):
        p = []
        if vm: p.append('vmcnt(0)'); self.vm = []
        if lg: p.append('lgkmcnt(0)'); self.lg = []
        self('s_waitcnt ' + ' '.join(p))
    def check_vm(self):
        assert len(self.vm) <= 63, len(self.vm)
    def text(self, vgpr, sgpr, accum):
        hdr = f'.globl {self.name}\n.p2align 8\n.type {self.name},@function\n{self.name}:\n'
        kd = (f'.amdhsa_kernel {self.name}\n  .amdhsa_next_free_vgpr {vgpr}\n  .amdhsa_next_free_sgpr {sgpr}\n'
              f'  .amdhsa_accum_offset {accum}\n  .amdhsa_group_segment_fixed_size 0\n  .amdhsa_kernarg_size 104\n'
              '  .amdhsa_user_sgpr_count 2\n  .amdhsa_user_sgpr_kernarg_segment_ptr 1\n  .amdhsa_system_sgpr_workgroup_id_x 1\n'
              '  .amdhsa_float_denorm_mode_32 3\n'
              '.end_amdhsa_kernel\n')
        return hdr + '\n'.join(self.L) + '\n', kd
def v(r, n=1): return f'v{r}' if n == 1 else f'v[{r}:{r+n-1}]'
def a(r, n=1): return f'a{r}' if n == 1 else f'a[{r}:{r+n-1}]'
def s(r, n=1): return f's{r}' if n == 1 else f's[{r}:{r+n-1}]'
def reg(r, n=1):
    return a(r - 256, n) if r >= 256 else v(r, n)
def assemble_file(header_lines, kernels):
    out = list(header_lines)
    out.append('.amdgcn_target "amdgcn-amd-amdhsa--gfx950"\n.text')
    kds = []
    for k, vg, sg, ac in kernels:
        t, kd = k.text(vg, sg, ac); out.append(t); kds.append(kd)
    out.append('.section .rodata,"a"')
    for kd in kds: out.append('.p2align 6\n' + kd)
    return '\n'.join(out)
```

```python
from asmlib import *
from layout import *
import struct
def f2u(x): return struct.unpack('<I', struct.pack('<f', x))[0]
def fl(x): return hex(f2u(x))

ZSTR=2056
L_X=0; L_Z=32768; L_ST=L_Z+8*ZSTR; L_DUM=L_ST+512; K1_LDS=L_DUM+512

def stamp_init(k,cfg):
    if cfg.get('stamps'):
        k('s_memtime s[60:61]\ns_memrealtime s[76:77]')
        for i in range(62,74): k(f's_mov_b32 s{i}, 0')
def stamp(k,idx,cfg):
    if cfg.get('stamps'): k(f's_memtime s[{60+2*idx}:{61+2*idx}]')
def stamp_end(k,cfg,wsreg,wavereg,nw,off):
    if not cfg.get('stamps'): return
    k('s_waitcnt vmcnt(0)')
    k('s_memtime s[74:75]\ns_memrealtime s[78:79]\ns_getreg_b32 s80, hwreg(HW_REG_XCC_ID)\ns_mov_b32 s81, 0\ns_mov_b64 s[82:83], 0\ns_waitcnt lgkmcnt(0)')
    k(f's_mul_i32 s3, s2, {nw}\ns_add_u32 s3, s3, s{wavereg}\ns_lshl_b32 s3, s3, 7\ns_add_u32 s3, s3, {WS_STAMP+off}\ns_add_u32 s84, s{wsreg}, s3\ns_addc_u32 s85, s{wsreg+1}, 0')
    for i in range(24): k(f'v_mov_b32 v{i}, s{60+i}')
    k('v_mov_b32 v24, 0\ns_mov_b64 exec, 1')
    for i in range(6): k(f'global_store_dwordx4 v24, v[{4*i}:{4*i+3}], s[84:85] offset:{16*i}')

def gen_k1(name,cfg):
    k=K(name)
    stamp_init(k,cfg)
    k(f's_cmp_ge_u32 s2, 256\ns_cbranch_scc1 {name}_end')
    k('s_load_dwordx2 s[4:5], s[0:1], 0\ns_load_dwordx2 s[6:7], s[0:1], 96\ns_load_dwordx2 s[8:9], s[0:1], 48')
    sWave,sSlo,sHf,sWq=12,13,14,15
    VL=1; VN=2; VG=3
    XG=8
    XT=40
    PM=72
    B1=80; B2=96; B2N=112; TWC=128; TWS=144; ONES=160
    T=164
    A1=184
    D1=200
    D1=8
    A2=200
    ZD=200
    TT=232
    VGR=4; VXR=6
    VZW=248; VZR=249; VST=250; VSR=251; VOUT=252; VF=253; VE=254; VMX=255
    k(f'v_lshrrev_b32 v{T}, 6, v0\nv_and_b32 v{VL}, 63, v0\nv_and_b32 v{VN}, 15, v0\nv_readfirstlane_b32 s{sWave}, v{T}\nv_bfe_u32 v{VG}, v0, 4, 2')
    k(f's_and_b32 s3, s2, 7\ns_lshl_b32 s3, s3, 4\ns_lshr_b32 s{sSlo}, s2, 4\ns_add_u32 s{sSlo}, s{sSlo}, s3\ns_bfe_u32 s{sHf}, s2, 0x10003')
    k(f's_lshl_b32 s{sWq}, s{sHf}, 2\ns_add_u32 s{sWq}, s{sWq}, s{sWave}')
    k(f'v_lshrrev_b32 v{T}, 3, v{VL}\nv_and_b32 v{T+1}, 6, v{T}\nv_and_b32 v{T+2}, 7, v{VL}\nv_xor_b32 v{T+1}, v{T+1}, v{T+2}\nv_lshlrev_b32 v{T}, 18, v{T}\nv_lshl_add_u32 v{T}, v{T+1}, 4, v{T}')
    k(f's_lshl_b32 s24, s{sSlo}, 11\ns_lshl_b32 s25, s{sWave}, 9\ns_add_u32 s24, s24, s25\ns_add_u32 s26, s24, {8<<18}\ns_lshl_b32 s27, s{sWave}, 13')
    k('s_waitcnt lgkmcnt(0)')
    stamp(k,5,cfg)
    k(f's_mov_b32 s16, s4\ns_and_b32 s17, s5, 0xffff\ns_mov_b32 s18, {2048*2048}\ns_mov_b32 s19, 0x20000')
    for p in range(4):
        for rh in range(2):
            k(f's_add_u32 m0, s27, {p*2048+rh*1024-128*p}\ns_nop 0')
            k.vmem(f'buffer_load_dwordx4 v{T}, s[16:19], s{26 if rh else 24} offen offset:{128*p} lds',('x',p))
    k(f's_mov_b32 s20, s6\ns_and_b32 s21, s7, 0xffff\ns_mov_b32 s22, {WS_ST}\ns_mov_b32 s23, 0x20000')
    k(f'v_and_b32 v{T+1}, 6, v{VN}\nv_xor_b32 v{T+1}, v{T+1}, v{VG}\nv_lshlrev_b32 v{T+2}, 7, v{VN}\nv_add_u32 v{T+2}, s27, v{T+2}\nv_lshl_add_u32 v{VGR}, v{T+1}, 4, v{T+2}\nv_xor_b32 v{VGR+1}, 64, v{VGR}')
    k(f'v_bfe_u32 v{T+1}, v0, 2, 3\nv_lshlrev_b32 v{T+2}, 7, v{T+1}\nv_and_b32 v{T+1}, 6, v{T+1}\nv_lshlrev_b32 v{T+1}, 4, v{T+1}\nv_and_b32 v{T+3}, 32, v{VL}\nv_lshlrev_b32 v{T+3}, 1, v{T+3}\nv_xor_b32 v{T+1}, v{T+1}, v{T+3}')
    k(f'v_and_b32 v{T+3}, 3, v0\nv_lshlrev_b32 v{T+3}, 3, v{T+3}\nv_add3_u32 v{T+2}, v{T+2}, v{T+3}, s27\nv_add_u32 v{VXR}, v{T+2}, v{T+1}\nv_xor_b32 v{VXR+1}, 32, v{VXR}')
    k(f'v_and_b32 v{T+1}, 7, v0\nv_mul_u32_u24 v{VZW}, {ZSTR}, v{T+1}\nv_and_b32 v{T+2}, 8, v0\nv_lshlrev_b32 v{T+2}, 3, v{T+2}\nv_lshl_add_u32 v{T+2}, v{VG}, 3, v{T+2}\ns_add_u32 s3, s25, {L_Z}\nv_add3_u32 v{VZW}, v{VZW}, v{T+2}, s3')
    k(f'v_lshrrev_b32 v{T+4}, 5, v{VL}\nv_lshlrev_b32 v{T+4}, 9, v{T+4}\nv_bfe_u32 v{T+5}, v0, 2, 2\nv_lshl_add_u32 v{T+4}, v{T+5}, 6, v{T+4}')
    k(f'v_and_b32 v{T+5}, 16, v0\nv_lshlrev_b32 v{T+5}, 1, v{T+5}\nv_add3_u32 v{T+4}, v{T+4}, v{T+5}, v{T+3}\ns_mul_i32 s3, s{sWave}, {2*ZSTR}\ns_add_u32 s3, s3, {L_Z}\nv_add_u32 v{VZR}, s3, v{T+4}')
    k(f'v_lshrrev_b32 v{T+4}, 2, v{VN}\nv_cmp_eq_u32 vcc, v{T+4}, v{VG}\ns_lshl_b32 s3, s{sWave}, 3\ns_add_u32 s3, s3, {L_ST}\nv_lshl_add_u32 v{T+5}, v{VN}, 5, s3')
    k(f'v_lshlrev_b32 v{T+6}, 3, v{VL}\nv_add_u32 v{T+6}, {L_DUM}, v{T+6}\nv_cndmask_b32 v{VST}, v{T+6}, v{T+5}, vcc')
    k(f'v_and_b32 v{T+4}, 1, v{VG}\nv_lshlrev_b32 v{T+4}, 2, v{T+4}\nv_xor_b32 v{T+5}, v{VN}, v{T+4}\nv_lshlrev_b32 v{T+6}, 5, v{T+5}\nv_add_u32 v{VSR}, {L_ST}, v{T+6}')
    k(f's_lshl_b32 s3, s{sSlo}, 2\ns_add_u32 s3, s3, {WS_MX}\nv_lshl_add_u32 v{VMX}, v{T+5}, 9, s3')
    k(f'v_and_b32 v{T+5}, 3, v0\nv_cmp_eq_u32 s[28:29], 1, v{T+5}\nv_cmp_eq_u32 s[30:31], 2, v{T+5}\nv_cmp_eq_u32 s[32:33], 3, v{T+5}')
    k(f's_mov_b32 s34, 0x10001\ns_mov_b32 s35, 0')
    k(f's_lshl_b32 s3, s{sHf}, 3\nv_add_u32 v{T+7}, s3, v{T+1}\nv_lshrrev_b32 v{T+5}, 1, v{T+7}\nv_cmp_eq_u32 vcc, 1, v{T+7}\nv_and_b32 v{T+6}, 1, v{T+7}\ns_nop 0\nv_cndmask_b32 v{T+5}, v{T+5}, 8, vcc\nv_cndmask_b32 v{T+6}, v{T+6}, 0, vcc')
    k(f'v_lshlrev_b32 v{VE}, 9, v{T+5}\nv_lshl_add_u32 v{VE}, v{T+6}, 8, v{VE}')
    k(f'v_sub_u32 v{T+8}, 16, v{T+5}\nv_lshlrev_b32 v{T+8}, 9, v{T+8}\nv_lshl_add_u32 v{T+8}, v{T+6}, 8, v{T+8}')
    k(f'v_cmp_gt_u32 s[36:37], 2, v{T+7}\nv_add_u32 v{T+9}, 256, v{VE}\nv_lshlrev_b32 v{VF}, 15, v{T+6}\nv_cndmask_b32 v{TT+15}, v{T+8}, v{T+9}, s[36:37]')
    k(f'v_cvt_f32_u32 v{T+5}, v{T+5}\nv_cvt_f32_u32 v{T+6}, v{T+6}\nv_cvt_f32_u32 v{T+4}, v{T+4}\nv_mul_f32 v{T+5}, {fl(1/16)}, v{T+5}\nv_mul_f32 v{T+6}, {fl(0.25)}, v{T+6}')
    k(f'v_fmac_f32 v{T+6}, v{T+5}, v{T+4}')
    for i in range(8): k(f'v_fmamk_f32 v{PM+i}, v{T+5}, {fl((i&3)+8*(i>>2))}, v{T+6}')
    for i in range(8): k(f'v_cos_f32 v{PM+i}, v{PM+i}')
    k(f'v_lshrrev_b32 v{T+4}, 3, v{VN}\nv_lshrrev_b32 v{T+5}, 1, v{VG}\nv_cmp_eq_u32 vcc, v{T+4}, v{T+5}')
    for i in range(4): k(f'v_mov_b32 v{ONES+i}, 0x3f803f80')
    for i in range(8): k(f'v_cndmask_b32 v{PM+i}, 0, v{PM+i}, vcc')
    k(f's_and_b32 s38, s{sSlo}, 0x63\ns_bfe_u32 s3, s{sSlo}, 0x20002\ns_lshl_b32 s3, s3, 3\ns_add_u32 s38, s38, s3\ns_bfe_u32 s3, s{sSlo}, 0x10004\ns_lshl_b32 s3, s3, 2\ns_add_u32 s38, s38, s3\ns_lshl_b32 s38, s38, 1\ns_add_u32 s38, s38, {WS_E}')
    E1=T+7; H4=T+8
    k(f'v_and_b32 v{T+4}, 4, v0\nv_lshlrev_b32 v{T+4}, 2, v{T+4}\nv_and_b32 v{T+5}, 3, v0\nv_bfe_u32 v{T+6}, v0, 3, 2\nv_lshl_add_u32 v{T+5}, v{T+6}, 2, v{T+5}\nv_add_u32 v{T+4}, v{T+4}, v{T+5}')
    k(f'v_lshlrev_b32 v{T+9}, 31, v{T+4}\nv_lshrrev_b32 v{T+10}, 16, v{T+9}\nv_or_b32 v{T+9}, v{T+9}, v{T+10}')
    k(f'v_cvt_f32_u32 v{E1}, v{T+4}\nv_lshrrev_b32 v{H4}, 5, v{VL}\nv_cvt_f32_u32 v{H4}, v{H4}')
    k(f'v_mul_f32 v{T+4}, {fl(1/32)}, v{E1}\nv_mul_f32 v{T+5}, {fl(8.0)}, v{H4}\nv_mul_f32 v{T+5}, v{T+5}, v{T+4}')
    S=A2
    for i in range(8): k(f'v_fmamk_f32 v{S+i}, v{T+4}, {fl(i)}, v{T+5}')
    for i in range(8): k(f'v_sin_f32 v{S+8+i}, v{S+i}')
    for i in range(8): k(f'v_cos_f32 v{S+i}, v{S+i}')
    for i in range(4): k(f'v_cvt_pk_bf16_f32 v{B1+8+i}, -v{S+8+2*i}, -v{S+9+2*i}')
    for i in range(4): k(f'v_cvt_pk_bf16_f32 v{B1+i}, v{S+2*i}, v{S+1+2*i}')
    for i in range(4): k(f'v_xor_b32 v{B1+4+i}, v{B1+i}, v{T+9}\nv_xor_b32 v{B1+12+i}, v{B1+8+i}, v{T+9}')
    k(f'v_mul_f32 v{T+4}, {fl(1/1024)}, v{E1}\nv_mul_f32 v{T+5}, 4.0, v{H4}\nv_mul_f32 v{T+5}, v{T+5}, v{T+4}')
    for r in range(16): k(f'v_fmamk_f32 v{TWC+r}, v{T+4}, {fl((r&3)+8*(r>>2))}, v{T+5}')
    for r in range(16): k(f'v_sin_f32 v{TWS+r}, v{TWC+r}')
    for r in range(16): k(f'v_cos_f32 v{TWC+r}, v{TWC+r}')
    k(f'v_cvt_f32_u32 v{T+4}, v{VN}\nv_mul_f32 v{T+4}, {fl(1/32)}, v{T+4}\nv_mul_f32 v{T+5}, 4.0, v{H4}\nv_mul_f32 v{T+5}, v{T+5}, v{T+4}')
    k(f'v_and_b32 v{T+6}, 1, v{VG}\nv_cvt_f32_u32 v{T+6}, v{T+6}\nv_fmac_f32 v{T+5}, {fl(0.25)}, v{T+6}')
    k(f'v_lshlrev_b32 v{T+9}, 31, v{VN}\nv_lshrrev_b32 v{T+10}, 16, v{T+9}\nv_or_b32 v{T+9}, v{T+9}, v{T+10}')
    for i in range(8): k(f'v_fmamk_f32 v{S+i}, v{T+4}, {fl((i&3)+8*(i>>2))}, v{T+5}')
    for i in range(8): k(f'v_sin_f32 v{S+8+i}, v{S+i}')
    for i in range(8): k(f'v_cos_f32 v{S+i}, v{S+i}')
    for i in range(4): k(f'v_cvt_pk_bf16_f32 v{B2+8+i}, v{S+8+2*i}, v{S+9+2*i}')
    for i in range(4): k(f'v_cvt_pk_bf16_f32 v{B2+i}, v{S+2*i}, v{S+1+2*i}')
    for i in range(4): k(f'v_xor_b32 v{B2+4+i}, v{B2+i}, v{T+9}\nv_xor_b32 v{B2+12+i}, v{B2+8+i}, v{T+9}')
    for i in range(16): k(f'v_xor_b32 v{B2N+i}, 0x80000000, v{B2+i}')
    k(f'v_and_b32 v{T+4}, 1, v{VG}\nv_lshlrev_b32 v{T+4}, 17, v{T+4}\nv_lshrrev_b32 v{T+5}, 5, v{VL}\nv_lshlrev_b32 v{T+5}, 5, v{T+5}\nv_lshl_add_u32 v{T+5}, v{VN}, 6, v{T+5}\ns_lshl_b32 s3, s{sSlo}, 10\nv_add3_u32 v{VOUT}, v{T+4}, v{T+5}, s3')
    k(f's_lshl_b32 s40, s{sWq}, 18\ns_sub_u32 s41, 16, s{sWq}\ns_cmp_eq_u32 s{sWq}, 0\ns_cselect_b32 s41, 8, s41\ns_lshl_b32 s41, s41, 18')
    stamp(k,1,cfg)
    G=T; SM=T+4
    for p in range(4):
        k.wait(vm=[('x',p)])
        for sub in range(2): k.lds(f'ds_read_b128 {v(XG+8*p+4*sub,4)}, v{VGR+sub} offset:{2048*p}',('g',2*p+sub))
    stamp(k,2,cfg)
    prefetch=cfg.get('prefetch')
    for q in range(8):
        k.wait(lg=[('g',q)])
        k(f'v_mfma_f32_16x16x32_bf16 {v(G,4)}, {v(XG+4*q,4)}, {v(XG+4*q,4)}, {"0" if q==0 else v(G,4)}')
        k(f'v_mfma_f32_16x16x32_bf16 {v(SM,4)}, {v(ONES,4)}, {v(XG+4*q,4)}, {"0" if q==0 else v(SM,4)}')
    for t in range(4):
        k.lds(f'ds_read_b64_tr_b16 {v(XT+4*t,2)}, v{VXR+(t&1)} offset:{2048*(t>>1)}','xt')
        k.lds(f'ds_read_b64_tr_b16 {v(XT+4*t+2,2)}, v{VXR+(t&1)} offset:{2048*(t>>1)+1024}','xt')
    k(f'v_cndmask_b32 v{SM+1}, v{G}, v{G+1}, s[28:29]\nv_cndmask_b32 v{SM+1}, v{SM+1}, v{G+2}, s[30:31]\nv_cndmask_b32 v{SM+1}, v{SM+1}, v{G+3}, s[32:33]')
    k.lds(f'ds_write_b64 v{VST}, {v(SM,2)}','sw')
    for t in range(4,8):
        k.lds(f'ds_read_b64_tr_b16 {v(XT+4*t,2)}, v{VXR+(t&1)} offset:{2048*(t>>1)}','xt2')
        k.lds(f'ds_read_b64_tr_b16 {v(XT+4*t+2,2)}, v{VXR+(t&1)} offset:{2048*(t>>1)+1024}','xt2')
    k.wait(lg=['sw']); k('s_barrier')
    R=A1
    for q in range(2): k.lds(f'ds_read_b128 {v(R+4*q,4)}, v{VSR} offset:{16*q}','sr')
    k.wait(lg=['sr'])
    for a_,b_ in ((0,2),(4,6),(0,4)):
        k(f'v_pk_add_f32 {v(R+a_,2)}, {v(R+a_,2)}, {v(R+b_,2)}')
    k(f'v_mul_f32 v{R+3}, {fl(1/1024)}, v{R}\nv_mul_f32 v{R+2}, v{R+3}, v{R+3}\nv_mul_f32 v{R+1}, {fl(1/1024)}, v{R+1}\nv_sub_f32 v{R+1}, v{R+1}, v{R+2}')
    k(f'v_max_f32 v{R+1}, 0, v{R+1}\nv_add_f32 v{R+1}, {fl(1e-5)}, v{R+1}\nv_rsq_f32 v{R+1}, v{R+1}')
    M=R+4; CI=G
    k(f'v_mov_b32 v{CI}, 0\nv_mul_f32 v{R}, -v{R+3}, v{R+1}')
    k.vmem(f'buffer_store_dword v{R+3}, v{VMX}, s[20:23], 0 offen')
    for i in range(8):
        ln=(i&3)+8*(i>>2)
        k(f'v_mul_f32_dpp v{M+i}, v{R+1}, v{PM+i} row_newbcast:{ln} row_mask:0xf bank_mask:0xf')
    for i in range(8):
        ln=(i&3)+8*(i>>2)
        k(f'v_fmac_f32_dpp v{CI}, v{R}, v{PM+i} row_newbcast:{ln} row_mask:0xf bank_mask:0xf')
    MH=SM; ML=T+8
    for i in range(4): k(f'v_cvt_pk_bf16_f32 v{MH+i}, v{M+2*i}, v{M+2*i+1}')
    k(f'v_mov_b32 v{CI+1}, v{CI}')
    for i in range(2):
        k(f'v_lshlrev_b32 v{R+12}, 16, v{MH+i}\nv_and_b32 v{R+13}, 0xffff0000, v{MH+i}\nv_pk_add_f32 {v(M+2*i,2)}, {v(M+2*i,2)}, {v(R+12,2)} neg_lo:[0,1] neg_hi:[0,1]')
    k(f'v_permlane16_swap_b32 v{CI}, v{CI+1}')
    for i in range(2,4):
        k(f'v_lshlrev_b32 v{R+12}, 16, v{MH+i}\nv_and_b32 v{R+13}, 0xffff0000, v{MH+i}\nv_pk_add_f32 {v(M+2*i,2)}, {v(M+2*i,2)}, {v(R+12,2)} neg_lo:[0,1] neg_hi:[0,1]')
        if i==2: k(f'v_add_f32 v{CI}, v{CI}, v{CI+1}\nv_mov_b32 v{CI+1}, v{CI}')
    k(f'v_permlane32_swap_b32 v{CI}, v{CI+1}')
    for i in range(4): k(f'v_cvt_pk_bf16_f32 v{ML+i}, v{M+2*i}, v{M+2*i+1}')
    k(f'v_add_f32 v{CI}, v{CI}, v{CI+1}\nv_mov_b32 v{CI+1}, v{CI}\nv_mov_b32 v{CI+2}, v{CI}\nv_mov_b32 v{CI+3}, v{CI}')
    k.wait(lg=['xt2']); k('s_nop 0')
    for t in range(8): k(f'v_mfma_f32_16x16x32_bf16 {v(ZD+4*t,4)}, {v(XT+4*t,4)}, {v(MH,4)}, {v(CI,4)}')
    for t in range(8): k(f'v_mfma_f32_16x16x32_bf16 {v(ZD+4*t,4)}, {v(XT+4*t,4)}, {v(ML,4)}, {v(ZD+4*t,4)}')
    k('s_nop 0')
    for t in range(8):
        k(f'v_cvt_pk_bf16_f32 v{ZD+4*t}, v{ZD+4*t}, v{ZD+4*t+1}\nv_cvt_pk_bf16_f32 v{ZD+4*t+1}, v{ZD+4*t+2}, v{ZD+4*t+3}')
        k.lds(f'ds_write_b64 v{VZW}, {v(ZD+4*t,2)} offset:{128*(t>>1)+32*(t&1)}','zw')
    k.wait_all(vm=False); k('s_barrier')
    stamp(k,3,cfg)
    for q in range(2):
        for ks in range(2):
            for hf in range(2):
                k.lds(f'ds_read_b64_tr_b16 {v(A1+8*q+4*ks+2*hf,2)}, v{VZR} offset:{q*ZSTR+(16*ks+4*hf)*64}',('a1',q,ks))
    k(f's_cmp_lg_u32 s{sWave}, 0\ns_cbranch_scc1 {name}_noE')
    k(f'v_xor_b32 v{T}, v{ZD}, v{VF}\nv_cndmask_b32 v{T}, v{T}, 0, s[36:37]\ns_mov_b64 exec, 0xff')
    k(f'buffer_store_short v{ZD}, v{VE}, s[20:23], s38 offen\nbuffer_store_short v{T}, v{TT+15}, s[20:23], s38 offen\ns_mov_b64 exec, -1')
    k.label(f'{name}_noE')
    UR,UI,VR,VI=D1,D1+16,D1+32,D1+48
    for q,(dr,di) in enumerate(((UR,UI),(VR,VI))):
        for ks in range(2):
            k.wait(lg=[('a1',q,ks)])
            k(f'v_mfma_f32_32x32x16_bf16 {v(dr,16)}, {v(A1+8*q+4*ks,4)}, {v(B1+4*ks,4)}, {"0" if ks==0 else v(dr,16)}')
            k(f'v_mfma_f32_32x32x16_bf16 {v(di,16)}, {v(A1+8*q+4*ks,4)}, {v(B1+8+4*ks,4)}, {"0" if ks==0 else v(di,16)}')
    if prefetch: prefetch(k)
    k('s_nop 11')
    k(f's_cmp_eq_u32 s{sWq}, 0\ns_cbranch_scc1 {name}_nocomb')
    for r in range(0,16,2):
        t0=TT+(r%4)
        k(f'v_pk_add_f32 {v(t0,2)}, {v(UR+r,2)}, {v(VI+r,2)}')
        k(f'v_pk_add_f32 {v(UR+r,2)}, {v(UR+r,2)}, {v(VI+r,2)} neg_lo:[0,1] neg_hi:[0,1]')
        k(f'v_pk_add_f32 {v(VI+r,2)}, {v(UI+r,2)}, {v(VR+r,2)} neg_lo:[0,1] neg_hi:[0,1]')
        k(f'v_pk_add_f32 {v(UI+r,2)}, {v(UI+r,2)}, {v(VR+r,2)}')
        k(f'v_pk_mov_b32 {v(VR+r,2)}, {v(t0,2)}, {v(t0,2)} op_sel:[0,1]')
    k.label(f'{name}_nocomb')
    for o,(dr,di) in enumerate(((UR,UI),(VR,VI))):
        for r in range(0,16,2):
            t0=T+(r%4)*2
            k(f'v_pk_mul_f32 {v(t0,2)}, {v(di+r,2)}, {v(TWS+r,2)}')
            k(f'v_pk_mul_f32 {v(t0+2,2)}, {v(dr+r,2)}, {v(TWS+r,2)}')
            k(f'v_pk_fma_f32 {v(dr+r,2)}, {v(dr+r,2)}, {v(TWC+r,2)}, {v(t0,2)}')
            k(f'v_pk_fma_f32 {v(di+r,2)}, {v(di+r,2)}, {v(TWC+r,2)}, {v(t0+2,2)} neg_lo:[0,0,1] neg_hi:[0,0,1]')
            k(f'v_cvt_pk_bf16_f32 v{A2+16*o+r//2}, v{dr+r}, v{dr+r+1}')
            k(f'v_cvt_pk_bf16_f32 v{A2+16*o+8+r//2}, v{di+r}, v{di+r+1}')
        k('s_nop 1')
        for (d,B) in ((di,B2N),(dr,B2)):
            first=True
            for part in range(2):
                for ks in range(2):
                    k(f'v_mfma_f32_32x32x16_bf16 {v(d,16)}, {v(A2+16*o+8*part+4*ks,4)}, {v(B+8*part+4*ks,4)}, {"0" if first else v(d,16)}')
                    first=False
    for o,(d,dn) in enumerate(((UR,UI),(VR,VI))):
        if o==1: k('s_nop 1')
        k(f'v_cndmask_b32 v{d}, v{d}, v{dn}, s[34:35]')
        for r in range(8): k(f'v_cvt_pk_bf16_f32 v{d+r}, v{d+2*r}, v{d+2*r+1}')
        for hf in range(2): k.vmem(f'buffer_store_dwordx4 {v(d+4*hf,4)}, v{VOUT}, s[20:23], s{40+o} offen offset:{16*hf}')
    stamp(k,4,cfg)
    stamp_end(k,cfg,6,sWave,4,0)
    k.label(f'{name}_end')
    k('s_endpgm')
    return (k,256,96,256), K1_LDS
```

```python
from asmlib import *
from layout import *
from k1_gen import fl, stamp_init, stamp, stamp_end
K2_LDS=16384
GRP=[[0,8,1,15],[2,14,3,13],[4,12,5,11],[6,10,7,9]]
def grp_word():
    w=0
    for p in range(4):
        for i in range(4): w|=GRP[p][i]<<(4*(p*4+i))
    return w
def emit_rb(k,dst,sx,sj,t0=34):
    w=grp_word()
    k(f's_lshr_b32 s{dst}, s{sx}, 1\ns_lshl_b32 s{dst}, s{dst}, 2\ns_and_b32 s3, s{sj}, 3\ns_add_u32 s3, s3, s{dst}\ns_lshl_b32 s3, s3, 2')
    k(f's_mov_b32 s{t0}, {hex(w&0xffffffff)}\ns_mov_b32 s{t0+1}, {hex(w>>32)}\ns_lshr_b64 s[{t0}:{t0+1}], s[{t0}:{t0+1}], s3\ns_and_b32 s{dst}, s{t0}, 15')

def gen_k2(name,cfg):
    k=K(name)
    stamp_init(k,cfg)
    k(f's_cmp_ge_u32 s2, 256\ns_cbranch_scc1 {name}_end')
    k('s_load_dwordx2 s[4:5], s[0:1], 0\ns_load_dwordx2 s[6:7], s[0:1], 96\ns_load_dwordx2 s[8:9], s[0:1], 48')
    sWave,sTl,sSb=12,13,14
    VL,VN,VG=1,2,3
    CT=8
    VF=72
    XD=136
    XM=144
    ACC=160
    MY=176
    EF=184
    MXV=216
    T=220
    VRD=4; VMA=6
    VSA=244; VTO=245; VT0=246; VTM=247
    VMO=249
    k(f'v_lshrrev_b32 v{T}, 6, v0\nv_and_b32 v{VL}, 63, v0\nv_and_b32 v{VN}, 15, v0\nv_readfirstlane_b32 s{sWave}, v{T}\nv_bfe_u32 v{VG}, v0, 4, 2')
    k('s_and_b32 s15, s2, 7\ns_lshr_b32 s16, s2, 3')
    emit_rb(k,sTl,15,16)
    k(f's_and_b32 s{sSb}, s15, 1\ns_lshl_b32 s{sSb}, s{sSb}, 3\ns_lshr_b32 s3, s16, 2\ns_add_u32 s{sSb}, s{sSb}, s3')
    k(f'v_lshrrev_b32 v{T}, 2, v{VL}\nv_and_b32 v{T+1}, 3, v{VL}\nv_and_b32 v{T+2}, 1, v{VG}\nv_lshlrev_b32 v{T+2}, 1, v{T+2}\nv_xor_b32 v{T+1}, v{T+1}, v{T+2}')
    k(f'v_lshlrev_b32 v{T}, 10, v{T}\nv_lshl_add_u32 v{T}, v{T+1}, 4, v{T}')
    k(f's_lshl_b32 s17, s{sTl}, 18\ns_lshl_b32 s3, s{sSb}, 6\ns_add_u32 s17, s17, s3\ns_lshl_b32 s3, s{sWave}, 16\ns_add_u32 s17, s17, s3\ns_lshl_b32 s18, s{sWave}, 12')
    k(f'v_lshlrev_b32 v{VTO}, 4, v{VL}')
    k(f's_lshl_b32 s3, s{sWave}, 9\ns_add_u32 s28, s3, s{sTl}\nv_lshl_add_u32 v{VT0}, v{VN}, 4, s28')
    k(f'v_lshlrev_b32 v{T+2}, 3, v{VG}\ns_lshl_b32 s29, s{sSb}, 6\nv_add_u32 v{T+2}, s29, v{T+2}')
    k(f'v_lshl_add_u32 v{T+3}, v{VT0}, 11, v{T+2}\ns_mov_b32 s30, {256*2048}')
    for tt in range(2):
        k(f'v_sub_u32 v{VTM+tt}, {2048-256*tt}, v{VT0}\nv_and_b32 v{VTM+tt}, 2047, v{VTM+tt}')
        k(f'v_lshlrev_b32 v{T+6+tt}, 11, v{VTM+tt}\nv_sub_u32 v{T+4+tt}, v{T+6+tt}, v{T+2}\nv_add_u32 v{T+4+tt}, {2048-8-32}, v{T+4+tt}')
    k(f'v_lshlrev_b32 v{T+8}, 4, v{VG}\ns_lshl_b32 s31, s{sTl}, 9\ns_add_u32 s31, s31, {WS_E}')
    k(f'v_lshlrev_b32 v{T+9}, 2, v{VT0}\nv_lshlrev_b32 v{T+10}, 2, v{VTM}\nv_lshlrev_b32 v{T+11}, 2, v{VTM+1}\ns_mov_b32 s37, {WS_MX}')
    TF=T+12; BS=T+14
    def ct_part(tt,u):
        S=EF if False else None
    k(f'v_cvt_f32_u32 v{TF}, v{VT0}\nv_cvt_f32_u32 v{T+16}, v{VG}\nv_mul_f32 v{TF}, {fl(1/2048)}, v{TF}\nv_add_f32 v{TF+1}, {fl(0.125)}, v{TF}\nv_mul_f32 v{T+16}, 4.0, v{T+16}')
    k(f'v_mul_f32 v{BS}, v{TF}, v{T+16}\nv_mul_f32 v{BS+1}, v{TF+1}, v{T+16}')
    def ctgen(u,tt):
        S=VF+16*((u*2+tt)&1)
        for i in range(8): k(f'v_fmamk_f32 v{S+i}, v{TF+tt}, {fl(32*u+(i&3)+16*(i>>2))}, v{BS+tt}')
        for i in range(8): k(f'v_sin_f32 v{S+8+i}, v{S+i}')
        for i in range(8): k(f'v_cos_f32 v{S+i}, v{S+i}')
        for i in range(4): k(f'v_cvt_pk_bf16_f32 v{CT+((u+4)*2+tt)*4+i}, v{S+8+2*i}, v{S+9+2*i}')
        for i in range(4): k(f'v_cvt_pk_bf16_f32 v{CT+(u*2+tt)*4+i}, v{S+2*i}, v{S+1+2*i}')
    NPRE=cfg.get('ctpre',3)
    todo=[(u,tt) for u in range(4) for tt in range(2)]
    for _ in range(NPRE): ctgen(*todo.pop(0))
    k('s_waitcnt lgkmcnt(0)')
    stamp(k,5,cfg)
    k(f's_mov_b32 s20, s6\ns_and_b32 s21, s7, 0xffff\ns_mov_b32 s22, {WS_HH}\ns_mov_b32 s23, 0x20000')
    k(f's_mov_b32 s24, s4\ns_and_b32 s25, s5, 0xffff\ns_mov_b32 s26, {2048*2048}\ns_mov_b32 s27, 0x20000')
    for q in range(4):
        k(f's_add_u32 m0, s18, {q*1024}\ns_add_u32 s19, s17, {q*16384}')
        k.vmem(f'buffer_load_dwordx4 v{T}, s[20:23], s19 offen lds','v')
    for u in range(8): k.vmem(f'buffer_load_dwordx4 {v(EF+4*u,4)}, v{T+8}, s[20:23], s31 offen offset:{64*u}','e')
    for tt in range(2):
        for j in range(2):
            k.vmem(f'buffer_load_dwordx2 {v(XD+(tt*2+j)*2,2)}, v{T+3}, s[24:27], {"s30" if tt else "0"} offen offset:{32*j}','x')
    for tt in range(2):
        for j in range(2):
            k.vmem(f'buffer_load_dwordx3 {v(XM+(tt*2+j)*4,3)}, v{T+4+tt}, s[24:27], 0 offen offset:{32*(1-j)}','x')
        k.vmem(f'buffer_load_dword v{XM+(tt*2)*4+3}, v{T+6+tt}, s[24:27], 0 offen offset:1024','x')
    for tt in range(2):
        k.vmem(f'buffer_load_dword v{MXV+2*tt}, v{T+9}, s[20:23], s37 offen offset:{1024*tt}','x')
        k.vmem(f'buffer_load_dword v{MXV+2*tt+1}, v{T+10+tt}, s[20:23], s37 offen','x')
    if cfg.get('prefetch'): cfg['prefetch'](k)
    while todo: ctgen(*todo.pop(0))
    for tt in range(2):
        k(f'v_and_b32 v{T+8}, 15, v{VTM+tt}\nv_lshlrev_b32 v{T+8}, 2, v{T+8}\nv_lshrrev_b32 v{T+9}, 9, v{VTM+tt}\nv_add_u32 v{T+8}, v{T+8}, v{T+9}')
        k(f'v_bfe_u32 v{T+9}, v{VTM+tt}, 8, 1\nv_bfe_u32 v{T+10}, v{VTM+tt}, 4, 4\nv_lshl_add_u32 v{T+11}, v{VG}, 4, v{T+10}\nv_lshlrev_b32 v{T+11}, 4, v{T+11}')
        k(f'v_lshl_add_u32 v{T+11}, v{T+9}, 10, v{T+11}\nv_lshl_add_u32 v{VMA+tt}, v{T+8}, 16, v{T+11}')
        k(f'v_lshlrev_b32 v{T+10}, 4, v{T+10}\nv_lshl_add_u32 v{T+10}, v{T+9}, 11, v{T+10}\nv_lshl_add_u32 v{T+tt}, v{T+8}, 12, v{T+10}\nv_add_u32 v{T+tt}, 512, v{T+tt}')
    k(f's_lshl_b32 s3, s{sTl}, 2\ns_add_u32 s3, s3, s{sWave}\ns_lshl_b32 s31, s3, 12\nv_lshlrev_b32 v{T+2}, 4, v{VN}\nv_lshl_add_u32 v{T+2}, v{VG}, 11, v{T+2}\nv_add_u32 v{T+2}, s31, v{T+2}')
    k(f'v_cmp_eq_u32 vcc, 2, v{VG}\nv_cmp_eq_u32 s[40:41], 3, v{VG}\ns_nop 0\nv_cndmask_b32 v{VSA}, v{T+2}, v{T}, vcc\nv_cndmask_b32 v{VSA}, v{VSA}, v{T+1}, s[40:41]')
    k(f's_lshl_b32 s32, s3, 16\ns_lshl_b32 s33, s{sSb}, 11\ns_add_u32 s33, s33, {WS_H1}\ns_add_u32 s32, s32, s33\ns_add_u32 s33, s33, {16*2048}')
    k(f's_lshr_b32 s36, s{sSb}, 3\ns_lshl_b32 s36, s36, 8\ns_bfe_u32 s31, s{sSb}, 0x10002\ns_lshl_b32 s31, s31, 10\ns_add_u32 s36, s36, s31\ns_and_b32 s31, s{sSb}, 3\ns_lshl_b32 s31, s31, 2\ns_add_u32 s36, s36, s31\ns_add_u32 s36, s36, {WS_ST}')
    k(f's_cmp_eq_u32 s{sSb}, 0\ns_cselect_b32 s38, 0xffff, 0\ns_mov_b32 s39, 0')
    k(f's_cselect_b32 s42, {WS_M}, 0x40000000\ns_lshl_b32 s3, s3, 7\ns_add_u32 s42, s42, s3\nv_lshlrev_b32 v{VMO}, 2, v{VN}')
    k(f'v_lshrrev_b32 v{T+8}, 2, v{VL}\nv_lshlrev_b32 v{T+8}, 6, v{T+8}\nv_and_b32 v{T+9}, 3, v{VL}\nv_lshl_add_u32 v{T+8}, v{T+9}, 3, v{T+8}\nv_and_b32 v{T+9}, 16, v{VL}\nv_lshlrev_b32 v{T+9}, 1, v{T+9}')
    k(f'v_add_u32 v{VRD}, v{T+8}, v{T+9}\nv_sub_u32 v{VRD+1}, v{T+8}, v{T+9}\nv_add_u32 v{VRD+1}, 32, v{VRD+1}')
    stamp(k,1,cfg)
    k.wait(vm=['v']); k('s_barrier')
    stamp(k,2,cfg)
    def rd(u):
        for j in range(2):
            for q in range(2):
                k.lds(f'ds_read_b64_tr_b16 {v(VF+(u*2+j)*4+2*q,2)}, v{VRD+j} offset:{(32*u+16*q)*64}',('f',u))
    for u in range(3): rd(u)
    k.wait(vm=['e'])
    for u in range(8):
        for tt in range(2):
            d=MY+4*tt
            k(f'v_mfma_f32_16x16x32_bf16 {v(d,4)}, {v(EF+4*u,4)}, {v(CT+(u*2+tt)*4,4)}, {"0" if u==0 else v(d,4)}')
        k.wait(lg=[('f',u)])
        for j in range(2):
            for tt in range(2):
                d=ACC+(j*2+tt)*4
                k(f'v_mfma_f32_16x16x32_bf16 {v(d,4)}, {v(VF+(u*2+j)*4,4)}, {v(CT+(u*2+tt)*4,4)}, {"0" if u==0 else v(d,4)}')
        if u+3<8: rd(u+3)
    stamp(k,3,cfg)
    k.wait(vm=['x'])
    HD=CT; HM=CT+8; F=CT+16; Q=CT+48
    for tt in range(2):
        k(f'v_cndmask_b32 v{XM+tt*8+2}, v{XM+tt*8+2}, v{XM+tt*8+3}, s[38:39]')
    FM=VF; FD=VF+16
    for tt in range(2):
        for j in range(2):
            m=XM+(tt*2+j)*4; f=FM+(tt*2+j)*4
            k(f'v_lshlrev_b32 v{f}, 16, v{m+2}\nv_and_b32 v{f+1}, 0xffff0000, v{m+1}\nv_lshlrev_b32 v{f+2}, 16, v{m+1}\nv_and_b32 v{f+3}, 0xffff0000, v{m}')
            m=XD+(tt*2+j)*2; f=FD+(tt*2+j)*4
            k(f'v_lshlrev_b32 v{f}, 16, v{m}\nv_and_b32 v{f+1}, 0xffff0000, v{m}\nv_lshlrev_b32 v{f+2}, 16, v{m+1}\nv_and_b32 v{f+3}, 0xffff0000, v{m+1}')
    for tt in range(2):
        k(f'v_pk_add_f32 {v(MXV+2*tt,2)}, {v(MXV+2*tt,2)}, {v(MY+4*tt,2)}')
    for tt in range(2):
        k.vmem(f'buffer_store_dword v{MXV+2*tt}, v{VMO}, s[20:23], s42 offen offset:{64*tt}')
    for tt in range(2):
        for (F0,H,which) in ((FM,HM,1),(FD,HD,0)):
            if which==0: k(f'v_cndmask_b32 v{ACC+tt*4}, v{ACC+tt*4}, 0, s[38:39]')
            q=Q+(which*2+tt)*2
            sel=f'op_sel:[0,{which}] op_sel_hi:[1,{which}] neg_lo:[0,1] neg_hi:[0,1]'
            for j in range(2):
                y=ACC+(j*2+tt)*4; f=F0+(tt*2+j)*4
                for hh in range(2):
                    k(f'v_pk_add_f32 {v(f+2*hh,2)}, {v(f+2*hh,2)}, {v(MXV+2*tt,2)} {sel}')
                for hh in range(2):
                    k(f'v_pk_add_f32 {v(f+2*hh,2)}, {v(f+2*hh,2)}, {v(y+2*hh,2)}')
                for hh in range(2):
                    k(f'v_cvt_pk_bf16_f32 v{H+4*tt+2*j+hh}, v{f+2*hh}, v{f+2*hh+1}')
            if which: k.vmem(f'buffer_store_dwordx4 {v(HM+4*tt,4)}, v{VMA+tt}, s[20:23], s33 offen')
            else: k.vmem(f'buffer_store_dwordx4 {v(HD+4*tt,4)}, v{VTO}, s[20:23], s32 offen offset:{1024*tt}')
            for j in range(2):
                f=F0+(tt*2+j)*4
                for hh in range(2):
                    if j==0 and hh==0: k(f'v_pk_mul_f32 {v(q,2)}, {v(f,2)}, {v(f,2)}')
                    else: k(f'v_pk_fma_f32 {v(q,2)}, {v(f+2*hh,2)}, {v(f+2*hh,2)}, {v(q,2)}')
    for i in range(4): k(f'v_add_f32 v{Q+2*i}, v{Q+2*i}, v{Q+2*i+1}')
    k(f's_nop 0\nv_permlane32_swap_b32 v{Q}, v{Q+4}\nv_permlane32_swap_b32 v{Q+2}, v{Q+6}\nv_add_f32 v{Q}, v{Q}, v{Q+4}\nv_add_f32 v{Q+2}, v{Q+2}, v{Q+6}\ns_nop 1')
    k(f'v_permlane16_swap_b32 v{Q}, v{Q+2}\nv_add_f32 v{Q}, v{Q}, v{Q+2}')
    k.vmem(f'buffer_store_dword v{Q}, v{VSA}, s[20:23], s36 offen')
    stamp(k,4,cfg)
    stamp_end(k,cfg,6,sWave,4,1<<18)
    k.label(f'{name}_end')
    k('s_endpgm')
    return (k,256,96,256), K2_LDS
```

```python
from asmlib import *
from layout import *
from k1_gen import fl, stamp_init, stamp, stamp_end
from k2_gen import emit_rb

def gen_gemm(name, cfg):
    isK3 = cfg['kind']=='k3'
    NC=224 if isK3 else 64
    NSTG=16 if isK3 else 56
    WSTR=7168 if isK3 else 2048
    NS=cfg['NS']; NT=cfg['NT']; LAF=cfg['LAF']; NB=LAF+1
    ROWB=NC*2; STGB=64*ROWB; ND=STGB//4096; NJ=NC//16
    k=K(name)
    ACC=0; WF=ACC+NC//2; TK=WF+NB*4; nxt=TK+NT*16
    VW=nxt; nxt+=ND
    if isK3: VWR=nxt; nxt+=ND; VWS=nxt; nxt+=1
    NRD=2 if isK3 else 4
    VRD=nxt; nxt+=NRD
    big=NS*STGB>65536
    if big: VCUR=nxt; nxt+=2*NRD
    VTO=nxt; nxt+=1; VL=nxt; nxt+=1
    nxt=(nxt+1)//2*2
    T0=nxt; nxt+=4
    if isK3:
        SQ=nxt; nxt+=16
        BB=nxt; nxt+=0
    else:
        PRE=nxt; nxt+=32
        HX=nxt; nxt+=24
        B2R=nxt; nxt+=8
        MR=nxt; nxt+=4
        VOA=nxt; nxt+=2
    NV=nxt; assert NV<=256, NV
    sW,sT,sO,sA,sB=4,8,12,40,44
    sWoff,sToff,sWave,sWl,sRb,sCb,sTb=16,17,18,19,20,21,31
    stamp_init(k,cfg)
    k(f's_cmp_ge_u32 s2, 256\ns_cbranch_scc1 {name}_end')
    k(f's_load_dwordx4 s[24:27], s[0:1], {48 if isK3 else 64}\ns_load_dwordx2 s[28:29], s[0:1], 96')
    if not isK3: k('s_load_dwordx2 s[32:33], s[0:1], 80')
    k(f'v_lshrrev_b32 v{T0}, 6, v0\nv_and_b32 v{VL}, 63, v0\ns_and_b32 s22, s2, 7\nv_readfirstlane_b32 s{sWave}, v{T0}\ns_lshr_b32 s23, s2, 3')
    emit_rb(k,sRb,22,23)
    k(f's_and_b32 s{sCb}, s22, 1\ns_lshl_b32 s{sCb}, s{sCb}, 3\ns_lshr_b32 s3, s23, 2\ns_add_u32 s{sCb}, s{sCb}, s3')
    k(f's_mul_i32 s3, s{sWave}, {ND*64}\nv_add_u32 v{T0}, s3, v{VL}')
    for q in range(ND):
        if isK3:
            k(f'v_mul_u32_u24 v{T0+1}, 9363, v{T0}\nv_lshrrev_b32 v{T0+1}, 18, v{T0+1}')
            k(f'v_mul_u32_u24 v{T0+2}, 28, v{T0+1}\nv_sub_u32 v{T0+2}, v{T0}, v{T0+2}')
            k(f'v_lshrrev_b32 v{T0+3}, 1, v{T0+1}\nv_and_b32 v{T0+3}, 2, v{T0+3}\nv_xor_b32 v{T0+2}, v{T0+2}, v{T0+3}\nv_lshlrev_b32 v{T0+2}, 4, v{T0+2}')
            k(f'v_mul_u32_u24 v{T0+3}, {WSTR}, v{T0+1}\nv_add_u32 v{VW+q}, v{T0+3}, v{T0+2}')
            k(f'v_sub_u32 v{T0+3}, {63*WSTR}, v{T0+3}\nv_add_u32 v{VWR+q}, v{T0+3}, v{T0+2}')
            if q==0:
                k(f'v_add_u32 v{VWS}, {961*WSTR}, v{VWR}\nv_add_u32 v{T0+3}, {512*WSTR}, v{T0+2}\nv_cmp_eq_u32 vcc, 0, v{T0+1}\ns_nop 1\nv_cndmask_b32 v{VWS}, v{VWS}, v{T0+3}, vcc')
        else:
            k(f'v_lshrrev_b32 v{T0+1}, 3, v{T0}\nv_and_b32 v{T0+2}, 7, v{T0}\nv_and_b32 v{T0+3}, 6, v{T0+1}\nv_xor_b32 v{T0+2}, v{T0+2}, v{T0+3}')
            k(f'v_lshlrev_b32 v{T0+2}, 4, v{T0+2}\nv_mul_u32_u24 v{T0+3}, {WSTR}, v{T0+1}\nv_add_u32 v{VW+q}, v{T0+3}, v{T0+2}')
        if q<ND-1: k(f'v_add_u32 v{T0}, 64, v{T0}')
    k(f'v_lshrrev_b32 v{T0}, 2, v{VL}\nv_mul_u32_u24 v{T0+1}, {ROWB}, v{T0}\nv_and_b32 v{T0+2}, 3, v{VL}\nv_lshl_add_u32 v{T0+1}, v{T0+2}, 3, v{T0+1}')
    if isK3:
        k(f'v_and_b32 v{T0+2}, 16, v{VL}\nv_lshlrev_b32 v{T0+2}, 1, v{T0+2}\nv_add_u32 v{VRD}, v{T0+1}, v{T0+2}\nv_sub_u32 v{VRD+1}, v{T0+1}, v{T0+2}')
    else:
        k(f'v_and_b32 v{T0+2}, 6, v{T0}\nv_lshlrev_b32 v{T0+2}, 4, v{T0+2}')
        for j in range(4): k(f'v_xor_b32 v{T0+3}, {32*j}, v{T0+2}\nv_add_u32 v{VRD+j}, v{T0+1}, v{T0+3}')
    k(f'v_lshlrev_b32 v{VTO}, 4, v{VL}')
    k(f's_mul_i32 s{sWl}, s{sWave}, {ND*1024}\ns_lshl_b32 s3, s{sRb}, 2\ns_add_u32 s{sTb}, s3, s{sWave}')
    k('s_waitcnt lgkmcnt(0)')
    stamp(k,5,cfg)
    wbytes=1024*7168
    k(f's_mul_i32 s3, s{sCb}, {ROWB}\ns_add_u32 s{sW}, s24, s3\ns_addc_u32 s{sW+1}, s25, 0\ns_and_b32 s{sW+1}, s{sW+1}, 0xffff\ns_sub_u32 s{sW+2}, {wbytes}, s3\ns_mov_b32 s{sW+3}, 0x20000')
    TOKB=NSTG*4096
    k(f's_mul_i32 s3, s{sTb}, {TOKB}\ns_add_u32 s3, s3, {WS_H1 if isK3 else WS_HH}')
    k(f's_add_u32 s{sT}, s28, s3\ns_addc_u32 s{sT+1}, s29, 0\ns_and_b32 s{sT+1}, s{sT+1}, 0xffff\ns_mov_b32 s{sT+2}, {TOKB}\ns_mov_b32 s{sT+3}, 0x20000')
    state={'woff':None,'toff':None}
    def woff_for(st):
        if not isK3: return st*64*WSTR
        return st*64*WSTR if st<8 else (1536-64*st-63)*WSTR
    def dma(st,q):
        if st>=NSTG: return
        slot=st%NS
        if state['woff']!=st:
            k(f's_mov_b32 s{sWoff}, {woff_for(st)}'); state['woff']=st
        k(f's_add_u32 m0, s{sWl}, {slot*STGB+q*1024}')
        if isK3 and st==8 and q==0: vo,so=VWS,'0'
        elif isK3 and st>=8: vo,so=VWR+q,f's{sWoff}'
        else: vo,so=VW+q,f's{sWoff}'
        return lambda: k.vmem(f'buffer_load_dwordx4 v{vo}, s[{sW}:{sW+3}], {so} offen lds', ('W',st))
    def dma_now(st,q):
        f=dma(st,q)
        if f: k('s_nop 0'); f()
    def tok(st,sub):
        if st>=NSTG: return
        if state['toff']!=st:
            k(f's_mov_b32 s{sToff}, {st*4096}'); state['toff']=st
        r=TK+(st%NT)*16+sub*4
        k.vmem(f'buffer_load_dwordx4 {v(r,4)}, v{VTO}, s[{sT}:{sT+3}], s{sToff} offen offset:{sub*1024}', ('T',st,sub))
    FPS=NJ*2; NFR=FPS*NSTG
    def rd(f,q):
        if f>=NFR: return
        st=f//FPS; u=(f%FPS)//NJ; j=f%NJ
        off=(32*u+16*q)*ROWB
        if isK3: off+=j*32; ai=j&1
        else: ai=j
        if big: ar=VCUR+(st&1)*NRD+ai
        else: ar=VRD+ai; off+=(st%NS)*STGB
        k.lds(f'ds_read_b64_tr_b16 {v(WF+(f%NB)*4+2*q,2)}, v{ar} offset:{off}', ('R',f))
    def setcur(st):
        if big and st<NSTG:
            for i in range(NRD): k(f'v_add_u32 v{VCUR+(st&1)*NRD+i}, {(st%NS)*STGB}, v{VRD+i}')
    pend=[]
    P0=cfg.get('P0',2)
    for st in range(max(NS-1,NT)):
        if st<NS-1:
            for q in range(ND):
                if st<P0: dma_now(st,q)
                else: pend.append(('dma',st,q))
        if st<NT:
            for sub in range(4):
                if st<P0: tok(st,sub)
                else: pend.append(('tok',st,sub))
    def issue(p, now):
        if p[0]=='tok':
            if now: tok(p[1],p[2]); return None
            return lambda: tok(p[1],p[2])
        if p[0]=='dma':
            if now: dma_now(p[1],p[2]); return None
            return dma(p[1],p[2])
        if now: p[1](); return None
        return p[1]
    def flush(item):
        while item in pend: issue(pend.pop(0),True)
    k(f's_mov_b32 s{sA}, s28\ns_and_b32 s{sA+1}, s29, 0xffff\ns_mov_b32 s{sA+2}, {WS_HH}\ns_mov_b32 s{sA+3}, 0x20000')
    k(f's_mov_b32 s{sB}, s26\ns_and_b32 s{sB+1}, s27, 0xffff\ns_mov_b32 s{sB+2}, {3584*2 if isK3 else 2048}\ns_mov_b32 s{sB+3}, 0x20000')
    events={}
    def at(f,item): events.setdefault(f,[]).append(item)
    if isK3:
        k(f's_mul_i32 s3, s{sTb}, {224*1024}\ns_mul_i32 s30, s{sCb}, {14*1024}\ns_add_u32 s3, s3, s30\ns_add_u32 s3, s3, {WS_HH}')
        k(f's_add_u32 s{sO}, s28, s3\ns_addc_u32 s{sO+1}, s29, 0\ns_and_b32 s{sO+1}, s{sO+1}, 0xffff\ns_mov_b32 s{sO+2}, {14*1024}\ns_mov_b32 s{sO+3}, 0x20000')
        k(f's_lshl_b32 s36, s{sTb}, 12\ns_add_u32 s36, s36, {WS_ST}\ns_mul_i32 s37, s{sCb}, 448')
        k(f's_cmp_eq_u32 s{sCb}, 0\ns_cselect_b32 s38, {WS_RS}, 0x40000000\ns_lshl_b32 s3, s{sTb}, 7\ns_add_u32 s38, s38, s3')
        f0=6*FPS
        for i in range(4):
            at(f0+2*i+1,('vm',lambda i=i: k.vmem(f'buffer_load_dwordx4 {v(SQ+4*i,4)}, v{VTO}, s[{sA}:{sA+3}], s36 offen offset:{1024*i}','sq')))
        f1=9*FPS+1
        V=[]
        V.append(('wait','sq'))
        for tt in range(2):
            b=SQ+8*tt
            V+= [f'v_pk_add_f32 {v(b,2)}, {v(b,2)}, {v(b+2,2)}', f'v_pk_add_f32 {v(b+4,2)}, {v(b+4,2)}, {v(b+6,2)}']
        for tt in range(2):
            b=SQ+8*tt; V.append(f'v_pk_add_f32 {v(b,2)}, {v(b,2)}, {v(b+4,2)}')
        for tt in range(2):
            b=SQ+8*tt; V.append(f'v_add_f32 v{b}, v{b}, v{b+1}')
        a_=SQ; b_=SQ+8
        V+= [f'v_permlane32_swap_b32 v{a_}, v{b_}', f'v_add_f32 v{a_}, v{a_}, v{b_}', f'v_mov_b32 v{b_}, v{a_}', f'v_permlane16_swap_b32 v{a_}, v{b_}', f'v_add_f32 v{a_}, v{a_}, v{b_}',
             f'v_mov_b32 v{b_}, {fl(1e-5)}', f'v_fmac_f32 v{b_}, {fl(1/1024)}, v{a_}', f'v_sqrt_f32 v{a_}, v{b_}', f'v_rcp_f32 v{b_}, v{b_}',
             f'v_cvt_pk_bf16_f32 v{a_+1}, v{a_}, v{a_}', f'v_and_b32 v{a_+1}, 0xffff0000, v{a_+1}', f'v_sub_f32 v{a_+1}, v{a_}, v{a_+1}', f'v_cvt_pk_bf16_f32 v{a_}, v{a_}, v{a_+1}',
             f'v_mov_b32 v{a_+4}, v{a_}', f'v_mov_b32 v{a_+1}, 0', f'v_mov_b32 v{a_+2}, 0', f'v_mov_b32 v{a_+3}, 0', f'v_permlane32_swap_b32 v{a_+4}, v{a_+2}',
             f'v_and_b32 v{T0}, 15, v{VL}', f'v_lshrrev_b32 v{T0+1}, 5, v{VL}', f'v_lshl_add_u32 v{T0}, v{T0+1}, 4, v{T0}', f'v_lshlrev_b32 v{T0}, 2, v{T0}',
             ('vm',lambda: k.vmem(f'buffer_store_dword v{b_}, v{T0}, s[{sA}:{sA+3}], s38 offen')),
             f'v_lshlrev_b32 v{T0+1}, 1, v{VL}', f'v_cmp_gt_u32 vcc, 16, v{VL}', f'v_mov_b32 v{T0+2}, 0x40000000', f'v_cndmask_b32 v{T0+1}, v{T0+2}, v{T0+1}, vcc']
        for i,x in enumerate(V):
            at(f1+2*i, x if isinstance(x,tuple) else ('valu',x))
        AUGB=[SQ,SQ+2]
        BF=TK+(12%NT)*16
        assert NT==4
        f2=14*FPS+2
        for j in range(14):
            at(f2+2*j,('vm',lambda j=j: k.vmem(f'buffer_load_ushort v{BF+2*j}, v{T0+1}, s[{sB}:{sB+3}], s37 offen offset:{32*j}','bf')))
            at(f2+2*j+1,('valu',f'v_mov_b32 v{BF+2*j+1}, 0'))
    else:
        k(f's_mov_b32 s{sO}, s32\ns_and_b32 s{sO+1}, s33, 0xffff\ns_mov_b32 s{sO+2}, {2048*2048}\ns_mov_b32 s{sO+3}, 0x20000')
        VN_,VG_=T0,T0+1
        V=[f'v_and_b32 v{VN_}, 15, v{VL}', f'v_lshrrev_b32 v{VG_}, 4, v{VL}']
        k(f's_lshl_b32 s36, s{sTb}, 16\ns_add_u32 s36, s36, {WS_H1}\ns_lshl_b32 s37, s{sCb}, 6\ns_sub_u32 s38, 1532, s37\ns_cmp_ge_u32 s{sCb}, 8\ns_cselect_b32 s37, s38, s37\ns_cselect_b32 s38, -4, 4\ns_cselect_b32 s39, -16, 16')
        k(f's_lshl_b32 s48, s{sTb}, 7\ns_add_u32 s49, s48, {WS_RS}\ns_add_u32 s48, s48, {WS_M}\ns_lshl_b32 s50, s{sCb}, 7')
        Q=PRE
        V+= [f'v_mul_i32_i24 v{Q}, s38, v{VG_}', f'v_add_u32 v{Q}, s37, v{Q}', f'v_lshlrev_b32 v{Q+1}, 4, v{VN_}']
        def addr(dst,q):
            return [f'v_lshrrev_b32 v{Q+2}, 5, v{q}', f'v_lshl_add_u32 v{dst}, v{Q+2}, 11, v{Q+1}', f'v_bfe_u32 v{Q+2}, v{q}, 2, 2', f'v_lshl_add_u32 v{dst}, v{Q+2}, 8, v{dst}',
                    f'v_bfe_u32 v{Q+2}, v{q}, 4, 1', f'v_lshl_add_u32 v{dst}, v{Q+2}, 3, v{dst}']
        for j in range(4):
            V+=addr(Q+4,Q)
            for tt in range(2):
                V.append(('vm',lambda j=j,tt=tt: k.vmem(f'buffer_load_dwordx2 {v(HX+(j*2+tt)*2,2)}, v{Q+4}, s[{sA}:{sA+3}], s36 offen offset:{1024*tt}','hx')))
            V+= [f'v_add_u32 v{Q+3}, 4, v{Q}', f'v_cmp_eq_u32 vcc, 0x400, v{Q+3}', f'v_mov_b32 v{Q+5}, 0x200', f'v_cndmask_b32 v{Q+3}, v{Q+3}, v{Q+5}, vcc']
            V+=addr(Q+4,Q+3)
            for tt in range(2):
                V.append(('vm',lambda j=j,tt=tt: k.vmem(f'buffer_load_dword v{HX+16+j*2+tt}, v{Q+4}, s[{sA}:{sA+3}], s36 offen offset:{1024*tt}','hx')))
            V.append(f'v_add_u32 v{Q}, s39, v{Q}')
        V.append(f'v_lshlrev_b32 v{Q+4}, 3, v{VG_}')
        for j in range(4):
            V.append(('vm',lambda j=j: k.vmem(f'buffer_load_dwordx2 {v(B2R+2*j,2)}, v{Q+4}, s[{sB}:{sB+3}], s50 offen offset:{32*j}','hx')))
        V.append(f'v_lshlrev_b32 v{Q+5}, 2, v{VN_}')
        for tt in range(2):
            V.append(('vm',lambda tt=tt: k.vmem(f'buffer_load_dword v{MR+tt}, v{Q+5}, s[{sA}:{sA+3}], s48 offen offset:{64*tt}','hx')))
            V.append(('vm',lambda tt=tt: k.vmem(f'buffer_load_dword v{MR+2+tt}, v{Q+5}, s[{sA}:{sA+3}], s49 offen offset:{64*tt}','hx')))
        k(f's_lshl_b32 s51, s{sWave}, 9\ns_add_u32 s51, s51, s{sRb}\ns_lshl_b32 s51, s51, 11\ns_add_u32 s51, s51, s50\ns_add_u32 s52, s51, {256*2048}')
        V+= [f'v_lshlrev_b32 v{VOA}, 15, v{VN_}', f'v_and_b32 v{Q+2}, 1, v{VG_}', f'v_lshl_add_u32 v{VOA}, v{Q+2}, 5, v{VOA}', f'v_lshrrev_b32 v{Q+2}, 1, v{VG_}', f'v_lshl_add_u32 v{VOA}, v{Q+2}, 4, v{VOA}']
        f1=4*FPS+1
        for i,x in enumerate(V): at(f1+i, x if isinstance(x,tuple) else ('valu',x))
        f2=f1+len(V)+10*FPS
        V=[('wait','hx')]
        V.append(('blk','hfix'))
        for j in range(4):
            for tt in range(2):
                h=HX+(j*2+tt)*2; p=PRE+(j*2+tt)*4
                V+= [f'v_lshlrev_b32 v{p}, 16, v{h}', f'v_and_b32 v{p+1}, 0xffff0000, v{h}', f'v_lshlrev_b32 v{p+2}, 16, v{h+1}', f'v_and_b32 v{p+3}, 0xffff0000, v{h+1}']
        for j in range(4):
            b=B2R+2*j
            V+= [f'v_lshlrev_b32 v{T0}, 16, v{b}', f'v_and_b32 v{T0+1}, 0xffff0000, v{b}', f'v_lshlrev_b32 v{T0+2}, 16, v{b+1}', f'v_and_b32 v{T0+3}, 0xffff0000, v{b+1}']
            for tt in range(2):
                p=PRE+(j*2+tt)*4
                for hh in range(2):
                    V.append(f'v_pk_add_f32 {v(p+2*hh,2)}, {v(p+2*hh,2)}, {v(T0+2*hh,2)}')
                    V.append(f'v_pk_add_f32 {v(p+2*hh,2)}, {v(p+2*hh,2)}, {v(MR,2)} op_sel:[0,{tt}] op_sel_hi:[1,{tt}]')
        for i,x in enumerate(V): at(f2+i, x if isinstance(x,tuple) else ('valu',x))
        assert f2+len(V)<NFR
    setcur(0); setcur(1)
    k.wait(vm=[('W',0)]); k('s_barrier')
    stamp(k,1,cfg)
    for f in range(LAF): rd(f,0); rd(f,1)
    WE=cfg.get('wait_every',2)
    for f in range(NFR):
        st=f//FPS; u=(f%FPS)//NJ; j=f%NJ
        if j==0 and f>0:
            pf=f-1; pst=pf//FPS; pu=(pf%FPS)//NJ
            for t in range(2):
                if pst+NT<NSTG: pend.append(('tok',pst+NT,pu*2+t))
        tw=[]
        if j==0:
            for t in range(2): flush(('tok',st,u*2+t)); tw.append(('T',st,u*2+t))
        lw=[('R',ff) for ff in range(f,min(f+WE,NFR))] if f%WE==0 else []
        k.wait(vm=tw, lg=lw)
        pre=None; post=[]
        for ev in events.get(f,[]):
            if ev[0]=='vm': post.append(ev[1])
            elif ev[0]=='valu': post.append(lambda s_=ev[1]: k(s_))
            elif ev[0]=='wait': post.append(lambda t_=ev[1]: k.wait(vm=[t_]))
            elif ev[0]=='blk':
                def blk():
                    L=k.newlabel('hfix')
                    k(f's_cmp_lt_u32 s{sCb}, 8\ns_cbranch_scc1 {L}\ns_mov_b32 s53, 0x07060100\ns_mov_b32 s54, 0x07060100')
                    for jj in range(8):
                        h=HX+jj*2; s1=HX+16+jj
                        k(f'v_perm_b32 v{s1}, v{h+1}, v{s1}, s53\nv_perm_b32 v{h+1}, v{h}, v{h+1}, s53\nv_mov_b32 v{h}, v{s1}')
                    k.label(L)
                post.append(blk)
        for t in range(2):
            A=WF+(f%NB)*4; B=TK+(st%NT)*16+(u*2+t)*4
            D=ACC+(j*2+t)*4
            C='0' if (st==0 and u==0) else v(D,4)
            k(f'v_mfma_f32_16x16x32_bf16 {v(D,4)}, {v(A,4)}, {v(B,4)}, {C}')
            if t==0:
                if (f+LAF)%FPS==0 and st+1<NSTG and (f+LAF)//FPS==st+1:
                    flush(('dma',st+1,ND-1))
                    k.wait(vm=[('W',st+1)]); k('s_barrier')
                    for q in range(ND):
                        if st-1+NS<NSTG: pend.append(('dma',st-1+NS,q))
                if f%FPS==0 and st>0: setcur(st+1)
                if pend and (f%cfg.get('vm_every',2)==0 or len(pend)>cfg.get('vm_burst',7)):
                    pre=issue(pend.pop(0),False)
            rd(f+LAF,t)
        if pre: pre()
        for p in post: p()
        k.check_vm()
    stamp(k,2,cfg)
    if isK3:
        k.wait(vm=['bf'])
        for j in range(14): k(f'v_lshl_or_b32 v{BF+2*j}, v{BF+2*j}, 16, v{BF+2*j}')
        def aug(p):
            for j in (2*p,2*p+1):
                for t in range(2):
                    D=ACC+(j*2+t)*4
                    k(f'v_mfma_f32_16x16x16_bf16 {v(D,4)}, {v(BF+2*j,2)}, {v(AUGB[t],2)}, {v(D,4)}')
        def epi(p):
            for t in range(2):
                R=[ACC+((2*p)*2+t)*4+r for r in range(4)]+[ACC+((2*p+1)*2+t)*4+r for r in range(4)]
                d=WF+4*((2*p+t)%4); tm=WF+16+8*(t&1)
                for r in range(8): k(f'v_max_f32 v{tm+r}, 0, v{R[r]}')
                for r in range(0,8,2): k(f'v_pk_mul_f32 {v(R[r],2)}, {v(R[r],2)}, {v(tm+r,2)}')
                for r in range(4): k(f'v_cvt_pk_bf16_f32 v{d+r}, v{R[2*r]}, v{R[2*r+1]}')
                o=(2*p+t)*1024
                if o%4096==0: k(f's_mov_b32 s{sToff}, {o}')
                k.vmem(f'buffer_store_dwordx4 {v(d,4)}, v{VTO}, s[{sO}:{sO+3}], s{sToff} offen offset:{o%4096}')
        k('s_nop 1')
        aug(0); aug(1); k('s_nop 3')
        for p in range(7):
            if p+2<7: aug(p+2)
            epi(p)
    else:
        k('s_nop 7')
        for p in range(2):
            for tt in range(2):
                d=WF+4*(2*p+tt)
                for jj in range(2):
                    j=2*p+jj; a_=ACC+(j*2+tt)*4; pr=PRE+(j*2+tt)*4
                    for hh in range(2):
                        k(f'v_pk_fma_f32 {v(a_+2*hh,2)}, {v(a_+2*hh,2)}, {v(MR+2,2)}, {v(pr+2*hh,2)} op_sel:[0,{tt},0] op_sel_hi:[1,{tt},1]')
                    for hh in range(2): k(f'v_cvt_pk_bf16_f32 v{d+2*jj+hh}, v{a_+2*hh}, v{a_+2*hh+1}')
                k(f's_nop 1\nv_permlane16_swap_b32 v{d}, v{d+2}\nv_permlane16_swap_b32 v{d+1}, v{d+3}')
                k.vmem(f'buffer_store_dwordx4 {v(d,4)}, v{VOA}, s[{sO}:{sO+3}], s{51+tt} offen offset:{64*p}')
    stamp(k,3,cfg)
    stamp_end(k,cfg,28,sWave,4,(2<<18) if isK3 else (3<<18))
    k.label(f'{name}_end')
    k('s_endpgm')
    return (k, (NV+7)//8*8, 96, (NV+3)//4*4), NS*STGB
CFG3=dict(kind='k3',NS=5,NT=4,LAF=7,P0=2)
CFG4=dict(kind='k4',NS=8,NT=6,LAF=6,P0=3,vm_every=1)
```

```python
WS_V   = 0
WS_E   = 4<<20
WS_MX  = (4<<20)+8192
WS_M   = (4<<20)+16384
WS_RS  = (4<<20)+24576
WS_FL  = (4<<20)+32768
WS_ST  = (4<<20)+(1<<18)
WS_H1  = 6<<20
WS_HH  = 10<<20
WS_X   = 26<<20
WS_STAMP = 40<<20
WS_SIZE = 268435456
```

```python
import sys
from asmlib import *
import k1_gen, k2_gen, k34_gen
def build(path, stamps=False, over={}):
    c1=dict(stamps=stamps); c2=dict(stamps=stamps); c3=dict(k34_gen.CFG3,stamps=stamps); c4=dict(k34_gen.CFG4,stamps=stamps)
    for kk,vv in over.items():
        w,key=kk.split('.'); {'1':c1,'2':c2,'3':c3,'4':c4}[w][key]=vv
    ks=[k1_gen.gen_k1('k1_kernel',c1),k2_gen.gen_k2('k2_kernel',c2),k34_gen.gen_gemm('k3_kernel',c3),k34_gen.gen_gemm('k4_kernel',c4)]
    hdr=[f'; @launch kernel=k{i+1}_kernel grid=(256,1,1) block=(256,1,1) lds={l}' for i,(kk,l) in enumerate(ks)]
    open(path,'w').write(assemble_file(hdr,[kk for kk,l in ks]))
if __name__=='__main__':
    over={}
    for a in sys.argv[3:]:
        kk,vv=a.split('='); over[kk]=int(vv)
    build(sys.argv[1], sys.argv[2]=='1', over)
```

```python
class K:
    def __init__(self, name):
        self.name = name; self.L = []; self.vm = []; self.lg = []
        self.nlabel = 0
    def __call__(self, s):
        for line in s.split('\n'):
            line = line.strip()
            if line: self.L.append('  ' + line)
    def label(self, n): self.L.append(n + ':')
    def newlabel(self, p='L'):
        self.nlabel += 1; return f'{self.name}_{p}{self.nlabel}'
    def c(self, s): self.L.append('  ; ' + s)
    def vmem(self, s, tag=None):
        self(s); self.vm.append(tag)
    def lds(self, s, tag=None):
        self(s); self.lg.append(tag)
    def _cnt(self, q, tags):
        last = -1
        for i, t in enumerate(q):
            if t in tags: last = i
        if last < 0: return None
        return len(q) - 1 - last
    def wait(self, vm=(), lg=(), force=False):
        parts = []
        n = self._cnt(self.vm, set(vm)) if vm else None
        if n is not None:
            assert n <= 63, ('vmcnt overflow', n)
            parts.append(f'vmcnt({n})'); self.vm = self.vm[len(self.vm) - n:] if n else []
        m = self._cnt(self.lg, set(lg)) if lg else None
        if m is not None:
            if m > 15: m = 15
            parts.append(f'lgkmcnt({m})'); self.lg = self.lg[len(self.lg) - m:] if m else []
        if parts: self('s_waitcnt ' + ' '.join(parts))
    def wait_all(self, vm=True, lg=True):
        p = []
        if vm: p.append('vmcnt(0)'); self.vm = []
        if lg: p.append('lgkmcnt(0)'); self.lg = []
        self('s_waitcnt ' + ' '.join(p))
    def room(self, n):
        if len(self.vm) + n > 63:
            keep = 63 - n
            self(f's_waitcnt vmcnt({keep})'); self.vm = self.vm[len(self.vm) - keep:]
    def check_vm(self):
        assert len(self.vm) <= 63, len(self.vm)
    def text(self, vgpr, sgpr, accum):
        hdr = f'.globl {self.name}\n.p2align 8\n.type {self.name},@function\n{self.name}:\n'
        kd = (f'.amdhsa_kernel {self.name}\n  .amdhsa_next_free_vgpr {vgpr}\n  .amdhsa_next_free_sgpr {sgpr}\n'
              f'  .amdhsa_accum_offset {accum}\n  .amdhsa_group_segment_fixed_size 0\n  .amdhsa_kernarg_size 104\n'
              '  .amdhsa_user_sgpr_count 2\n  .amdhsa_user_sgpr_kernarg_segment_ptr 1\n  .amdhsa_system_sgpr_workgroup_id_x 1\n'
              '  .amdhsa_float_denorm_mode_32 3\n'
              '.end_amdhsa_kernel\n')
        return hdr + '\n'.join(self.L) + '\n', kd
def v(r, n=1): return f'v{r}' if n == 1 else f'v[{r}:{r+n-1}]'
def a(r, n=1): return f'a{r}' if n == 1 else f'a[{r}:{r+n-1}]'
def s(r, n=1): return f's{r}' if n == 1 else f's[{r}:{r+n-1}]'
def reg(r, n=1):
    return a(r - 256, n) if r >= 256 else v(r, n)
def assemble_file(header_lines, kernels):
    out = list(header_lines)
    out.append('.amdgcn_target "amdgcn-amd-amdhsa--gfx950"\n.text')
    kds = []
    for k, vg, sg, ac in kernels:
        t, kd = k.text(vg, sg, ac); out.append(t); kds.append(kd)
    out.append('.section .rodata,"a"')
    for kd in kds: out.append('.p2align 6\n' + kd)
    return '\n'.join(out)
```

```python
from asmlib import *
from layout import *
import struct, sys
def f2u(x): return struct.unpack('<I', struct.pack('<f', x))[0]
def fl(x): return hex(f2u(x))
GRP=[[0,8,1,15],[2,14,3,13],[4,12,5,11],[6,10,7,9]]
def grp_word():
    w=0
    for p in range(4):
        for i in range(4): w|=GRP[p][i]<<(4*(p*4+i))
    return w
ZSTR=2056
STG3=28672
L_P1=3*STG3
L_X=L_P1; L_Z=L_X+32768; L_ST=L_Z+8*ZSTR; L_DUM=L_ST+512
L_V=5*STG3
LDS_TOTAL=L_V+16384
assert L_DUM+512<=L_V and LDS_TOTAL<=163840

def gen(name,cfg):
    k=K(name)
    ST=cfg.get('stamps')
    SB=cfg.get('sb',0)
    MAPB={8:1,9:2,10:3,'a':4,'b':5,'c':6,'d':7,'e':8,'f':9}
    def stamp(i):
        if not ST: return
        if cfg.get('p3st') is not None and i!=8: return
        if cfg.get('p4st') is not None: return
        if SB:
            if i not in MAPB: return
            i=MAPB[i]
        elif isinstance(i,str): return
        k(f's_memtime s[{60+2*i}:{61+2*i}]')
    SC=' sc1'
    TKF=' sc1' if cfg.get('toksc1') else ''
    SM1='' if cfg.get('small_plain') else ' sc1'
    pX,pW1,pB1,pW2,pB2,pOUT,pDBG,pWS=86,88,90,92,94,96,98,100
    sXS,sWS,sW,sT,sO,sB,sK=4,8,12,16,20,24,28
    sXC=32
    sWave,sRb,sHf,sC8,sTb,sCb=36,37,38,39,40,41
    sNon=42
    sFlg=44
    VL,VN,VG,VTO,VM,VRS=248,249,250,251,252,254
    VSM=242
    def srd(d,lo,nbytes,addreg=None,addlit=None):
        if addreg is not None: k(f's_add_u32 s{d}, s{lo}, s{addreg}\ns_addc_u32 s{d+1}, s{lo+1}, 0\ns_and_b32 s{d+1}, s{d+1}, 0xffff')
        elif addlit is not None: k(f's_add_u32 s{d}, s{lo}, {addlit}\ns_addc_u32 s{d+1}, s{lo+1}, 0\ns_and_b32 s{d+1}, s{d+1}, 0xffff')
        else: k(f's_mov_b32 s{d}, s{lo}\ns_and_b32 s{d+1}, s{lo+1}, 0xffff')
        k(f's_mov_b32 s{d+2}, {nbytes}\ns_mov_b32 s{d+3}, 0x20000')
    def signal(off_sreg, vf, keep=False, barrier=True):
        L=k.newlabel('sig')
        if barrier: k(f's_barrier\ns_cmp_lg_u32 s{sWave}, 0\ns_cbranch_scc1 {L}')
        k(f'v_mov_b32 v{vf}, s{sNon}\nv_mov_b32 v{vf+1}, s{sNon+1}')
        if not keep: k(f'v_mov_b32 v{vf+2}, 0\nv_mov_b32 v{vf+3}, 0')
        k(f's_mov_b64 exec, 15')
        t=f'buffer_store_dwordx4 {v(vf,4)}, v{VTO}, s[{sWS}:{sWS+3}], s{off_sreg} offen sc1'
        if barrier: k(t)
        else: k.vmem(t,'flag')
        k('s_mov_b64 exec, -1')
        if barrier: k.label(L)
    def poll_loads(vaddr, soff, vd, wide):
        if wide: return [f'buffer_load_dwordx4 {v(vd+4*i,4)}, v{vaddr+i}, s[{sWS}:{sWS+3}], s{soff} offen sc1' for i in range(2)]
        return [f'buffer_load_dwordx2 {v(vd,2)}, v{vaddr}, s[{sWS}:{sWS+3}], s{soff} offen sc1']
    def poll_issue(vaddr, soff, vd, wide):
        k.room(2)
        for t in poll_loads(vaddr,soff,vd,wide): k.vmem(t,'poll')
    def poll_check(vaddr, soff, vd, wide):
        L=k.newlabel('poll'); Lo=k.newlabel('pok')
        k.wait(vm=['poll'])
        k(f's_mov_b32 s47, {1<<18}')
        k.label(L)
        ld=poll_loads(vaddr,soff,vd,wide)
        k(f'v_cmp_ne_u64 vcc, s[{sNon}:{sNon+1}], {v(vd,2)}')
        if wide: k(f'v_cmp_ne_u64 s[48:49], s[{sNon}:{sNon+1}], {v(vd+4,2)}\ns_nop 1\ns_or_b64 s[44:45], vcc, s[48:49]\ns_cbranch_scc0 {Lo}\ns_sub_u32 s47, s47, 1\ns_cbranch_scc1 {Lo}')
        else: k(f's_sub_u32 s47, s47, 1\ns_cbranch_scc1 {Lo}\ns_cmp_eq_u64 vcc, 0\ns_cbranch_scc1 {Lo}')
        if cfg.get('slp',1): k(f's_sleep {cfg.get("slp",1)}')
        k(f's_mov_b64 exec, vcc\n{ld[0]}')
        if wide: k(f's_mov_b64 exec, s[48:49]\n{ld[1]}')
        k(f's_mov_b64 exec, -1\ns_waitcnt vmcnt(0)\ns_branch {L}')
        k.label(Lo)
    def poll0(vaddr, soff, vd, wide, extra=None):
        Ls=k.newlabel('pskip')
        k(f's_cmp_lg_u32 s{sWave}, 0\ns_cbranch_scc1 {Ls}')
        vm0=list(k.vm)
        poll_issue(vaddr,soff,vd,wide); poll_check(vaddr,soff,vd,wide)
        if extra: extra()
        k.vm=vm0
        k.label(Ls)
        k('s_barrier')
    if ST:
        k('s_memtime s[60:61]\ns_memrealtime s[82:83]')
        for i in range(62,82): k(f's_mov_b32 s{i}, 0')
    k(f's_cmp_ge_u32 s2, 256\ns_cbranch_scc1 {name}_end')
    k(f's_load_dwordx2 s[{pX}:{pX+1}], s[0:1], 0\ns_load_dwordx8 s[{pW1}:{pW1+7}], s[0:1], 48\ns_load_dwordx4 s[{pOUT}:{pOUT+3}], s[0:1], 80\ns_load_dwordx2 s[{pWS}:{pWS+1}], s[0:1], 96\ns_memrealtime s[{sNon}:{sNon+1}]')
    XG=8; XT=40; PM=72; B1=80; B2=96; B2N=112; TWC=128; TWS=144; ONES=160; T=164; A1=184; D1=8; A2=200; ZD=200; TT=232
    VGR=1; VXR=3; VZW=5; VZR=6; VST=7; VSR=236; VOUT=237; VF=238; VE=239; VMX=238; VJ=247; VNON=244; VOUT2=246
    k(f'v_lshrrev_b32 v{T}, 6, v0\nv_and_b32 v{VL}, 63, v0\nv_and_b32 v{VN}, 15, v0\nv_readfirstlane_b32 s{sWave}, v{T}\nv_bfe_u32 v{VG}, v0, 4, 2\nv_lshlrev_b32 v{VTO}, 4, v{VL}')
    w=grp_word()
    k(f's_bfe_u32 s{sRb}, s2, 0x20001\ns_lshl_b32 s{sRb}, s{sRb}, 2\ns_bfe_u32 s3, s2, 0x20003\ns_add_u32 s3, s3, s{sRb}\ns_lshl_b32 s3, s3, 2')
    k(f's_mov_b32 s48, {hex(w&0xffffffff)}\ns_mov_b32 s49, {hex(w>>32)}\ns_lshr_b64 s[48:49], s[48:49], s3\ns_and_b32 s{sRb}, s48, 15')
    k(f's_and_b32 s{sHf}, s2, 1\ns_lshr_b32 s{sC8}, s2, 5\ns_lshl_b32 s{sCb}, s{sHf}, 3\ns_add_u32 s{sCb}, s{sCb}, s{sC8}\ns_lshl_b32 s{sTb}, s{sRb}, 2\ns_add_u32 s{sTb}, s{sTb}, s{sWave}')
    sSlo,sWq=50,51
    sH1=46
    if cfg.get('xdup',0): k(f's_lshl_b32 s{sSlo}, s{sC8}, 4\ns_add_u32 s{sSlo}, s{sSlo}, s{sRb}\ns_mov_b32 s{sH1}, s{sHf}')
    else: k(f's_and_b32 s3, s2, 7\ns_lshl_b32 s3, s3, 4\ns_lshr_b32 s{sSlo}, s2, 4\ns_add_u32 s{sSlo}, s{sSlo}, s3\ns_bfe_u32 s{sH1}, s2, 0x10003')
    k(f's_lshl_b32 s{sWq}, s{sH1}, 2\ns_add_u32 s{sWq}, s{sWq}, s{sWave}')
    k(f'v_lshrrev_b32 v{T}, 3, v{VL}\nv_and_b32 v{T+1}, 6, v{T}\nv_and_b32 v{T+2}, 7, v{VL}\nv_xor_b32 v{T+1}, v{T+1}, v{T+2}\nv_lshlrev_b32 v{T}, 18, v{T}\nv_lshl_add_u32 v{T}, v{T+1}, 4, v{T}')
    k(f's_lshl_b32 s52, s{sSlo}, 11\ns_lshl_b32 s53, s{sWave}, 9\ns_add_u32 s52, s52, s53\ns_add_u32 s54, s52, {8<<18}\ns_lshl_b32 s55, s{sWave}, 13\ns_add_u32 s55, s55, {L_X}')
    def w1_offsets(VW,VWR,VWS,T0):
        k(f's_mul_i32 s3, s{sWave}, {7*64}\nv_add_u32 v{T0}, s3, v{VL}')
        for q in range(7):
            k(f'v_mul_u32_u24 v{T0+1}, 9363, v{T0}\nv_lshrrev_b32 v{T0+1}, 17, v{T0+1}')
            k(f'v_mul_u32_u24 v{T0+2}, 14, v{T0+1}\nv_sub_u32 v{T0+2}, v{T0}, v{T0+2}\nv_lshlrev_b32 v{T0+2}, 4, v{T0+2}')
            k(f'v_mul_u32_u24 v{T0+3}, 7168, v{T0+1}\nv_add_u32 v{VW+q}, v{T0+3}, v{T0+2}')
            if VWR is not None:
                k(f'v_sub_u32 v{T0+3}, {127*7168}, v{T0+3}\nv_add_u32 v{VWR+q}, v{T0+3}, v{T0+2}')
                if q==0:
                    k(f'v_add_u32 v{VWS}, {897*7168}, v{VWR}\nv_add_u32 v{T0+3}, {512*7168}, v{T0+2}\nv_cmp_eq_u32 vcc, 0, v{T0+1}\ns_nop 1\nv_cndmask_b32 v{VWS}, v{VWS}, v{T0+3}, vcc')
            if q<6: k(f'v_add_u32 v{T0}, 64, v{T0}')
    EW=cfg.get('early_w1',3)
    sWl=56
    k(f's_mul_i32 s{sWl}, s{sWave}, {7*1024}\ns_mul_i32 s57, s{sCb}, 448')
    k('s_waitcnt lgkmcnt(0)')
    stamp(1)
    srd(sXS,pX,2048*2048)
    for p in range(4):
        for rh in range(2):
            k(f's_add_u32 m0, s55, {p*2048+rh*1024-128*p}\ns_nop 0')
            k.vmem(f'buffer_load_dwordx4 v{T}, s[{sXS}:{sXS+3}], s{54 if rh else 52} offen offset:{128*p} lds',('x',p))
    srd(sWS,pWS,WS_HH)
    def pf_any(ptr,junk,first,nbytes,dst='a255'):
        per=nbytes//128//1024
        srd(sXC,ptr,first+nbytes)
        k(f's_lshl_b32 s3, s2, 2\ns_add_u32 s3, s3, s{sWave}\ns_mul_i32 s3, s3, {per*128}\ns_add_u32 s3, s3, {first}\nv_lshlrev_b32 v{junk}, 7, v{VL}\nv_cmp_gt_u32 vcc, {per}, v{VL}\nv_mov_b32 v{junk+1}, 0x40000000\ns_nop 0\nv_cndmask_b32 v{junk}, v{junk+1}, v{junk}, vcc')
        k.vmem(f'buffer_load_dword {dst}, v{junk}, s[{sXC}:{sXC+3}], s3 offen','pf')
    QW=256*7168
    pieces=[(pW1,0),(pW1,QW),(pW1,3*QW),(pW1,2*QW),(pW2,0),(pW2,2*QW),(pW2,QW),(pW2,3*QW)]
    plan=str(cfg.get('plan',11110000)).zfill(8)
    def pf_point(i,junk,dst='a255'):
        for _ in range(int(plan[i])):
            if pieces: p_,o_=pieces.pop(0); pf_any(p_,junk,o_,QW,dst)
    if cfg.get('pf0',0):
        for _ in range(cfg['pf0']): p_,o_=pieces.pop(0); pf_any(p_,242,o_,QW)
    srd(sB,pDBG,256)
    Ln=k.newlabel('non')
    k(f's_or_b32 s3, s2, s{sWave}\ns_cmp_lg_u32 s3, 0\ns_cbranch_scc1 {Ln}\ns_and_b32 s48, s{sNon}, -8\ns_or_b32 s48, s48, 8\nv_mov_b32 v{VNON}, s48\nv_mov_b32 v{VNON+1}, s{sNon+1}\nv_mov_b32 v{VJ}, 0\ns_mov_b64 exec, 1')
    k(f'buffer_store_dwordx2 {v(VNON,2)}, v{VJ}, s[{sB}:{sB+3}], 0 offen sc1\ns_mov_b64 exec, -1')
    k.label(Ln)
    k(f's_sub_u32 s3, {1024*7168}, s57')
    k(f's_add_u32 s{sW}, s{pW1}, s57\ns_addc_u32 s{sW+1}, s{pW1+1}, 0\ns_and_b32 s{sW+1}, s{sW+1}, 0xffff\ns_mov_b32 s{sW+2}, s3\ns_mov_b32 s{sW+3}, 0x20000')
    k(f'v_and_b32 v{T+1}, 6, v{VN}\nv_xor_b32 v{T+1}, v{T+1}, v{VG}\nv_lshlrev_b32 v{T+2}, 7, v{VN}\nv_add_u32 v{T+2}, s55, v{T+2}\nv_lshl_add_u32 v{VGR}, v{T+1}, 4, v{T+2}\nv_xor_b32 v{VGR+1}, 64, v{VGR}')
    k(f'v_bfe_u32 v{T+1}, v0, 2, 3\nv_lshlrev_b32 v{T+2}, 7, v{T+1}\nv_and_b32 v{T+1}, 6, v{T+1}\nv_lshlrev_b32 v{T+1}, 4, v{T+1}\nv_and_b32 v{T+3}, 32, v{VL}\nv_lshlrev_b32 v{T+3}, 1, v{T+3}\nv_xor_b32 v{T+1}, v{T+1}, v{T+3}')
    k(f'v_and_b32 v{T+3}, 3, v0\nv_lshlrev_b32 v{T+3}, 3, v{T+3}\nv_add3_u32 v{T+2}, v{T+2}, v{T+3}, s55\nv_add_u32 v{VXR}, v{T+2}, v{T+1}\nv_xor_b32 v{VXR+1}, 32, v{VXR}')
    k(f'v_and_b32 v{T+1}, 7, v0\nv_mul_u32_u24 v{VZW}, {ZSTR}, v{T+1}\nv_and_b32 v{T+2}, 8, v0\nv_lshlrev_b32 v{T+2}, 3, v{T+2}\nv_lshl_add_u32 v{T+2}, v{VG}, 3, v{T+2}\ns_add_u32 s3, s53, {L_Z}\nv_add3_u32 v{VZW}, v{VZW}, v{T+2}, s3')
    k(f'v_lshrrev_b32 v{T+4}, 5, v{VL}\nv_lshlrev_b32 v{T+4}, 9, v{T+4}\nv_bfe_u32 v{T+5}, v0, 2, 2\nv_lshl_add_u32 v{T+4}, v{T+5}, 6, v{T+4}')
    k(f'v_and_b32 v{T+5}, 16, v0\nv_lshlrev_b32 v{T+5}, 1, v{T+5}\nv_add3_u32 v{T+4}, v{T+4}, v{T+5}, v{T+3}\ns_mul_i32 s3, s{sWave}, {2*ZSTR}\ns_add_u32 s3, s3, {L_Z}\nv_add_u32 v{VZR}, s3, v{T+4}')
    k(f'v_lshrrev_b32 v{T+4}, 2, v{VN}\nv_cmp_eq_u32 vcc, v{T+4}, v{VG}\ns_lshl_b32 s3, s{sWave}, 3\ns_add_u32 s3, s3, {L_ST}\nv_lshl_add_u32 v{T+5}, v{VN}, 5, s3')
    k(f'v_lshlrev_b32 v{T+6}, 3, v{VL}\nv_add_u32 v{T+6}, {L_DUM}, v{T+6}\nv_cndmask_b32 v{VST}, v{T+6}, v{T+5}, vcc')
    k(f'v_and_b32 v{T+4}, 1, v{VG}\nv_lshlrev_b32 v{T+4}, 2, v{T+4}\nv_xor_b32 v{T+5}, v{VN}, v{T+4}\nv_lshlrev_b32 v{T+6}, 5, v{T+5}\nv_add_u32 v{VSR}, {L_ST}, v{T+6}')
    k(f's_lshl_b32 s31, s{sH1}, 7\ns_add_u32 s31, s31, s{sSlo}\ns_lshl_b32 s31, s31, 7\ns_add_u32 s31, s31, {WS_R1}\nv_lshlrev_b32 v{VMX}, 2, v{T+5}\nv_cmp_gt_u32 vcc, 16, v0\nv_mov_b32 v{VE}, 0x40000000\ns_nop 0\nv_cndmask_b32 v{VMX}, v{VE}, v{VMX}, vcc')
    mA,mB,mC,mE=16,18,20,22
    k(f'v_and_b32 v{T+5}, 3, v0\nv_cmp_eq_u32 s[{mA}:{mA+1}], 1, v{T+5}\nv_cmp_eq_u32 s[{mB}:{mB+1}], 2, v{T+5}\nv_cmp_eq_u32 s[{mC}:{mC+1}], 3, v{T+5}')
    k(f's_mov_b32 s28, 0x10001\ns_mov_b32 s29, 0')
    k(f's_lshl_b32 s3, s{sH1}, 3\nv_add_u32 v{T+7}, s3, v{T+1}\nv_lshrrev_b32 v{T+5}, 1, v{T+7}\nv_cmp_eq_u32 vcc, 1, v{T+7}\nv_and_b32 v{T+6}, 1, v{T+7}\ns_nop 0\nv_cndmask_b32 v{T+5}, v{T+5}, 8, vcc\nv_cndmask_b32 v{T+6}, v{T+6}, 0, vcc')
    k(f'v_and_b32 v{VE}, 3, v0\nv_mul_u32_u24 v{VE}, {2*ZSTR}, v{VE}\nv_add_u32 v{VE}, {L_Z}, v{VE}')
    k(f'v_cvt_f32_u32 v{T+5}, v{T+5}\nv_cvt_f32_u32 v{T+6}, v{T+6}\nv_cvt_f32_u32 v{T+4}, v{T+4}\nv_mul_f32 v{T+5}, {fl(1/16)}, v{T+5}\nv_mul_f32 v{T+6}, {fl(0.25)}, v{T+6}')
    k(f'v_fmac_f32 v{T+6}, v{T+5}, v{T+4}')
    for i in range(8): k(f'v_fmamk_f32 v{PM+i}, v{T+5}, {fl((i&3)+8*(i>>2))}, v{T+6}')
    for i in range(8): k(f'v_cos_f32 v{PM+i}, v{PM+i}')
    k(f'v_lshrrev_b32 v{T+4}, 3, v{VN}\nv_lshrrev_b32 v{T+5}, 1, v{VG}\nv_cmp_eq_u32 vcc, v{T+4}, v{T+5}')
    for i in range(4): k(f'v_mov_b32 v{ONES+i}, 0x3f803f80')
    for i in range(8): k(f'v_cndmask_b32 v{PM+i}, 0, v{PM+i}, vcc')
    E1=T+7; H4=T+8
    k(f'v_and_b32 v{T+4}, 4, v0\nv_lshlrev_b32 v{T+4}, 2, v{T+4}\nv_and_b32 v{T+5}, 3, v0\nv_bfe_u32 v{T+6}, v0, 3, 2\nv_lshl_add_u32 v{T+5}, v{T+6}, 2, v{T+5}\nv_add_u32 v{T+4}, v{T+4}, v{T+5}')
    k(f'v_lshlrev_b32 v{T+9}, 31, v{T+4}\nv_lshrrev_b32 v{T+10}, 16, v{T+9}\nv_or_b32 v{T+9}, v{T+9}, v{T+10}')
    k(f'v_cvt_f32_u32 v{E1}, v{T+4}\nv_lshrrev_b32 v{H4}, 5, v{VL}\nv_cvt_f32_u32 v{H4}, v{H4}')
    k(f'v_mul_f32 v{T+4}, {fl(1/32)}, v{E1}\nv_mul_f32 v{T+5}, {fl(8.0)}, v{H4}\nv_mul_f32 v{T+5}, v{T+5}, v{T+4}')
    S=A2
    for i in range(8): k(f'v_fmamk_f32 v{S+i}, v{T+4}, {fl(i)}, v{T+5}')
    for i in range(8): k(f'v_sin_f32 v{S+8+i}, v{S+i}')
    for i in range(8): k(f'v_cos_f32 v{S+i}, v{S+i}')
    for i in range(4): k(f'v_cvt_pk_bf16_f32 v{B1+8+i}, -v{S+8+2*i}, -v{S+9+2*i}')
    for i in range(4): k(f'v_cvt_pk_bf16_f32 v{B1+i}, v{S+2*i}, v{S+1+2*i}')
    for i in range(4): k(f'v_xor_b32 v{B1+4+i}, v{B1+i}, v{T+9}\nv_xor_b32 v{B1+12+i}, v{B1+8+i}, v{T+9}')
    k(f'v_mul_f32 v{T+4}, {fl(1/1024)}, v{E1}\nv_mul_f32 v{T+5}, 4.0, v{H4}\nv_mul_f32 v{T+5}, v{T+5}, v{T+4}')
    for r in range(16): k(f'v_fmamk_f32 v{TWC+r}, v{T+4}, {fl((r&3)+8*(r>>2))}, v{T+5}')
    for r in range(16): k(f'v_sin_f32 v{TWS+r}, v{TWC+r}')
    for r in range(16): k(f'v_cos_f32 v{TWC+r}, v{TWC+r}')
    k(f'v_cvt_f32_u32 v{T+4}, v{VN}\nv_mul_f32 v{T+4}, {fl(1/32)}, v{T+4}\nv_mul_f32 v{T+5}, 4.0, v{H4}\nv_mul_f32 v{T+5}, v{T+5}, v{T+4}')
    k(f'v_and_b32 v{T+6}, 1, v{VG}\nv_cvt_f32_u32 v{T+6}, v{T+6}\nv_fmac_f32 v{T+5}, {fl(0.25)}, v{T+6}')
    k(f'v_lshlrev_b32 v{T+9}, 31, v{VN}\nv_lshrrev_b32 v{T+10}, 16, v{T+9}\nv_or_b32 v{T+9}, v{T+9}, v{T+10}')
    for i in range(8): k(f'v_fmamk_f32 v{S+i}, v{T+4}, {fl((i&3)+8*(i>>2))}, v{T+5}')
    for i in range(8): k(f'v_sin_f32 v{S+8+i}, v{S+i}')
    for i in range(8): k(f'v_cos_f32 v{S+i}, v{S+i}')
    for i in range(4): k(f'v_cvt_pk_bf16_f32 v{B2+8+i}, v{S+8+2*i}, v{S+9+2*i}')
    for i in range(4): k(f'v_cvt_pk_bf16_f32 v{B2+i}, v{S+2*i}, v{S+1+2*i}')
    for i in range(4): k(f'v_xor_b32 v{B2+4+i}, v{B2+i}, v{T+9}\nv_xor_b32 v{B2+12+i}, v{B2+8+i}, v{T+9}')
    for i in range(16): k(f'v_xor_b32 v{B2N+i}, 0x80000000, v{B2+i}')
    VB=cfg.get('vblk',1)
    if VB:
        k(f'v_lshlrev_b32 v{T+5}, 4, v{VG}\nv_lshl_add_u32 v{T+5}, v{VN}, 14, v{T+5}\ns_lshl_b32 s3, s{sSlo}, 6\nv_add_u32 v{VOUT}, s3, v{T+5}\nv_add_u32 v{VOUT2}, 0x2000, v{VOUT}')
    else:
        k(f'v_lshlrev_b32 v{T+5}, 4, v{VG}\nv_lshl_add_u32 v{T+5}, v{VN}, 6, v{T+5}\ns_lshl_b32 s3, s{sSlo}, 10\nv_add_u32 v{VOUT}, s3, v{T+5}\nv_add_u32 v{VOUT2}, 0x20000, v{VOUT}')
    k(f's_lshl_b32 s58, s{sWq}, 18\ns_sub_u32 s59, 16, s{sWq}\ns_cmp_eq_u32 s{sWq}, 0\ns_cselect_b32 s59, 8, s59\ns_lshl_b32 s59, s59, 18\nv_mov_b32 v{VJ}, 0')
    G=T; SM=T+4
    EWP=cfg.get('ewpos',0)
    if EWP==0 and EW:
        w1_offsets(A2,None,None,A2+8)
        for st in range(EW):
            k(f's_mov_b32 s3, {st*128*7168}')
            for q in range(7):
                k(f's_add_u32 m0, s{sWl}, {st*STG3+q*1024}\ns_nop 0')
                k.vmem(f'buffer_load_dwordx4 v{A2+q}, s[{sW}:{sW+3}], s3 offen lds',('W',st))
    for p in range(4):
        k.wait(vm=[('x',p)])
        for sub in range(2): k.lds(f'ds_read_b128 {v(XG+8*p+4*sub,4)}, v{VGR+sub} offset:{2048*p}',('g',2*p+sub))
    stamp(2)
    pf_point(0,TT)
    k.vmem(f'buffer_load_dwordx2 {v(VNON,2)}, v{VJ}, s[{sB}:{sB+3}], 0 offen sc1','non')
    for q in range(8):
        k.wait(lg=[('g',q)])
        k(f'v_mfma_f32_16x16x32_bf16 {v(G,4)}, {v(XG+4*q,4)}, {v(XG+4*q,4)}, {"0" if q==0 else v(G,4)}')
        k(f'v_mfma_f32_16x16x32_bf16 {v(SM,4)}, {v(ONES,4)}, {v(XG+4*q,4)}, {"0" if q==0 else v(SM,4)}')
    for t in range(4):
        k.lds(f'ds_read_b64_tr_b16 {v(XT+4*t,2)}, v{VXR+(t&1)} offset:{2048*(t>>1)}','xt')
        k.lds(f'ds_read_b64_tr_b16 {v(XT+4*t+2,2)}, v{VXR+(t&1)} offset:{2048*(t>>1)+1024}','xt')
    k(f'v_cndmask_b32 v{SM+1}, v{G}, v{G+1}, s[{mA}:{mA+1}]\nv_cndmask_b32 v{SM+1}, v{SM+1}, v{G+2}, s[{mB}:{mB+1}]\nv_cndmask_b32 v{SM+1}, v{SM+1}, v{G+3}, s[{mC}:{mC+1}]')
    k.lds(f'ds_write_b64 v{VST}, {v(SM,2)}','sw')
    for t in range(4,8):
        k.lds(f'ds_read_b64_tr_b16 {v(XT+4*t,2)}, v{VXR+(t&1)} offset:{2048*(t>>1)}','xt2')
        k.lds(f'ds_read_b64_tr_b16 {v(XT+4*t+2,2)}, v{VXR+(t&1)} offset:{2048*(t>>1)+1024}','xt2')
    pf_point(1,TT)
    k.wait(lg=['sw']); k('s_barrier')
    R=A1
    for q in range(2): k.lds(f'ds_read_b128 {v(R+4*q,4)}, v{VSR} offset:{16*q}','sr')
    k.wait(lg=['sr'])
    for a_,b_ in ((0,2),(4,6),(0,4)):
        k(f'v_pk_add_f32 {v(R+a_,2)}, {v(R+a_,2)}, {v(R+b_,2)}')
    k(f'v_mul_f32 v{R+3}, {fl(1/1024)}, v{R}\nv_mul_f32 v{R+2}, v{R+3}, v{R+3}\nv_mul_f32 v{R+1}, {fl(1/1024)}, v{R+1}\nv_sub_f32 v{R+1}, v{R+1}, v{R+2}')
    k(f'v_max_f32 v{R+1}, 0, v{R+1}\nv_add_f32 v{R+1}, {fl(1e-5)}, v{R+1}\nv_rsq_f32 v{R+1}, v{R+1}')
    M=R+4; CI=G
    k(f'v_mov_b32 v{CI}, 0\nv_mul_f32 v{R}, -v{R+3}, v{R+1}')
    k.vmem(f'buffer_store_dword v{R+3}, v{VMX}, s[{sWS}:{sWS+3}], s31 offen offset:64{SC}','st1')
    for i in range(8):
        ln=(i&3)+8*(i>>2)
        k(f'v_mul_f32_dpp v{M+i}, v{R+1}, v{PM+i} row_newbcast:{ln} row_mask:0xf bank_mask:0xf')
    for i in range(8):
        ln=(i&3)+8*(i>>2)
        k(f'v_fmac_f32_dpp v{CI}, v{R}, v{PM+i} row_newbcast:{ln} row_mask:0xf bank_mask:0xf')
    MH=SM; ML=T+8
    for i in range(4): k(f'v_cvt_pk_bf16_f32 v{MH+i}, v{M+2*i}, v{M+2*i+1}')
    k(f'v_mov_b32 v{CI+1}, v{CI}')
    for i in range(2):
        k(f'v_lshlrev_b32 v{R+12}, 16, v{MH+i}\nv_and_b32 v{R+13}, 0xffff0000, v{MH+i}\nv_pk_add_f32 {v(M+2*i,2)}, {v(M+2*i,2)}, {v(R+12,2)} neg_lo:[0,1] neg_hi:[0,1]')
    k(f'v_permlane16_swap_b32 v{CI}, v{CI+1}')
    for i in range(2,4):
        k(f'v_lshlrev_b32 v{R+12}, 16, v{MH+i}\nv_and_b32 v{R+13}, 0xffff0000, v{MH+i}\nv_pk_add_f32 {v(M+2*i,2)}, {v(M+2*i,2)}, {v(R+12,2)} neg_lo:[0,1] neg_hi:[0,1]')
        if i==2: k(f'v_add_f32 v{CI}, v{CI}, v{CI+1}\nv_mov_b32 v{CI+1}, v{CI}')
    k(f'v_permlane32_swap_b32 v{CI}, v{CI+1}')
    for i in range(4): k(f'v_cvt_pk_bf16_f32 v{ML+i}, v{M+2*i}, v{M+2*i+1}')
    k(f'v_add_f32 v{CI}, v{CI}, v{CI+1}\nv_mov_b32 v{CI+1}, v{CI}\nv_mov_b32 v{CI+2}, v{CI}\nv_mov_b32 v{CI+3}, v{CI}')
    k.wait(lg=['xt2']); k('s_nop 0')
    for t in range(8): k(f'v_mfma_f32_16x16x32_bf16 {v(ZD+4*t,4)}, {v(XT+4*t,4)}, {v(MH,4)}, {v(CI,4)}')
    for t in range(8): k(f'v_mfma_f32_16x16x32_bf16 {v(ZD+4*t,4)}, {v(XT+4*t,4)}, {v(ML,4)}, {v(ZD+4*t,4)}')
    k('s_nop 0')
    for t in range(8):
        k(f'v_cvt_pk_bf16_f32 v{ZD+4*t}, v{ZD+4*t}, v{ZD+4*t+1}\nv_cvt_pk_bf16_f32 v{ZD+4*t+1}, v{ZD+4*t+2}, v{ZD+4*t+3}')
        k.lds(f'ds_write_b64 v{VZW}, {v(ZD+4*t,2)} offset:{128*(t>>1)+32*(t&1)}','zw')
    k.wait_all(vm=False); k('s_barrier')
    for q in range(2):
        for ks in range(2):
            for hf in range(2):
                k.lds(f'ds_read_b64_tr_b16 {v(A1+8*q+4*ks+2*hf,2)}, v{VZR} offset:{q*ZSTR+(16*ks+4*hf)*64}',('a1',q,ks))
    pf_point(2,TT)
    EP=240
    k.lds(f'ds_read_u16 v{EP+2}, v{VE}','ez')
    k.lds(f'ds_read_u16 v{EP+3}, v{VE} offset:{ZSTR}','ez')
    UR,UI,VR,VI=D1,D1+16,D1+32,D1+48
    for q,(dr,di) in enumerate(((UR,UI),(VR,VI))):
        for ks in range(2):
            k.wait(lg=[('a1',q,ks)])
            k(f'v_mfma_f32_32x32x16_bf16 {v(dr,16)}, {v(A1+8*q+4*ks,4)}, {v(B1+4*ks,4)}, {"0" if ks==0 else v(dr,16)}')
            k(f'v_mfma_f32_32x32x16_bf16 {v(di,16)}, {v(A1+8*q+4*ks,4)}, {v(B1+8+4*ks,4)}, {"0" if ks==0 else v(di,16)}')
    k.wait(lg=['ez'])
    k(f's_xor_b32 s30, s{sH1}, 1\ns_mov_b32 s31_, 0'.replace('s31_','s29'))
    k(f'v_lshl_or_b32 v{TT}, v{EP+3}, 16, v{EP+2}\nv_xor_b32 v{TT+1}, 0x80000000, v{TT}\ns_mov_b32 s16, s30\ns_mov_b32 s17, 0\ns_nop 0')
    k(f'v_cndmask_b32 v{EP+2}, v{TT}, v{EP+2}, s[16:17]\nv_cndmask_b32 v{EP+3}, v{TT+1}, v{EP+3}, s[16:17]\ns_nop 4')
    k(f's_cmp_eq_u32 s{sWq}, 0\ns_cbranch_scc1 {name}_nocomb')
    for r in range(0,16,2):
        t0=TT+(r%4)
        k(f'v_pk_add_f32 {v(t0,2)}, {v(UR+r,2)}, {v(VI+r,2)}')
        k(f'v_pk_add_f32 {v(UR+r,2)}, {v(UR+r,2)}, {v(VI+r,2)} neg_lo:[0,1] neg_hi:[0,1]')
        k(f'v_pk_add_f32 {v(VI+r,2)}, {v(UI+r,2)}, {v(VR+r,2)} neg_lo:[0,1] neg_hi:[0,1]')
        k(f'v_pk_add_f32 {v(UI+r,2)}, {v(UI+r,2)}, {v(VR+r,2)}')
        k(f'v_pk_mov_b32 {v(VR+r,2)}, {v(t0,2)}, {v(t0,2)} op_sel:[0,1]')
    k.label(f'{name}_nocomb')
    for o,(dr,di) in enumerate(((UR,UI),(VR,VI))):
        for r in range(0,16,2):
            t0=T+(r%4)*2
            k(f'v_pk_mul_f32 {v(t0,2)}, {v(di+r,2)}, {v(TWS+r,2)}')
            k(f'v_pk_mul_f32 {v(t0+2,2)}, {v(dr+r,2)}, {v(TWS+r,2)}')
            k(f'v_pk_fma_f32 {v(dr+r,2)}, {v(dr+r,2)}, {v(TWC+r,2)}, {v(t0,2)}')
            k(f'v_pk_fma_f32 {v(di+r,2)}, {v(di+r,2)}, {v(TWC+r,2)}, {v(t0+2,2)} neg_lo:[0,0,1] neg_hi:[0,0,1]')
            k(f'v_cvt_pk_bf16_f32 v{A2+16*o+r//2}, v{dr+r}, v{dr+r+1}')
            k(f'v_cvt_pk_bf16_f32 v{A2+16*o+8+r//2}, v{di+r}, v{di+r+1}')
        k('s_nop 1')
        for (d,B) in ((di,B2N),(dr,B2)):
            first=True
            for part in range(2):
                for ks in range(2):
                    k(f'v_mfma_f32_32x32x16_bf16 {v(d,16)}, {v(A2+16*o+8*part+4*ks,4)}, {v(B+8*part+4*ks,4)}, {"0" if first else v(d,16)}')
                    first=False
    for o,(d,dn) in enumerate(((UR,UI),(VR,VI))):
        if o==0: pass
        k(f'v_cndmask_b32 v{d}, v{d}, v{dn}, s[28:29]')
        for r in range(8): k(f'v_cvt_pk_bf16_f32 v{d+r}, v{d+2*r}, v{d+2*r+1}')
        k('s_nop 1')
        for r in range(4): k(f'v_permlane16_swap_b32 v{d+r}, v{d+4+r}')
        for hf in range(2): k.vmem(f'buffer_store_dwordx4 {v(d+4*hf,4)}, v{VOUT2 if hf else VOUT}, s[{sWS}:{sWS+3}], s{58+o} offen{SC}','st1')
    stamp(3)
    pf_point(3,TT)
    CT=8; VFr=72; FM=104; FD=120; XD=136; XM=144; ACC2=160; MY=176; EF=184; MXV=216; T=220; VRD=1; VMA=3; VSA=5; VT0=6; VTM=244; VDV=7; L_E=L_P1
    k(f's_lshl_b32 s3, s{sWave}, 9\ns_add_u32 s52, s3, s{sRb}\nv_lshl_add_u32 v{VT0}, v{VN}, 4, s52')
    k(f'v_lshlrev_b32 v{T+2}, 3, v{VG}\ns_lshl_b32 s53, s{sCb}, 6\nv_add_u32 v{T+2}, s53, v{T+2}')
    k(f'v_lshl_add_u32 v{T+3}, v{VT0}, 11, v{T+2}\ns_mov_b32 s54, {256*2048}')
    k.wait(vm=['non'])
    Lq=k.newlabel('nspin'); Lr=k.newlabel('nok')
    k(f's_mov_b32 s47, {1<<18}')
    k.label(Lq)
    k(f'v_readfirstlane_b32 s{sNon}, v{VNON}\nv_readfirstlane_b32 s{sNon+1}, v{VNON+1}\ns_sub_u32 s47, s47, 1\ns_cbranch_scc1 {Lr}\ns_cmp_lg_u32 s{sNon}, 0\ns_cbranch_scc1 {Lr}')
    k(f's_sleep 1\nbuffer_load_dwordx2 {v(VNON,2)}, v{VJ}, s[{sB}:{sB+3}], 0 offen sc1\ns_waitcnt vmcnt(0)\ns_branch {Lq}')
    k.label(Lr)
    k(f's_cmp_eq_u32 s{sCb}, 0\ns_cselect_b32 s16, 0xffff, 0\ns_mov_b32 s17, 0\nv_mov_b32 v{T+8}, 0x40000000')
    for tt in range(2):
        k(f'v_sub_u32 v{VTM+tt}, {2048-256*tt}, v{VT0}\nv_and_b32 v{VTM+tt}, 2047, v{VTM+tt}')
        k(f'v_lshlrev_b32 v{T+6+tt}, 11, v{VTM+tt}\nv_sub_u32 v{T+4+tt}, v{T+6+tt}, v{T+2}\nv_add_u32 v{T+4+tt}, {2048-8-32}, v{T+4+tt}\nv_cndmask_b32 v{T+6+tt}, v{T+8}, v{T+6+tt}, s[16:17]')
    TF=T+12; BS=T+14
    k(f'v_cvt_f32_u32 v{TF}, v{VT0}\nv_cvt_f32_u32 v{T+16}, v{VG}\nv_mul_f32 v{TF}, {fl(1/2048)}, v{TF}\nv_add_f32 v{TF+1}, {fl(0.125)}, v{TF}\nv_mul_f32 v{T+16}, 4.0, v{T+16}')
    k(f'v_mul_f32 v{BS}, v{TF}, v{T+16}\nv_mul_f32 v{BS+1}, v{TF+1}, v{T+16}')
    def ctgen(u,tt):
        S=VFr+16*((u*2+tt)&1)
        for i in range(8): k(f'v_fmamk_f32 v{S+i}, v{TF+tt}, {fl(32*u+(i&3)+16*(i>>2))}, v{BS+tt}')
        for i in range(8): k(f'v_sin_f32 v{S+8+i}, v{S+i}')
        for i in range(8): k(f'v_cos_f32 v{S+i}, v{S+i}')
        for i in range(4): k(f'v_cvt_pk_bf16_f32 v{CT+((u+4)*2+tt)*4+i}, v{S+8+2*i}, v{S+9+2*i}')
        for i in range(4): k(f'v_cvt_pk_bf16_f32 v{CT+(u*2+tt)*4+i}, v{S+2*i}, v{S+1+2*i}')
    todo=[(u,tt) for u in range(4) for tt in range(2)]
    for _ in range(cfg.get('ctpre',5)): ctgen(*todo.pop(0))
    k.wait(vm=['st1'])
    signal(31,EP,keep=True)
    stamp(4)
    for tt in range(2):
        for j in range(2):
            k.vmem(f'buffer_load_dwordx2 {v(XD+(tt*2+j)*2,2)}, v{T+3}, s[{sXS}:{sXS+3}], {"s54" if tt else "0"} offen offset:{32*j}','x2')
    for tt in range(2):
        for j in range(2):
            k.vmem(f'buffer_load_dwordx3 {v(XM+(tt*2+j)*4,3)}, v{T+4+tt}, s[{sXS}:{sXS+3}], 0 offen offset:{32*(1-j)}','x2')
        k.vmem(f'buffer_load_dword v{XM+(tt*2)*4+3}, v{T+6+tt}, s[{sXS}:{sXS+3}], 0 offen offset:1024','x2')
    pf_point(4,EF+8)
    while todo: ctgen(*todo.pop(0))
    for tt in range(2):
        k(f'v_and_b32 v{T+8}, 15, v{VTM+tt}\nv_lshlrev_b32 v{T+8}, 2, v{T+8}\nv_lshrrev_b32 v{T+9}, 9, v{VTM+tt}\nv_add_u32 v{T+8}, v{T+8}, v{T+9}')
        k(f'v_bfe_u32 v{T+9}, v{VTM+tt}, 8, 1\nv_bfe_u32 v{T+10}, v{VTM+tt}, 4, 4\nv_lshl_add_u32 v{T+11}, v{VG}, 4, v{T+10}\nv_lshlrev_b32 v{T+11}, 4, v{T+11}')
        k(f'v_lshl_add_u32 v{T+11}, v{T+9}, 10, v{T+11}\nv_lshl_add_u32 v{VMA+tt}, v{T+8}, 16, v{T+11}')
        k(f'v_lshl_add_u32 v{T+10}, v{T+9}, 4, v{T+10}\nv_lshlrev_b32 v{T+10}, 2, v{T+10}\nv_lshl_add_u32 v{T+10}, v{VG}, 9, v{T+10}\nv_lshl_add_u32 v{VSM+tt}, v{T+8}, 12, v{T+10}')
    k(f'v_and_b32 v{T+2}, 31, v{VL}\nv_lshlrev_b32 v{T+2}, 2, v{T+2}\nv_lshrrev_b32 v{T+3}, 5, v{VL}\nv_lshl_add_u32 v{VSA}, v{T+3}, 11, v{T+2}')
    k(f's_lshl_b32 s20, s{sTb}, 16\ns_lshl_b32 s21, s{sCb}, 11\ns_add_u32 s21, s21, {WS_H1}\ns_add_u32 s20, s20, s21\ns_add_u32 s21, s21, {16*2048}')
    k(f's_lshl_b32 s22, s{sTb}, 12\ns_lshl_b32 s3, s{sCb}, 7\ns_add_u32 s22, s22, s3\ns_add_u32 s22, s22, {WS_ST}')
    k(f'v_lshrrev_b32 v{T+8}, 2, v{VL}\nv_lshlrev_b32 v{T+8}, 6, v{T+8}\nv_and_b32 v{T+9}, 3, v{VL}\nv_lshl_add_u32 v{T+8}, v{T+9}, 3, v{T+8}\nv_and_b32 v{T+9}, 16, v{VL}\nv_lshlrev_b32 v{T+9}, 1, v{T+9}\nv_add_u32 v{T+8}, {L_V}, v{T+8}')
    k(f'v_add_u32 v{VRD}, v{T+8}, v{T+9}\nv_sub_u32 v{VRD+1}, v{T+8}, v{T+9}\nv_add_u32 v{VRD+1}, 32, v{VRD+1}')
    k(f'v_lshrrev_b32 v{T}, 2, v{VL}\nv_and_b32 v{T+1}, 3, v{VL}\nv_and_b32 v{T+2}, 1, v{VG}\nv_lshlrev_b32 v{T+2}, 1, v{T+2}\nv_xor_b32 v{T+1}, v{T+1}, v{T+2}')
    k(f'v_lshlrev_b32 v{T}, {6 if VB else 10}, v{T}\nv_lshl_add_u32 v{VDV}, v{T+1}, 4, v{T}')
    if VB: k(f's_lshl_b32 s23, s{sRb}, 18\ns_lshl_b32 s3, s{sCb}, 14\ns_add_u32 s23, s23, s3\ns_lshl_b32 s3, s{sWave}, 12\ns_add_u32 s23, s23, s3\ns_add_u32 s28, s3, {L_V}')
    else: k(f's_lshl_b32 s23, s{sRb}, 18\ns_lshl_b32 s3, s{sCb}, 6\ns_add_u32 s23, s23, s3\ns_lshl_b32 s3, s{sWave}, 16\ns_add_u32 s23, s23, s3\ns_lshl_b32 s28, s{sWave}, 12\ns_add_u32 s28, s28, {L_V}')
    k(f's_sub_u32 s3, 16, s{sRb}\ns_min_u32 s3, s3, s{sRb}\ns_bfe_u32 s30, s3, 0x10002\ns_lshl_b32 s30, s30, 14\ns_add_u32 s30, s30, {WS_R1}\ns_and_b32 s3, s3, 3\ns_lshl_b32 s3, s3, 4\ns_add_u32 s29, s30, s3')
    k(f'v_lshlrev_b32 v{T+4}, 7, v{VL}\nv_add_u32 v{T+5}, 0x2000, v{T+4}')
    for i,src in enumerate((VT0,VTM,VTM+1)):
        k(f'v_and_b32 v{T+9+i}, 127, v{src}\nv_lshlrev_b32 v{T+9+i}, 7, v{T+9+i}\nv_lshrrev_b32 v{T+8}, 7, v{src}\nv_lshl_add_u32 v{T+9+i}, v{T+8}, 2, v{T+9+i}')
    k(f'v_and_b32 v{T+6}, 32, v{VL}\nv_lshlrev_b32 v{T+6}, 1, v{T+6}\nv_bfe_u32 v{T+7}, v{VL}, 2, 2\nv_lshl_add_u32 v{T+6}, v{T+7}, 4, v{T+6}\nv_bfe_u32 v{T+7}, v{VL}, 4, 1\nv_lshl_add_u32 v{T+6}, v{T+7}, 3, v{T+6}\nv_and_b32 v{T+7}, 3, v{VL}\nv_lshl_add_u32 v{T+6}, v{T+7}, 1, v{T+6}')
    k(f'v_add_u32 v{T+6}, {L_E}, v{T+6}\nv_lshlrev_b32 v{T+7}, 4, v{VG}\nv_add_u32 v{T+7}, {L_E}, v{T+7}')
    k(f's_cmp_ge_u32 s{sRb}, 8\ns_cselect_b64 s[18:19], -1, 0')
    k.wait(vm=['x2'])
    for tt in range(2):
        k(f'v_cndmask_b32 v{XM+tt*8+2}, v{XM+tt*8+2}, v{XM+tt*8+3}, s[16:17]')
    for tt in range(2):
        for j in range(2):
            m=XM+(tt*2+j)*4; f=FM+(tt*2+j)*4
            k(f'v_lshlrev_b32 v{f}, 16, v{m+2}\nv_and_b32 v{f+1}, 0xffff0000, v{m+1}\nv_lshlrev_b32 v{f+2}, 16, v{m+1}\nv_and_b32 v{f+3}, 0xffff0000, v{m}')
            m=XD+(tt*2+j)*2; f=FD+(tt*2+j)*4
            k(f'v_lshlrev_b32 v{f}, 16, v{m}\nv_and_b32 v{f+1}, 0xffff0000, v{m}\nv_lshlrev_b32 v{f+2}, 16, v{m+1}\nv_and_b32 v{f+3}, 0xffff0000, v{m+1}')
    if EW and EWP: w1_offsets(XD,None,None,XM)
    EW1=min(EW,cfg.get('ew1',3)) if EWP else 0
    def early_w(lo,hi):
        for st in range(lo,hi):
            k(f's_mov_b32 s58, {st*128*7168}')
            for q in range(7):
                k(f's_add_u32 m0, s{sWl}, {st*STG3+q*1024}\ns_nop 0')
                k.vmem(f'buffer_load_dwordx4 v{XD+q}, s[{sW}:{sW+3}], s58 offen lds',('W',st))
    Lw=k.newlabel('w1')
    k(f's_cmp_eq_u32 s{sWave}, 0\ns_cbranch_scc1 {Lw}')
    vm0=list(k.vm); early_w(0,EW1); k.vm=vm0
    k.label(Lw)
    PD=EF
    def e_stage():
        for i in range(2):
            k(f'v_cndmask_b32 v{PD+4*i+2}, v{PD+4*i+2}, v{PD+4*i+3}, s[18:19]')
            k(f'ds_write_b16 v{T+6}, v{PD+4*i+2} offset:{128*i}\nds_write_b16_d16_hi v{T+6}, v{PD+4*i+2} offset:{128*i+256}')
        k('s_waitcnt lgkmcnt(0)')
    poll0(T+4,29,PD,True,extra=e_stage)
    stamp(5)
    for q in range(4):
        if VB:
            if q==0: k(f's_mov_b32 m0, s28\ns_nop 0')
            k.vmem(f'buffer_load_dwordx4 v{VDV}, s[{sWS}:{sWS+3}], s23 offen offset:{q*1024}{SC} lds','v')
        else:
            k(f's_add_u32 m0, s28, {q*1024}\ns_add_u32 s3, s23, {q*16384}')
            k.vmem(f'buffer_load_dwordx4 v{VDV}, s[{sWS}:{sWS+3}], s3 offen{SC} lds','v')
    k.vmem(f'buffer_load_dword v{MXV}, v{T+9}, s[{sWS}:{sWS+3}], s30 offen offset:64{SC}','mx')
    k.vmem(f'buffer_load_dword v{MXV+2}, v{T+9}, s[{sWS}:{sWS+3}], s30 offen offset:72{SC}','mx')
    for tt in range(2): k.vmem(f'buffer_load_dword v{MXV+2*tt+1}, v{T+10+tt}, s[{sWS}:{sWS+3}], s30 offen offset:64{SC}','mx')
    for u in range(8): k.lds(f'ds_read_b128 {v(EF+4*u,4)}, v{T+7} offset:{64*u}',('er',u))
    for u in range(8):
        k.wait(lg=[('er',u)])
        for tt in range(2):
            d=MY+4*tt
            k(f'v_mfma_f32_16x16x32_bf16 {v(d,4)}, {v(EF+4*u,4)}, {v(CT+(u*2+tt)*4,4)}, {"0" if u==0 else v(d,4)}')
    Lw=k.newlabel('w0'); Lx=k.newlabel('w0e')
    k(f's_cmp_lg_u32 s{sWave}, 0\ns_cbranch_scc1 {Lw}')
    vm0=list(k.vm)
    early_w(0,EW1)
    k.wait(vm=['mx'])
    vm1=list(k.vm)
    k(f's_branch {Lx}'); k.label(Lw)
    k.vm=vm0; k.wait(vm=['mx'])
    k.label(Lx); k.vm=vm1
    k('s_barrier')
    pf_point(5,T)
    def rd2(u):
        for j in range(2):
            for q in range(2):
                k.lds(f'ds_read_b64_tr_b16 {v(VFr+((u&3)*2+j)*4+2*q,2)}, v{VRD+j} offset:{(32*u+16*q)*64}',('f',u))
    for u in range(3): rd2(u)
    for tt in range(2):
        k(f'v_pk_add_f32 {v(MXV+2*tt,2)}, {v(MXV+2*tt,2)}, {v(MY+4*tt,2)}')
    for tt in range(2):
        for (F0,which) in ((FM,1),(FD,0)):
            sel=f'op_sel:[0,{which}] op_sel_hi:[1,{which}] neg_lo:[0,1] neg_hi:[0,1]'
            for j in range(2):
                f=F0+(tt*2+j)*4
                for hh in range(2): k(f'v_pk_add_f32 {v(f+2*hh,2)}, {v(f+2*hh,2)}, {v(MXV+2*tt,2)} {sel}')
    for u in range(8):
        k.wait(lg=[('f',u)])
        for j in range(2):
            for tt in range(2):
                d=ACC2+(j*2+tt)*4
                k(f'v_mfma_f32_16x16x32_bf16 {v(d,4)}, {v(VFr+((u&3)*2+j)*4,4)}, {v(CT+(u*2+tt)*4,4)}, {"0" if u==0 else v(d,4)}')
        if u+3<8: rd2(u+3)
    HD=CT; HM=CT+8; Q=CT+48
    k(f'v_mov_b32 v{VM}, v{MXV}\nv_mov_b32 v{VM+1}, v{MXV+2}\ns_nop 5')
    for tt in range(2):
        for (F0,H,which) in ((FM,HM,1),(FD,HD,0)):
            if which==0: k(f'v_cndmask_b32 v{ACC2+tt*4}, v{ACC2+tt*4}, 0, s[16:17]')
            for j in range(2):
                y=ACC2+(j*2+tt)*4; f=F0+(tt*2+j)*4
                for hh in range(2): k(f'v_pk_add_f32 {v(f+2*hh,2)}, {v(f+2*hh,2)}, {v(y+2*hh,2)}')
                for hh in range(2): k(f'v_cvt_pk_bf16_f32 v{H+4*tt+2*j+hh}, v{f+2*hh}, v{f+2*hh+1}')
            if which: k.vmem(f'buffer_store_dwordx4 {v(HM+4*tt,4)}, v{VMA+tt}, s[{sWS}:{sWS+3}], s21 offen{SC}','st2')
            else: k.vmem(f'buffer_store_dwordx4 {v(HD+4*tt,4)}, v{VTO}, s[{sWS}:{sWS+3}], s20 offen offset:{1024*tt}{SC}','st2')
    for tt in range(2):
        for (F0,which) in ((FM,1),(FD,0)):
            q=Q+(which*2+tt)*2
            for j in range(2):
                f=F0+(tt*2+j)*4
                for hh in range(2):
                    if j==0 and hh==0: k(f'v_pk_mul_f32 {v(q,2)}, {v(f,2)}, {v(f,2)}')
                    else: k(f'v_pk_fma_f32 {v(q,2)}, {v(f+2*hh,2)}, {v(f+2*hh,2)}, {v(q,2)}')
    for i in range(4): k(f'v_add_f32 v{Q+2*i}, v{Q+2*i}, v{Q+2*i+1}')
    k(f's_nop 0\nv_permlane32_swap_b32 v{Q}, v{Q+4}\nv_permlane32_swap_b32 v{Q+2}, v{Q+6}\nv_add_f32 v{Q}, v{Q}, v{Q+4}\nv_add_f32 v{Q+2}, v{Q+2}, v{Q+6}\ns_nop 1')
    k(f'v_permlane16_swap_b32 v{Q}, v{Q+2}\nv_add_f32 v{Q}, v{Q}, v{Q+2}')
    k.vmem(f'buffer_store_dword v{Q}, v{VSA}, s[{sWS}:{sWS+3}], s22 offen{SC}','st2')
    stamp(6)
    NS=5; LAF=cfg.get('LAF3',7); NB=8; NSTG=16; ROWB=224; ND=7
    ACC=[0,56]; WF=112; OH=144; SQ=OH+40; AUGB=[200,202]; VW=204; VWR=211; VWS=218; VRD=219; VCUR=220; T0=222; BF=226
    VWo,VWg,VWk,VTK,VOA=240,241,244,245,246
    TK=256
    w1_offsets(VW,VWR,VWS,T0)
    k(f'v_lshrrev_b32 v{T0}, 2, v{VL}\nv_mul_u32_u24 v{T0+1}, {ROWB}, v{T0}\nv_and_b32 v{T0+2}, 3, v{VL}\nv_lshl_add_u32 v{VRD}, v{T0+2}, 3, v{T0+1}')
    k(f's_lshl_b32 s3, s{sTb}, 16\ns_add_u32 s3, s3, {WS_H1}')
    srd(sT,pWS,65536,addreg=3)
    k(f's_lshl_b32 s55, s{sRb}, 4\ns_add_u32 s55, s55, s{sCb}\ns_lshl_b32 s55, s55, 6\ns_add_u32 s54, s55, {WS_F3}\ns_add_u32 s55, s55, {WS_F2}')
    k.wait(vm=['st2'])
    signal(55,T0)
    sWoff,sToff=52,53
    state={'woff':None,'toff':None}
    def woff_for(S):
        s_=S&7; p_=(S>>3)*224
        return (s_*128*7168 if s_<4 else (1536-128*s_-127)*7168)+p_
    def dma(S,q):
        slot=S%NS; s_=S&7
        want=(S>>3)*224 if (s_==4 and q==0) else woff_for(S)
        if state['woff']!=want:
            k(f's_mov_b32 s{sWoff}, {want}'); state['woff']=want
        k(f's_add_u32 m0, s{sWl}, {slot*STG3+q*1024}')
        vo = VWS if (s_==4 and q==0) else (VWR+q if s_>=4 else VW+q)
        return lambda: k.vmem(f'buffer_load_dwordx4 v{vo}, s[{sW}:{sW+3}], s{sWoff} offen lds', ('W',S))
    def tok(sg,t):
        base=(sg//2)*4096
        if state['toff']!=base:
            k(f's_mov_b32 s{sToff}, {base}'); state['toff']=base
        k.vmem(f'buffer_load_dwordx4 {reg(TK+8*sg+4*t,4)}, v{VTO}, s[{sT}:{sT+3}], s{sToff} offen offset:{(sg%2)*2048+t*1024}{TKF}', ('T',sg,t))
    if EWP: EW=EW1
    for S in range(EW,NS-1):
        for q in range(ND):
            f_=dma(S,q); k('s_nop 0'); f_()
    k(f's_mul_i32 s3, s{sTb}, {224*1024}\ns_mul_i32 s48, s{sCb}, {14*1024}\ns_add_u32 s3, s3, s48\ns_add_u32 s3, s3, {WS_HH}')
    srd(sO,pWS,14*1024,addreg=3)
    srd(sB,pB1,3584*2)
    k(f's_lshl_b32 s58, s{sTb}, 12\ns_add_u32 s58, s58, {WS_ST}\ns_mov_b32 s46, {WS_ST}')
    k(f's_sub_u32 s3, 16, s{sRb}\ns_and_b32 s3, s3, 15\ns_lshl_b32 s3, s3, 10\ns_lshl_b32 s48, s{sRb}, 10\nv_mov_b32 v{T0}, s3\nv_mov_b32 v{T0+1}, s48\nv_and_b32 v{T0+2}, 1, v{VG}\nv_cmp_eq_u32 vcc, 0, v{T0+2}\ns_mov_b32 s59, {WS_F2}\ns_nop 0\nv_cndmask_b32 v{T0}, v{T0}, v{T0+1}, vcc\nv_lshl_add_u32 v{T0}, v{VN}, 6, v{T0}')
    k(f'v_lshrrev_b32 v{T0+1}, 3, v{VL}\nv_and_b32 v{T0+2}, 7, v{VL}\nv_and_b32 v{T0+3}, 6, v{T0+1}\nv_xor_b32 v{T0+2}, v{T0+2}, v{T0+3}\nv_lshlrev_b32 v{T0+2}, 4, v{T0+2}\nv_lshl_add_u32 v{T0+1}, v{T0+1}, 11, v{T0+2}')
    k(f's_lshl_b32 s48, s{sWave}, 14\nv_add_u32 v{VWg}, s48, v{T0+1}\ns_mul_i32 s3, s{sC8}, {224*2048}\nv_add_u32 v{VWo}, s3, v{VWg}\nv_mov_b32 v{VWk}, v{VWg}\nv_mov_b32 v{VTK}, v{VTO}')
    pf_point(6,SQ+4)
    poll0(T0,59,SQ,False)
    stamp(7)
    P0=cfg.get('P0',4)
    for sg in range(P0):
        for t in range(2): tok(sg,t)
    pend=[('tok',sg,t) for sg in range(P0,32) for t in range(2)]
    FPS=28; NFR=FPS*NSTG
    def rd(f,q):
        if f>=NFR: return
        S=f//FPS; u=(f%FPS)//7; j=f%7
        k.lds(f'ds_read_b64_tr_b16 {v(WF+(f%NB)*4+2*q,2)}, v{VCUR+(S&1)} offset:{(32*u+16*q)*ROWB+j*32}', ('R',f))
    def setcur(S):
        if S<NSTG: k(f'v_add_u32 v{VCUR+(S&1)}, {(S%NS)*STG3}, v{VRD}')
    events={}
    def at(f,item): events.setdefault(f,[]).append(item)
    def run_events(f,post):
        for ev in events.get(f,[]):
            if ev[0]=='vm': post.append(ev[1])
            elif ev[0]=='valu': post.append(lambda s_=ev[1]: k(s_))
            elif ev[0]=='wait': post.append(lambda t_=ev[1]: k.wait(vm=[t_]))
    k(f'v_lshlrev_b32 v{T0}, 2, v{VN}\nv_lshl_add_u32 v{T0}, v{VG}, 9, v{T0}')
    for tt in range(2):
        for i in range(4):
            k.vmem(f'buffer_load_dword v{SQ+8*tt+i}, v{T0}, s[{sWS}:{sWS+3}], s58 offen offset:{128*i+64*tt}{SC}','sq')
            k.vmem(f'buffer_load_dword v{SQ+8*tt+4+i}, v{VSM+tt}, s[{sWS}:{sWS+3}], s46 offen offset:{2048+128*i}{SC}','sq')
    f0=0
    V=[('wait','sq')]
    for tt in range(2):
        b=SQ+8*tt
        for i in (1,2,3,4,5,6,7): V.append(f'v_add_f32 v{b}, v{b}, v{b+i}')
    a_=SQ; b_=SQ+8; P_=AUGB[0]
    V+= [f'v_permlane32_swap_b32 v{a_}, v{b_}', f'v_add_f32 v{a_}, v{a_}, v{b_}', f'v_mov_b32 v{b_}, v{a_}', f'v_permlane16_swap_b32 v{a_}, v{b_}', f'v_add_f32 v{a_}, v{a_}, v{b_}',
         f'v_mov_b32 v{b_}, {fl(1e-5)}', f'v_fmac_f32 v{b_}, {fl(1/1024)}, v{a_}', f'v_sqrt_f32 v{a_}, v{b_}', f'v_rcp_f32 v{VRS}, v{b_}',
         f'v_cvt_pk_bf16_f32 v{a_+1}, v{a_}, v{a_}', f'v_and_b32 v{a_+1}, 0xffff0000, v{a_+1}', f'v_sub_f32 v{a_+1}, v{a_}, v{a_+1}', f'v_cvt_pk_bf16_f32 v{P_}, v{a_}, v{a_+1}',
         f'v_mov_b32 v{a_+4}, v{P_}', f'v_mov_b32 v{P_+1}, 0', f'v_mov_b32 v{P_+2}, 0', f'v_mov_b32 v{P_+3}, 0', f'v_permlane32_swap_b32 v{a_+4}, v{P_+2}',
         f'v_mov_b32 v{VRS+1}, v{VRS}', f'v_lshlrev_b32 v{T0+1}, 1, v{VL}', f'v_permlane32_swap_b32 v{VRS}, v{VRS+1}',
         f'v_cmp_gt_u32 vcc, 16, v{VL}', f'v_mov_b32 v{T0}, 0x40000000', f'v_cndmask_b32 v{T0+1}, v{T0}, v{T0+1}, vcc']
    for j in range(7): V.append(f'v_mov_b32 v{BF+2*j+1}, 0')
    f1=cfg.get('sq_use',3)*FPS
    for i,x in enumerate(V): at(f1+i, x if isinstance(x,tuple) else ('valu',x))
    assert f1+len(V)<7*FPS
    for p_ in range(2):
        for j in range(7):
            at((8*p_+7)*FPS+2*j,('vm',lambda j=j,p_=p_: k.vmem(f'buffer_load_ushort v{BF+2*j}, v{T0+1}, s[{sB}:{sB+3}], s57 offen offset:{32*j+224*p_}','bf')))
    def pf_one():
        if pieces: p_,o_=pieces.pop(0); pf_any(p_,T0+2,o_,QW,f'v{T0+3}')
    for i_ in range(8): at((cfg.get('pf3',7)+i_)*FPS+cfg.get('pf3o',10),('vm',pf_one))
    def epilogue3(p_):
        A=ACC[p_]; tm=ACC[1-p_] if p_==0 else ACC[0]
        k.wait(vm=['bf'])
        for j in range(7): k(f'v_lshl_or_b32 v{BF+2*j}, v{BF+2*j}, 16, v{BF+2*j}')
        def aug(j):
            for t in range(2):
                D=A+(j*2+t)*4
                k(f'v_mfma_f32_16x16x16_bf16 {v(D,4)}, {v(BF+2*j,2)}, {v(AUGB[t],2)}, {v(D,4)}')
        k('s_nop 0')
        for j in range(4): aug(j)
        k('s_nop 1')
        for j in range(7):
            if j+4<7: aug(j+4)
            J=7*p_+j; e=J>>1
            for t in range(2):
                R=A+(j*2+t)*4; d=OH+8*e+4*t+2*(J&1); x=tm+4*((2*j+t)&3)
                for r in range(4): k(f'v_max_f32 v{x+r}, 0, v{R+r}')
                for r in range(0,4,2): k(f'v_pk_mul_f32 {v(R+r,2)}, {v(R+r,2)}, {v(x+r,2)}')
                for r in range(2): k(f'v_cvt_pk_bf16_f32 v{d+r}, v{R+2*r}, v{R+2*r+1}')
                if J&1:
                    o=(2*e+t)*1024
                    if state['toff']!=o//4096*4096: k(f's_mov_b32 s{sToff}, {o//4096*4096}'); state['toff']=o//4096*4096
                    k.room(1)
                    k.vmem(f'buffer_store_dwordx4 {v(OH+8*e+4*t,4)}, v{VTO}, s[{sO}:{sO+3}], s{sToff} offen offset:{o%4096} sc1',('st3',p_))
    NS4=32; ROT=7; STG4=4096; NTS=32; C=32*2048
    DL=cfg.get('DL',24)
    U=[]
    for e in range(28): U+= [('G',e),('K',e)]
    for tau in range(28,56+DL):
        if tau<56: U.append(('G',tau))
        if tau>=28+DL: U.append(('K',tau-DL))
    NU=len(U); uidx={u_:i for i,u_ in enumerate(U)}
    def estep(e):
        if e<28: return (e-7)//3, 7*((e-7)//3)+(e-7)%3
        return (e-28)//4, 7*((e-28)//4)+3+(e-28)%4
    def bias_fix(e,vr,unit):
        i,_=estep(e)
        first = (e<28 and (e-7)%3==0) or (e>=28 and (e-28)%4==0)
        if e==28: k(f's_cmp_lt_u32 s{sC8}, 7\ns_cselect_b32 s3, {7*unit}, 0\nv_subrev_u32 v{vr}, s3, v{vr}')
        if first: k(f's_cmp_eq_u32 s{sC8}, {i}\ns_cselect_b32 s3, {7*unit}, 0\nv_add_u32 v{vr}, s3, v{vr}')
    sG=sW; sGoff=50; sWl4=49; sT4off=51
    st4={'T':None}
    def dma4(n,_q=0):
        part,e=U[n]; sr=sG if part=='G' else sK
        if e<7: vo=VWo; lit=e*C
        else:
            vo=VWg if part=='G' else VWk; bias_fix(e,vo,C); lit=estep(e)[1]*C
        k(f's_mov_b32 s{sGoff}, {lit}\ns_add_u32 m0, s{sWl4}, {((n+ROT)%NS4)*STG4}')
        return lambda: k.vmem(f'buffer_load_dwordx4 v{vo}, s[{sr}:{sr+3}], s{sGoff} offen lds', ('W4',n))
    def tokreg(e,t): return (OH+8*e if e<7 else 256+8*((e-7)%NTS))+4*t
    def tok4(e,t):
        if t==0: bias_fix(e,VTK,2048)
        o=estep(e)[1]*2048; base=o//4096*4096
        if st4['T']!=base:
            k(f's_mov_b32 s{sT4off}, {base}'); st4['T']=base
        k.vmem(f'buffer_load_dwordx4 {reg(tokreg(e,t),4)}, v{VTK}, s[{sXS}:{sXS+3}], s{sT4off} offen offset:{o-base+t*1024}{TKF}', ('T4',e,t))
    def issue(p,now):
        if p[0]=='fn':
            if now: p[2](); return None
            return p[2]
        if p[0] in ('tok','tok4'):
            g=tok if p[0]=='tok' else tok4
            if now: g(p[1],p[2]); return None
            return lambda: g(p[1],p[2])
        f_=(dma if p[0]=='dma' else dma4)(p[1],p[2])
        if now: k('s_nop 0'); f_(); return None
        return f_
    def flush(item):
        while item in pend: k.room(1); issue(pend.pop(0),True)
    LAF4=cfg.get('LAF4',7)
    def prio(p):
        if p[0]=='fn': return p[1]
        if p[0]=='tok': return p[1]*7
        if p[0]=='dma': return p[1]*FPS-LAF-cfg.get('wlead',14)
        if p[0]=='tok4': return NFR+uidx[('G',p[1])]*4
        return NFR+p[1]*4-LAF4
    pace={'last':-99}
    def pick(now,gap,urg):
        if len(k.vm)>=cfg.get('vmmax',56): return None
        for i,p in enumerate(pend):
            d=prio(p)-now
            if d>((cfg.get('wwin',60) if now<cfg.get('wfree',6)*FPS else 999) if p[0]=='dma' else cfg.get('win',400)): continue
            if now-pace['last']>=gap or d<=urg:
                pace['last']=now; return issue(pend.pop(i),False)
            return None
        return None
    flags={'A':False,'B':False}
    VPA=247
    def sigA():
        k.wait(vm=[('st3',0)]); signal(54,T0+2-0 if False else 0)
    def polA_issue():
        k(f's_mul_i32 s3, s{sTb}, {56*4096}\ns_mul_i32 s48, s{sHf}, {28*4096}\ns_add_u32 s3, s3, s48\ns_add_u32 s3, s3, {WS_HH}')
        srd(sXS,pWS,28*4096,addreg=3)
        k(f's_lshl_b32 s3, s{sRb}, 10\ns_lshl_b32 s48, s{sHf}, 9\ns_add_u32 s55, s3, s48\ns_add_u32 s55, s55, {WS_F3}\nv_and_b32 v{VPA}, 7, v{VL}\nv_lshlrev_b32 v{VPA}, 6, v{VPA}')
        poll_issue(VPA,55,4,False)
    def polA_check():
        poll_check(VPA,55,4,False); flags['A']=True
    at(cfg.get('sigA',9*FPS+14),('vm',sigA))
    at(cfg.get('polAi',13)*FPS,('vm',polA_issue))
    at(cfg.get('polAc',14)*FPS,('vm',polA_check))
    t4_next=7; dma_next=0
    setcur(0); setcur(1)
    k.wait(vm=[('W',0)])
    if EW==0: k('s_barrier')
    for f in range(LAF): rd(f,0); rd(f,1)
    WE=cfg.get('WE3',2)
    for f in range(NFR):
        S=f//FPS; u=(f%FPS)//7; j=f%7; p_=S>>3; sg=4*(S&7)+u
        if f==1: stamp(8)
        if cfg.get('p3st') is not None and f%FPS==0 and 0<=S-cfg['p3st']<8: k(f's_memtime s[{64+2*(S-cfg["p3st"])}:{65+2*(S-cfg["p3st"])}]')
        if f==8*FPS:
            stamp(9); epilogue3(0); stamp(10)
        if j==0 and p_==1 and flags['A']:
            while t4_next<28 and t4_next-7<sg:
                pend+= [('tok4',t4_next,0),('tok4',t4_next,1)]; t4_next+=1
        pend.sort(key=prio)
        tw=[]
        if j==0 and p_==0:
            for t in range(2): flush(('tok',sg,t)); tw.append(('T',sg,t))
        lw=[('R',ff) for ff in range(f,min(f+WE,NFR))] if f%WE==0 else []
        k.wait(vm=tw, lg=lw)
        pre=None; post=[]
        run_events(f,post)
        for t in range(2):
            D=ACC[p_]+(j*2+t)*4
            C_='0' if sg==0 else v(D,4)
            k(f'v_mfma_f32_16x16x32_bf16 {v(D,4)}, {v(WF+(f%NB)*4,4)}, {reg(TK+8*sg+4*t,4)}, {C_}')
            if t==0:
                if (f+LAF)%FPS==0 and S+1<NSTG:
                    flush(('dma',S+1,ND-1))
                    k.wait(vm=[('W',S+1)]); k('s_barrier')
                    for q in range(ND):
                        if S-1+NS<NSTG: pend.append(('dma',S-1+NS,q))
                    if S==12:
                        flush(('dma',15,ND-1))
                        k(f's_mul_i32 s3, s{sHf}, {1792*2048}\ns_lshl_b32 s48, s{sC8}, 8\ns_add_u32 s3, s3, s48\ns_lshl_b32 s48, s{sHf}, 7\ns_add_u32 s59, s3, s48\ns_sub_u32 s58, s3, s48\ns_add_u32 s58, s58, 128')
                        for (d,o) in ((sG,58),(sK,59)):
                            k(f's_add_u32 s{d}, s{pW2}, s{o}\ns_addc_u32 s{d+1}, s{pW2+1}, 0\ns_and_b32 s{d+1}, s{d+1}, 0xffff\ns_sub_u32 s{d+2}, {1024*7168}, s{o}\ns_mov_b32 s{d+3}, 0x20000')
                        k(f's_lshl_b32 s{sWl4}, s{sWave}, 10')
                    if S>=12:
                        while dma_next<7*(S-11): pend.append(('dma4',dma_next,0)); dma_next+=1
                    pend.sort(key=prio)
                if f%FPS==0 and S>0: setcur(S+1)
                pre=pick(f,cfg.get('gap3',2),cfg.get('urg3',24))
            rd(f+LAF,t)
        if pre: pre()
        for p in post: p()
        k.check_vm()
    stamp('a')
    epilogue3(1)
    stamp('b')
    LAF=LAF4; BU=cfg.get('BU',4)
    PRE=0; AG=32; AK=64; VFL=96; VZ=100; XR=200; VRD=232; T0=104; HX=200; B2R=224; VS=108
    k(f'v_lshrrev_b32 v{T0}, 2, v{VL}\nv_lshlrev_b32 v{T0+1}, 7, v{T0}\nv_and_b32 v{T0+2}, 3, v{VL}\nv_lshl_add_u32 v{T0+1}, v{T0+2}, 3, v{T0+1}')
    k(f'v_and_b32 v{T0+2}, 6, v{T0}\nv_lshlrev_b32 v{T0+2}, 4, v{T0+2}')
    for j in range(4):
        k(f'v_xor_b32 v{T0+3}, {32*j}, v{T0+2}\nv_add_u32 v{VRD+j}, v{T0+1}, v{T0+3}\nv_add_u32 v{VRD+4+j}, 0x10000, v{VRD+j}')
    def rd4(f,q):
        if f>=NU*4: return
        n=f//4; j=f%4; slot=(n+ROT)%NS4
        k.lds(f'ds_read_b64_tr_b16 {v(WF+(f%NB)*4+2*q,2)}, v{VRD+4*(slot//16)+j} offset:{16*q*128+(slot%16)*STG4}', ('R4',f))
    flush(('dma4',BU-1,0))
    k.wait(vm=[('W4',n) for n in range(BU)]); k('s_barrier')
    for f in range(LAF): rd4(f,0); rd4(f,1)
    while dma_next<NS4: pend.append(('dma4',dma_next,0)); dma_next+=1
    events={}
    NF4=NU*4
    def sigB():
        k.wait(vm=[('st3',1)]); k(f's_add_u32 s54, s54, 16384'); signal(54,VFL)
    def polB_issue():
        k(f's_add_u32 s55, s55, 16384'); poll_issue(VPA,55,VFL,False)
    def polB_check():
        poll_check(VPA,55,VFL,False); flags['B']=True
    at(cfg.get('sigB',56),('vm',sigB))
    at(cfg.get('polBi',128),('vm',polB_issue))
    at(cfg.get('polBc',152),('vm',polB_check))
    def side():
        srd(sB,pB2,2048); srd(sO,pOUT,2048*2048); srd(sXC,pWS,8<<20,addlit=WS_X)
        k(f's_lshl_b32 s57, s{sC8}, 1\ns_add_u32 s57, s57, s{sHf}')
        k(f's_sub_u32 s3, 23, s57\ns_cmp_ge_u32 s57, 8\ns_cselect_b32 s3, s3, s57\ns_cselect_b32 s48, 3, 0\ns_lshl_b32 s3, s3, 12\ns_lshl_b32 s46, s{sTb}, 16\ns_add_u32 s46, s46, {WS_H1}\ns_add_u32 s56, s46, s3')
        k(f'v_xor_b32 v{VS}, s48, v{VG}\nv_lshlrev_b32 v{VS}, 8, v{VS}\nv_lshl_add_u32 v{VS}, v{VN}, 4, v{VS}')
        k(f'v_sub_u32 v{VS+1}, 0, v{VG}\nv_and_b32 v{VS+1}, 3, v{VS+1}\nv_lshlrev_b32 v{VS+1}, 8, v{VS+1}\nv_lshl_add_u32 v{VS+1}, v{VN}, 4, v{VS+1}\nv_cmp_eq_u32 vcc, 0, v{VG}')
        k(f'v_add_u32 v{VS+2}, 8, v{VS+1}\nv_add_u32 v{VS+3}, 2040, v{VS+1}\nv_cndmask_b32 v{VS+2}, v{VS+1}, v{VS+2}, vcc\nv_cndmask_b32 v{VS+1}, v{VS+1}, v{VS+3}, vcc')
        k(f's_cmp_eq_u32 s57, 8\ns_cselect_b32 s3, {hex((-16*2048)&0xffffffff)}, 0\nv_mov_b32 v{VS+3}, s3\nv_cndmask_b32 v{VS+3}, 0, v{VS+3}, vcc\nv_add_u32 v{VS+3}, v{VS+3}, v{VS+1}\nv_add_u32 v{VS+3}, {15*4096}, v{VS+3}\ns_sub_u32 s59, s56, {15*4096}')
        k(f's_mov_b32 s46, s56\ns_lshl_b32 s56, s57, 7\nv_lshlrev_b32 v{VZ+1}, 3, v{VG}')
        L_=[]
        for jj in range(4):
            for tt in range(2): L_.append(f'buffer_load_dwordx2 {v(HX+(jj*2+tt)*2,2)}, v{VS}, s[{sWS}:{sWS+3}], s46 offen offset:{(jj>>1)*2048+(jj&1)*8+1024*tt}')
        for jj in range(4):
            for tt in range(2):
                if jj==3: L_.append(f'buffer_load_dword v{HX+16+jj*2+tt}, v{VS+3}, s[{sWS}:{sWS+3}], s59 offen offset:{2048+8+1024*tt}')
                else: L_.append(f'buffer_load_dword v{HX+16+jj*2+tt}, v{VS+1+(1-(jj&1))}, s[{sWS}:{sWS+3}], s46 offen offset:{(jj>>1)*2048+(jj&1)*8+1024*tt}')
        for j in range(4): L_.append(f'buffer_load_dwordx2 {v(B2R+2*j,2)}, v{VZ+1}, s[{sB}:{sB+3}], s33_ offen offset:{32*j}'.replace('s33_','s45'))
        k('s_mov_b32 s45, s56')
        for i_,t_ in enumerate(L_): pend.append(('fn',NFR+g_end-100+i_,lambda t_=t_: k.vmem(t_,'hx')))
        k(f's_lshl_b32 s16, s{sWave}, 9\ns_add_u32 s16, s16, s{sRb}\ns_lshl_b32 s16, s16, 11\ns_add_u32 s16, s16, s56\ns_add_u32 s17, s16, {256*2048}')
        k(f'v_lshlrev_b32 v{VOA}, 15, v{VN}\nv_and_b32 v{VZ}, 1, v{VG}\nv_lshl_add_u32 v{VOA}, v{VZ}, 5, v{VOA}\nv_lshrrev_b32 v{VZ}, 1, v{VG}\nv_lshl_add_u32 v{VOA}, v{VZ}, 4, v{VOA}')
        k(f's_lshl_b32 s3, s2, 2\ns_add_u32 s3, s3, s{sWave}\ns_lshl_b32 s18, s3, 13\ns_xor_b32 s19, s18, {4<<13}\ns_lshl_b32 s52, s3, 6\ns_add_u32 s52, s52, {WS_FX}\ns_xor_b32 s58, s52, 256\nv_mov_b32 v{VZ}, 0')
    g_end=(uidx[('G',55)]+1)*4
    at(cfg.get('side_at',2),('vm',side))
    def hfix():
        assert not any(p[0]=='fn' for p in pend)
        k.wait(vm=['hx'])
        L=k.newlabel('hfix')
        k(f's_cmp_lt_u32 s57, 8\ns_cbranch_scc1 {L}\ns_mov_b32 s3, 0x07060100')
        for jj in range(8):
            h=HX+jj*2; s1=HX+16+jj
            k(f'v_perm_b32 v{s1}, v{h+1}, v{s1}, s3\nv_perm_b32 v{h+1}, v{h}, v{h+1}, s3\nv_mov_b32 v{h}, v{s1}')
        for jj in range(2):
            for x in range(4): k(f'v_swap_b32 v{HX+jj*4+x}, v{HX+(3-jj)*4+x}')
        k.label(L)
    V=[('vm',hfix)]
    for j in range(4):
        b=B2R+2*j
        V+= [f'v_lshlrev_b32 v{T0}, 16, v{b}', f'v_and_b32 v{T0+1}, 0xffff0000, v{b}', f'v_lshlrev_b32 v{T0+2}, 16, v{b+1}', f'v_and_b32 v{T0+3}, 0xffff0000, v{b+1}']
        for tt in range(2):
            h=HX+(j*2+tt)*2; p=PRE+(j*2+tt)*4
            V+= [f'v_lshlrev_b32 v{p}, 16, v{h}', f'v_and_b32 v{p+1}, 0xffff0000, v{h}', f'v_lshlrev_b32 v{p+2}, 16, v{h+1}', f'v_and_b32 v{p+3}, 0xffff0000, v{h+1}']
            for r in range(4): V.append(f'v_add_f32 v{p+r}, v{p+r}, v{T0+r}')
            for r in range(4): V.append(f'v_add_f32 v{p+r}, v{p+r}, v{VM+tt}')
    fs=g_end+cfg.get('pre_at',12); per=cfg.get('pre_per',2)
    for i,x in enumerate(V): at(fs+i//per, x if isinstance(x,tuple) else ('valu',x))
    assert fs+len(V)//per<g_end+cfg.get('xc',78)
    for i in range(8):
        def xs(i=i):
            if i%4==0: k(f's_add_u32 s56, s18, {i*1024}')
            k.vmem(f'buffer_store_dwordx4 {v(AG+4*i,4)}, v{VTO}, s[{sXC}:{sXC+3}], s56 offen offset:{(i%4)*1024} sc1','xs')
        at(g_end+3+i,('vm',xs))
    fA=g_end+cfg.get('xa',40); fB=g_end+cfg.get('xb',62); fC=g_end+cfg.get('xc',78)
    assert fC<NF4
    at(fA,('wait','xs'))
    at(fA,('vm',lambda: signal(52,VFL,barrier=False)))
    at(fB,('vm',lambda: poll_issue(VZ,58,VS,False)))
    def chk():
        poll_check(VZ,58,VS,False)
        k.room(8)
        for i in range(8):
            if i%4==0: k(f's_add_u32 s56, s19, {i*1024}')
            k.vmem(f'buffer_load_dwordx4 {v(XR+4*i,4)}, v{VTO}, s[{sXC}:{sXC+3}], s56 offen offset:{(i%4)*1024} sc1','xr')
    at(fC,('vm',chk))
    WE=cfg.get('WE4',3)
    kdone=6
    for f in range(NF4):
        n=f//4; j=f%4; part,e=U[n]
        if cfg.get('p4st') is not None:
            i_=(f-cfg['p4st'])//cfg.get('qs',16)
            if f>=cfg['p4st'] and (f-cfg['p4st'])%cfg.get('qs',16)==0 and i_<10: k(f's_memtime s[{62+2*i_}:{63+2*i_}]')
        else:
            if f==uidx[('G',7)]*4: stamp('c')
            if f==uidx[('G',28)]*4: stamp('d')
            if f==g_end: stamp('e')
        if j==0:
            if n>0 and U[n-1][0]=='K': kdone=U[n-1][1]
            while t4_next<56 and (t4_next<28 or flags['B']) and (t4_next-NTS<7 or t4_next-NTS<=kdone):
                pend+= [('tok4',t4_next,0),('tok4',t4_next,1)]; t4_next+=1
        pend.sort(key=prio)
        tw=[]
        if j==0 and part=='G' and e>=7:
            assert e<t4_next
            for t in range(2): flush(('tok4',e,t)); tw.append(('T4',e,t))
        lw=[('R4',ff) for ff in range(f,min(f+WE,NF4))] if f%WE==0 else []
        k.wait(vm=tw, lg=lw)
        pre=None; post=[]
        run_events(f,post)
        for t in range(2):
            D=(AG if part=='G' else AK)+(j*2+t)*4
            C_='0' if e==0 else v(D,4)
            k(f'v_mfma_f32_16x16x32_bf16 {v(D,4)}, {v(WF+(f%NB)*4,4)}, {reg(tokreg(e,t),4)}, {C_}')
            if t==0:
                nn=(f+LAF)//4
                if (f+LAF)%4==0 and nn<NU and nn%BU==0:
                    last=min(nn+BU,NU)-1
                    flush(('dma4',last,0))
                    k.wait(vm=[('W4',m) for m in range(nn,last+1)]); k('s_barrier')
                    while dma_next<NU and dma_next-NS4<=n-1:
                        pend.append(('dma4',dma_next,0)); dma_next+=1
                    pend.sort(key=prio)
                pre=pick(NFR+f,cfg.get('gap4',2),cfg.get('urg4',32))
            rd4(f+LAF,t)
        if pre: pre()
        for p in post: p()
        k.check_vm()
    stamp('f')
    k.wait(vm=['xr'])
    k('s_nop 5')
    for p in range(2):
        for tt in range(2):
            d=WF+4*(2*p+tt)
            for jj in range(2):
                j=2*p+jj; a_=AK+(j*2+tt)*4; pr=PRE+(j*2+tt)*4; x_=XR+(j*2+tt)*4
                for hh in range(2): k(f'v_pk_add_f32 {v(a_+2*hh,2)}, {v(a_+2*hh,2)}, {v(x_+2*hh,2)}')
                for hh in range(2):
                    k(f'v_pk_fma_f32 {v(a_+2*hh,2)}, {v(a_+2*hh,2)}, {v(VRS,2)}, {v(pr+2*hh,2)} op_sel:[0,{tt},0] op_sel_hi:[1,{tt},1]')
                for hh in range(2): k(f'v_cvt_pk_bf16_f32 v{d+2*jj+hh}, v{a_+2*hh}, v{a_+2*hh+1}')
            k(f's_nop 1\nv_permlane16_swap_b32 v{d}, v{d+2}\nv_permlane16_swap_b32 v{d+1}, v{d+3}')
            k.vmem(f'buffer_store_dwordx4 {v(d,4)}, v{VOA}, s[{sO}:{sO+3}], s{16+tt} offen offset:{64*p}')
    if ST:
        k('s_waitcnt vmcnt(0)\ns_memtime s[56:57]\ns_memrealtime s[84:85]\ns_waitcnt lgkmcnt(0)')
        k(f's_lshl_b32 s3, s2, 2\ns_add_u32 s3, s3, s{sWave}\ns_lshl_b32 s3, s3, 7\ns_add_u32 s3, s3, {WS_STAMP}\ns_add_u32 s50, s{pWS}, s3\ns_addc_u32 s51, s{pWS+1}, 0')
        for i in range(26): k(f'v_mov_b32 v{i}, s{60+i}')
        k(f'v_mov_b32 v26, s56\nv_mov_b32 v27, s57\nv_mov_b32 v28, 0\nv_mov_b32 v29, 0\nv_mov_b32 v30, 0\nv_mov_b32 v31, 0\nv_mov_b32 v32, 0\ns_mov_b64 exec, 1')
        for i in range(8): k(f'global_store_dwordx4 v32, v[{4*i}:{4*i+3}], s[50:51] offset:{16*i}')
    k.label(f'{name}_end')
    k('s_endpgm')
    return (k,512,102,256), LDS_TOTAL

NAME='sequential_preLN__spectral_fnet__dense_activation_squared_relu__prompt_kernel'
def build(path,stamps=False,over={},listform=False):
    cfg=dict(stamps=stamps); cfg.update(over)
    kk,l=gen(NAME,cfg)
    hdr=[f'; @launch {"kernel="+NAME+" " if listform else ""}grid=(256,1,1) block=(256,1,1) lds={l}']
    open(path,'w').write(assemble_file(hdr,[kk]))
if __name__=='__main__':
    over={}
    for a in sys.argv[3:]:
        kk,vv=a.split('='); over[kk]=int(vv)
    build(sys.argv[1], sys.argv[2]=='1', over, listform=True)
```

```python
from asmlib import *
from layout import *
import struct, sys
def f2u(x): return struct.unpack('<I', struct.pack('<f', x))[0]
def fl(x): return hex(f2u(x))
GRP=[[0,8,1,15],[2,14,3,13],[4,12,5,11],[6,10,7,9]]
def grp_word():
    w=0
    for p in range(4):
        for i in range(4): w|=GRP[p][i]<<(4*(p*4+i))
    return w
ZSTR=2056
STG3=28672
L_P1=3*STG3
L_X=L_P1; L_Z=L_X+32768; L_ST=L_Z+8*ZSTR; L_DUM=L_ST+512
L_V=5*STG3
LDS_TOTAL=L_V+16384
assert L_DUM+512<=L_V and LDS_TOTAL<=163840

def gen(name,cfg):
    k=K(name)
    ST=cfg.get('stamps')
    SB=cfg.get('sb',0)
    MAPB={8:1,9:2,10:3,'a':4,'b':5,'c':6,'d':7,'e':8,'f':9}
    def stamp(i):
        if not ST: return
        if cfg.get('p3st') is not None and i!=8: return
        if cfg.get('p4st') is not None: return
        if SB:
            if i not in MAPB: return
            i=MAPB[i]
        elif isinstance(i,str): return
        k(f's_memtime s[{60+2*i}:{61+2*i}]')
    SC=' sc1'
    TKF=' sc1' if cfg.get('toksc1') else ''
    SM1='' if cfg.get('small_plain') else ' sc1'
    pX,pW1,pB1,pW2,pB2,pOUT,pDBG,pWS=86,88,90,92,94,96,98,100
    sXS,sWS,sW,sT,sO,sB,sK=4,8,12,16,20,24,28
    sXC=32
    sWave,sRb,sHf,sC8,sTb,sCb=36,37,38,39,40,41
    sNon=42
    sFlg=44
    VL,VN,VG,VTO,VM,VRS=248,249,250,251,252,254
    VSM=242
    def srd(d,lo,nbytes,addreg=None,addlit=None):
        if addreg is not None: k(f's_add_u32 s{d}, s{lo}, s{addreg}\ns_addc_u32 s{d+1}, s{lo+1}, 0\ns_and_b32 s{d+1}, s{d+1}, 0xffff')
        elif addlit is not None: k(f's_add_u32 s{d}, s{lo}, {addlit}\ns_addc_u32 s{d+1}, s{lo+1}, 0\ns_and_b32 s{d+1}, s{d+1}, 0xffff')
        else: k(f's_mov_b32 s{d}, s{lo}\ns_and_b32 s{d+1}, s{lo+1}, 0xffff')
        k(f's_mov_b32 s{d+2}, {nbytes}\ns_mov_b32 s{d+3}, 0x20000')
    def signal(off_sreg, vf, keep=False, barrier=True):
        L=k.newlabel('sig')
        if barrier: k(f's_barrier\ns_cmp_lg_u32 s{sWave}, 0\ns_cbranch_scc1 {L}')
        k(f'v_mov_b32 v{vf}, s{sNon}\nv_mov_b32 v{vf+1}, s{sNon+1}')
        if not keep: k(f'v_mov_b32 v{vf+2}, 0\nv_mov_b32 v{vf+3}, 0')
        k(f's_mov_b64 exec, 15')
        t=f'buffer_store_dwordx4 {v(vf,4)}, v{VTO}, s[{sWS}:{sWS+3}], s{off_sreg} offen sc1'
        if barrier: k(t)
        else: k.vmem(t,'flag')
        k('s_mov_b64 exec, -1')
        if barrier: k.label(L)
    def poll_loads(vaddr, soff, vd, wide):
        if wide: return [f'buffer_load_dwordx4 {v(vd+4*i,4)}, v{vaddr+i}, s[{sWS}:{sWS+3}], s{soff} offen sc1' for i in range(2)]
        return [f'buffer_load_dwordx2 {v(vd,2)}, v{vaddr}, s[{sWS}:{sWS+3}], s{soff} offen sc1']
    def poll_issue(vaddr, soff, vd, wide):
        k.room(2)
        for t in poll_loads(vaddr,soff,vd,wide): k.vmem(t,'poll')
    def poll_check(vaddr, soff, vd, wide):
        L=k.newlabel('poll'); Lo=k.newlabel('pok')
        k.wait(vm=['poll'])
        k(f's_mov_b32 s47, {1<<18}')
        k.label(L)
        ld=poll_loads(vaddr,soff,vd,wide)
        k(f'v_cmp_ne_u64 vcc, s[{sNon}:{sNon+1}], {v(vd,2)}')
        if wide: k(f'v_cmp_ne_u64 s[48:49], s[{sNon}:{sNon+1}], {v(vd+4,2)}\ns_nop 1\ns_or_b64 s[44:45], vcc, s[48:49]\ns_cbranch_scc0 {Lo}\ns_sub_u32 s47, s47, 1\ns_cbranch_scc1 {Lo}')
        else: k(f's_sub_u32 s47, s47, 1\ns_cbranch_scc1 {Lo}\ns_cmp_eq_u64 vcc, 0\ns_cbranch_scc1 {Lo}')
        if cfg.get('slp',1): k(f's_sleep {cfg.get("slp",1)}')
        k(f's_mov_b64 exec, vcc\n{ld[0]}')
        if wide: k(f's_mov_b64 exec, s[48:49]\n{ld[1]}')
        k(f's_mov_b64 exec, -1\ns_waitcnt vmcnt(0)\ns_branch {L}')
        k.label(Lo)
    def poll0(vaddr, soff, vd, wide, extra=None):
        Ls=k.newlabel('pskip')
        k(f's_cmp_lg_u32 s{sWave}, 0\ns_cbranch_scc1 {Ls}')
        vm0=list(k.vm)
        poll_issue(vaddr,soff,vd,wide); poll_check(vaddr,soff,vd,wide)
        if extra: extra()
        k.vm=vm0
        k.label(Ls)
        k('s_barrier')
    if ST:
        k('s_memtime s[60:61]\ns_memrealtime s[82:83]')
        for i in range(62,82): k(f's_mov_b32 s{i}, 0')
    k(f's_cmp_ge_u32 s2, 256\ns_cbranch_scc1 {name}_end')
    k(f's_load_dwordx2 s[{pX}:{pX+1}], s[0:1], 0\ns_load_dwordx8 s[{pW1}:{pW1+7}], s[0:1], 48\ns_load_dwordx4 s[{pOUT}:{pOUT+3}], s[0:1], 80\ns_load_dwordx2 s[{pWS}:{pWS+1}], s[0:1], 96\ns_memrealtime s[{sNon}:{sNon+1}]')
    if cfg.get('cpf',1):
        NL=cfg.get('cpfl',16)
        k(f's_getpc_b64 s[48:49]\ns_lshr_b32 s3, s2, 3\ns_mul_i32 s3, s3, {NL*128}\nv_lshlrev_b32 v1, 7, v0\nv_add_u32 v1, s3, v1\nv_min_u32 v1, {name}_end-{name}-256, v1\nv_cmp_gt_u32 vcc, {NL}, v0\ns_and_saveexec_b64 s[50:51], vcc\ns_cbranch_execz {name}_nocpf')
        k(f'global_load_dword a255, v1, s[48:49]')
        k.label(f'{name}_nocpf')
        k('s_mov_b64 exec, s[50:51]')
    XG=8; XT=40; PM=72; B1=80; B2=96; B2N=112; TWC=128; TWS=144; ONES=160; T=164; A1=184; D1=8; A2=200; ZD=200; TT=232
    VGR=1; VXR=3; VZW=5; VZR=6; VST=7; VSR=236; VOUT=237; VF=238; VE=239; VMX=238; VJ=247; VNON=244; VOUT2=246
    k(f'v_lshrrev_b32 v{T}, 6, v0\nv_and_b32 v{VL}, 63, v0\nv_and_b32 v{VN}, 15, v0\nv_readfirstlane_b32 s{sWave}, v{T}\nv_bfe_u32 v{VG}, v0, 4, 2\nv_lshlrev_b32 v{VTO}, 4, v{VL}')
    w=grp_word()
    k(f's_bfe_u32 s{sRb}, s2, 0x20001\ns_lshl_b32 s{sRb}, s{sRb}, 2\ns_bfe_u32 s3, s2, 0x20003\ns_add_u32 s3, s3, s{sRb}\ns_lshl_b32 s3, s3, 2')
    k(f's_mov_b32 s48, {hex(w&0xffffffff)}\ns_mov_b32 s49, {hex(w>>32)}\ns_lshr_b64 s[48:49], s[48:49], s3\ns_and_b32 s{sRb}, s48, 15')
    k(f's_and_b32 s{sHf}, s2, 1\ns_lshr_b32 s{sC8}, s2, 5\ns_lshl_b32 s{sCb}, s{sHf}, 3\ns_add_u32 s{sCb}, s{sCb}, s{sC8}\ns_lshl_b32 s{sTb}, s{sRb}, 2\ns_add_u32 s{sTb}, s{sTb}, s{sWave}')
    sSlo,sWq=50,51
    sH1=46
    if cfg.get('xdup',0): k(f's_lshl_b32 s{sSlo}, s{sC8}, 4\ns_add_u32 s{sSlo}, s{sSlo}, s{sRb}\ns_mov_b32 s{sH1}, s{sHf}')
    else: k(f's_and_b32 s3, s2, 7\ns_lshl_b32 s3, s3, 4\ns_lshr_b32 s{sSlo}, s2, 4\ns_add_u32 s{sSlo}, s{sSlo}, s3\ns_bfe_u32 s{sH1}, s2, 0x10003')
    k(f's_lshl_b32 s{sWq}, s{sH1}, 2\ns_add_u32 s{sWq}, s{sWq}, s{sWave}')
    k(f'v_lshrrev_b32 v{T}, 3, v{VL}\nv_and_b32 v{T+1}, 6, v{T}\nv_and_b32 v{T+2}, 7, v{VL}\nv_xor_b32 v{T+1}, v{T+1}, v{T+2}\nv_lshlrev_b32 v{T}, 18, v{T}\nv_lshl_add_u32 v{T}, v{T+1}, 4, v{T}')
    k(f's_lshl_b32 s52, s{sSlo}, 11\ns_lshl_b32 s53, s{sWave}, 9\ns_add_u32 s52, s52, s53\ns_add_u32 s54, s52, {8<<18}\ns_lshl_b32 s55, s{sWave}, 13\ns_add_u32 s55, s55, {L_X}')
    def w1_offsets(VW,VWR,VWS,T0):
        k(f's_mul_i32 s3, s{sWave}, {7*64}\nv_add_u32 v{T0}, s3, v{VL}')
        for q in range(7):
            k(f'v_mul_u32_u24 v{T0+1}, 9363, v{T0}\nv_lshrrev_b32 v{T0+1}, 17, v{T0+1}')
            k(f'v_mul_u32_u24 v{T0+2}, 14, v{T0+1}\nv_sub_u32 v{T0+2}, v{T0}, v{T0+2}\nv_lshlrev_b32 v{T0+2}, 4, v{T0+2}')
            k(f'v_mul_u32_u24 v{T0+3}, 7168, v{T0+1}\nv_add_u32 v{VW+q}, v{T0+3}, v{T0+2}')
            if VWR is not None:
                k(f'v_sub_u32 v{T0+3}, {127*7168}, v{T0+3}\nv_add_u32 v{VWR+q}, v{T0+3}, v{T0+2}')
                if q==0:
                    k(f'v_add_u32 v{VWS}, {897*7168}, v{VWR}\nv_add_u32 v{T0+3}, {512*7168}, v{T0+2}\nv_cmp_eq_u32 vcc, 0, v{T0+1}\ns_nop 1\nv_cndmask_b32 v{VWS}, v{VWS}, v{T0+3}, vcc')
            if q<6: k(f'v_add_u32 v{T0}, 64, v{T0}')
    EW=cfg.get('early_w1',3)
    sWl=56
    k(f's_mul_i32 s{sWl}, s{sWave}, {7*1024}\ns_mul_i32 s57, s{sCb}, 448')
    k('s_waitcnt lgkmcnt(0)')
    stamp(1)
    srd(sXS,pX,2048*2048)
    for p in range(4):
        for rh in range(2):
            k(f's_add_u32 m0, s55, {p*2048+rh*1024-128*p}\ns_nop 0')
            k.vmem(f'buffer_load_dwordx4 v{T}, s[{sXS}:{sXS+3}], s{54 if rh else 52} offen offset:{128*p} lds',('x',p))
    srd(sWS,pWS,WS_HH)
    def pf_any(ptr,junk,first,nbytes,dst='a255'):
        per=nbytes//128//1024
        srd(sXC,ptr,first+nbytes)
        k(f's_lshl_b32 s3, s2, 2\ns_add_u32 s3, s3, s{sWave}\ns_mul_i32 s3, s3, {per*128}\ns_add_u32 s3, s3, {first}\nv_lshlrev_b32 v{junk}, 7, v{VL}\nv_cmp_gt_u32 vcc, {per}, v{VL}\nv_mov_b32 v{junk+1}, 0x40000000\ns_nop 0\nv_cndmask_b32 v{junk}, v{junk+1}, v{junk}, vcc')
        k.vmem(f'buffer_load_dword {dst}, v{junk}, s[{sXC}:{sXC+3}], s3 offen','pf')
    QW=256*7168
    pieces=[(pW1,0),(pW1,QW),(pW1,3*QW),(pW1,2*QW),(pW2,0),(pW2,2*QW),(pW2,QW),(pW2,3*QW)]
    plan=str(cfg.get('plan',11110000)).zfill(8)
    def pf_point(i,junk,dst='a255'):
        for _ in range(int(plan[i])):
            if pieces: p_,o_=pieces.pop(0); pf_any(p_,junk,o_,QW,dst)
    if cfg.get('pf0',0):
        for _ in range(cfg['pf0']): p_,o_=pieces.pop(0); pf_any(p_,242,o_,QW)
    srd(sB,pDBG,256)
    Ln=k.newlabel('non')
    k(f's_or_b32 s3, s2, s{sWave}\ns_cmp_lg_u32 s3, 0\ns_cbranch_scc1 {Ln}\ns_and_b32 s48, s{sNon}, -8\ns_or_b32 s48, s48, 8\nv_mov_b32 v{VNON}, s48\nv_mov_b32 v{VNON+1}, s{sNon+1}\nv_mov_b32 v{VJ}, 0\ns_mov_b64 exec, 1')
    k(f'buffer_store_dwordx2 {v(VNON,2)}, v{VJ}, s[{sB}:{sB+3}], 0 offen sc1\ns_mov_b64 exec, -1')
    k.label(Ln)
    k(f's_sub_u32 s3, {1024*7168}, s57')
    k(f's_add_u32 s{sW}, s{pW1}, s57\ns_addc_u32 s{sW+1}, s{pW1+1}, 0\ns_and_b32 s{sW+1}, s{sW+1}, 0xffff\ns_mov_b32 s{sW+2}, s3\ns_mov_b32 s{sW+3}, 0x20000')
    k(f'v_and_b32 v{T+1}, 6, v{VN}\nv_xor_b32 v{T+1}, v{T+1}, v{VG}\nv_lshlrev_b32 v{T+2}, 7, v{VN}\nv_add_u32 v{T+2}, s55, v{T+2}\nv_lshl_add_u32 v{VGR}, v{T+1}, 4, v{T+2}\nv_xor_b32 v{VGR+1}, 64, v{VGR}')
    k(f'v_bfe_u32 v{T+1}, v0, 2, 3\nv_lshlrev_b32 v{T+2}, 7, v{T+1}\nv_and_b32 v{T+1}, 6, v{T+1}\nv_lshlrev_b32 v{T+1}, 4, v{T+1}\nv_and_b32 v{T+3}, 32, v{VL}\nv_lshlrev_b32 v{T+3}, 1, v{T+3}\nv_xor_b32 v{T+1}, v{T+1}, v{T+3}')
    k(f'v_and_b32 v{T+3}, 3, v0\nv_lshlrev_b32 v{T+3}, 3, v{T+3}\nv_add3_u32 v{T+2}, v{T+2}, v{T+3}, s55\nv_add_u32 v{VXR}, v{T+2}, v{T+1}\nv_xor_b32 v{VXR+1}, 32, v{VXR}')
    k(f'v_and_b32 v{T+1}, 7, v0\nv_mul_u32_u24 v{VZW}, {ZSTR}, v{T+1}\nv_and_b32 v{T+2}, 8, v0\nv_lshlrev_b32 v{T+2}, 3, v{T+2}\nv_lshl_add_u32 v{T+2}, v{VG}, 3, v{T+2}\ns_add_u32 s3, s53, {L_Z}\nv_add3_u32 v{VZW}, v{VZW}, v{T+2}, s3')
    k(f'v_lshrrev_b32 v{T+4}, 5, v{VL}\nv_lshlrev_b32 v{T+4}, 9, v{T+4}\nv_bfe_u32 v{T+5}, v0, 2, 2\nv_lshl_add_u32 v{T+4}, v{T+5}, 6, v{T+4}')
    k(f'v_and_b32 v{T+5}, 16, v0\nv_lshlrev_b32 v{T+5}, 1, v{T+5}\nv_add3_u32 v{T+4}, v{T+4}, v{T+5}, v{T+3}\ns_mul_i32 s3, s{sWave}, {2*ZSTR}\ns_add_u32 s3, s3, {L_Z}\nv_add_u32 v{VZR}, s3, v{T+4}')
    k(f'v_lshrrev_b32 v{T+4}, 2, v{VN}\nv_cmp_eq_u32 vcc, v{T+4}, v{VG}\ns_lshl_b32 s3, s{sWave}, 3\ns_add_u32 s3, s3, {L_ST}\nv_lshl_add_u32 v{T+5}, v{VN}, 5, s3')
    k(f'v_lshlrev_b32 v{T+6}, 3, v{VL}\nv_add_u32 v{T+6}, {L_DUM}, v{T+6}\nv_cndmask_b32 v{VST}, v{T+6}, v{T+5}, vcc')
    k(f'v_and_b32 v{T+4}, 1, v{VG}\nv_lshlrev_b32 v{T+4}, 2, v{T+4}\nv_xor_b32 v{T+5}, v{VN}, v{T+4}\nv_lshlrev_b32 v{T+6}, 5, v{T+5}\nv_add_u32 v{VSR}, {L_ST}, v{T+6}')
    k(f's_lshl_b32 s31, s{sH1}, 7\ns_add_u32 s31, s31, s{sSlo}\ns_lshl_b32 s31, s31, 7\ns_add_u32 s31, s31, {WS_R1}\nv_lshlrev_b32 v{VMX}, 2, v{T+5}\nv_cmp_gt_u32 vcc, 16, v0\nv_mov_b32 v{VE}, 0x40000000\ns_nop 0\nv_cndmask_b32 v{VMX}, v{VE}, v{VMX}, vcc')
    mA,mB,mC,mE=16,18,20,22
    k(f'v_and_b32 v{T+5}, 3, v0\nv_cmp_eq_u32 s[{mA}:{mA+1}], 1, v{T+5}\nv_cmp_eq_u32 s[{mB}:{mB+1}], 2, v{T+5}\nv_cmp_eq_u32 s[{mC}:{mC+1}], 3, v{T+5}')
    k(f's_mov_b32 s28, 0x10001\ns_mov_b32 s29, 0')
    k(f's_lshl_b32 s3, s{sH1}, 3\nv_add_u32 v{T+7}, s3, v{T+1}\nv_lshrrev_b32 v{T+5}, 1, v{T+7}\nv_cmp_eq_u32 vcc, 1, v{T+7}\nv_and_b32 v{T+6}, 1, v{T+7}\ns_nop 0\nv_cndmask_b32 v{T+5}, v{T+5}, 8, vcc\nv_cndmask_b32 v{T+6}, v{T+6}, 0, vcc')
    k(f'v_and_b32 v{VE}, 3, v0\nv_mul_u32_u24 v{VE}, {2*ZSTR}, v{VE}\nv_add_u32 v{VE}, {L_Z}, v{VE}')
    k(f'v_cvt_f32_u32 v{T+5}, v{T+5}\nv_cvt_f32_u32 v{T+6}, v{T+6}\nv_cvt_f32_u32 v{T+4}, v{T+4}\nv_mul_f32 v{T+5}, {fl(1/16)}, v{T+5}\nv_mul_f32 v{T+6}, {fl(0.25)}, v{T+6}')
    k(f'v_fmac_f32 v{T+6}, v{T+5}, v{T+4}')
    for i in range(8): k(f'v_fmamk_f32 v{PM+i}, v{T+5}, {fl((i&3)+8*(i>>2))}, v{T+6}')
    for i in range(8): k(f'v_cos_f32 v{PM+i}, v{PM+i}')
    k(f'v_lshrrev_b32 v{T+4}, 3, v{VN}\nv_lshrrev_b32 v{T+5}, 1, v{VG}\nv_cmp_eq_u32 vcc, v{T+4}, v{T+5}')
    for i in range(4): k(f'v_mov_b32 v{ONES+i}, 0x3f803f80')
    for i in range(8): k(f'v_cndmask_b32 v{PM+i}, 0, v{PM+i}, vcc')
    E1=T+7; H4=T+8
    k(f'v_and_b32 v{T+4}, 4, v0\nv_lshlrev_b32 v{T+4}, 2, v{T+4}\nv_and_b32 v{T+5}, 3, v0\nv_bfe_u32 v{T+6}, v0, 3, 2\nv_lshl_add_u32 v{T+5}, v{T+6}, 2, v{T+5}\nv_add_u32 v{T+4}, v{T+4}, v{T+5}')
    k(f'v_lshlrev_b32 v{T+9}, 31, v{T+4}\nv_lshrrev_b32 v{T+10}, 16, v{T+9}\nv_or_b32 v{T+9}, v{T+9}, v{T+10}')
    k(f'v_cvt_f32_u32 v{E1}, v{T+4}\nv_lshrrev_b32 v{H4}, 5, v{VL}\nv_cvt_f32_u32 v{H4}, v{H4}')
    k(f'v_mul_f32 v{T+4}, {fl(1/32)}, v{E1}\nv_mul_f32 v{T+5}, {fl(8.0)}, v{H4}\nv_mul_f32 v{T+5}, v{T+5}, v{T+4}')
    S=A2
    for i in range(8): k(f'v_fmamk_f32 v{S+i}, v{T+4}, {fl(i)}, v{T+5}')
    for i in range(8): k(f'v_sin_f32 v{S+8+i}, v{S+i}')
    for i in range(8): k(f'v_cos_f32 v{S+i}, v{S+i}')
    for i in range(4): k(f'v_cvt_pk_bf16_f32 v{B1+8+i}, -v{S+8+2*i}, -v{S+9+2*i}')
    for i in range(4): k(f'v_cvt_pk_bf16_f32 v{B1+i}, v{S+2*i}, v{S+1+2*i}')
    for i in range(4): k(f'v_xor_b32 v{B1+4+i}, v{B1+i}, v{T+9}\nv_xor_b32 v{B1+12+i}, v{B1+8+i}, v{T+9}')
    k(f'v_mul_f32 v{T+4}, {fl(1/1024)}, v{E1}\nv_mul_f32 v{T+5}, 4.0, v{H4}\nv_mul_f32 v{T+5}, v{T+5}, v{T+4}')
    for r in range(16): k(f'v_fmamk_f32 v{TWC+r}, v{T+4}, {fl((r&3)+8*(r>>2))}, v{T+5}')
    for r in range(16): k(f'v_sin_f32 v{TWS+r}, v{TWC+r}')
    for r in range(16): k(f'v_cos_f32 v{TWC+r}, v{TWC+r}')
    k(f'v_cvt_f32_u32 v{T+4}, v{VN}\nv_mul_f32 v{T+4}, {fl(1/32)}, v{T+4}\nv_mul_f32 v{T+5}, 4.0, v{H4}\nv_mul_f32 v{T+5}, v{T+5}, v{T+4}')
    k(f'v_and_b32 v{T+6}, 1, v{VG}\nv_cvt_f32_u32 v{T+6}, v{T+6}\nv_fmac_f32 v{T+5}, {fl(0.25)}, v{T+6}')
    k(f'v_lshlrev_b32 v{T+9}, 31, v{VN}\nv_lshrrev_b32 v{T+10}, 16, v{T+9}\nv_or_b32 v{T+9}, v{T+9}, v{T+10}')
    for i in range(8): k(f'v_fmamk_f32 v{S+i}, v{T+4}, {fl((i&3)+8*(i>>2))}, v{T+5}')
    for i in range(8): k(f'v_sin_f32 v{S+8+i}, v{S+i}')
    for i in range(8): k(f'v_cos_f32 v{S+i}, v{S+i}')
    for i in range(4): k(f'v_cvt_pk_bf16_f32 v{B2+8+i}, v{S+8+2*i}, v{S+9+2*i}')
    for i in range(4): k(f'v_cvt_pk_bf16_f32 v{B2+i}, v{S+2*i}, v{S+1+2*i}')
    for i in range(4): k(f'v_xor_b32 v{B2+4+i}, v{B2+i}, v{T+9}\nv_xor_b32 v{B2+12+i}, v{B2+8+i}, v{T+9}')
    for i in range(16): k(f'v_xor_b32 v{B2N+i}, 0x80000000, v{B2+i}')
    VB=cfg.get('vblk',1)
    if VB:
        k(f'v_lshlrev_b32 v{T+5}, 4, v{VG}\nv_lshl_add_u32 v{T+5}, v{VN}, 14, v{T+5}\ns_lshl_b32 s3, s{sSlo}, 6\nv_add_u32 v{VOUT}, s3, v{T+5}\nv_add_u32 v{VOUT2}, 0x2000, v{VOUT}')
    else:
        k(f'v_lshlrev_b32 v{T+5}, 4, v{VG}\nv_lshl_add_u32 v{T+5}, v{VN}, 6, v{T+5}\ns_lshl_b32 s3, s{sSlo}, 10\nv_add_u32 v{VOUT}, s3, v{T+5}\nv_add_u32 v{VOUT2}, 0x20000, v{VOUT}')
    k(f's_lshl_b32 s58, s{sWq}, 18\ns_sub_u32 s59, 16, s{sWq}\ns_cmp_eq_u32 s{sWq}, 0\ns_cselect_b32 s59, 8, s59\ns_lshl_b32 s59, s59, 18\nv_mov_b32 v{VJ}, 0')
    G=T; SM=T+4
    EWP=cfg.get('ewpos',1)
    if EWP==0 and EW:
        w1_offsets(A2,None,None,A2+8)
        for st in range(EW):
            k(f's_mov_b32 s3, {st*128*7168}')
            for q in range(7):
                k(f's_add_u32 m0, s{sWl}, {st*STG3+q*1024}\ns_nop 0')
                k.vmem(f'buffer_load_dwordx4 v{A2+q}, s[{sW}:{sW+3}], s3 offen lds',('W',st))
    for p in range(4):
        k.wait(vm=[('x',p)])
        for sub in range(2): k.lds(f'ds_read_b128 {v(XG+8*p+4*sub,4)}, v{VGR+sub} offset:{2048*p}',('g',2*p+sub))
    stamp(2)
    pf_point(0,TT)
    k.vmem(f'buffer_load_dwordx2 {v(VNON,2)}, v{VJ}, s[{sB}:{sB+3}], 0 offen sc1','non')
    for q in range(8):
        k.wait(lg=[('g',q)])
        k(f'v_mfma_f32_16x16x32_bf16 {v(G,4)}, {v(XG+4*q,4)}, {v(XG+4*q,4)}, {"0" if q==0 else v(G,4)}')
        k(f'v_mfma_f32_16x16x32_bf16 {v(SM,4)}, {v(ONES,4)}, {v(XG+4*q,4)}, {"0" if q==0 else v(SM,4)}')
    for t in range(4):
        k.lds(f'ds_read_b64_tr_b16 {v(XT+4*t,2)}, v{VXR+(t&1)} offset:{2048*(t>>1)}','xt')
        k.lds(f'ds_read_b64_tr_b16 {v(XT+4*t+2,2)}, v{VXR+(t&1)} offset:{2048*(t>>1)+1024}','xt')
    k(f'v_cndmask_b32 v{SM+1}, v{G}, v{G+1}, s[{mA}:{mA+1}]\nv_cndmask_b32 v{SM+1}, v{SM+1}, v{G+2}, s[{mB}:{mB+1}]\nv_cndmask_b32 v{SM+1}, v{SM+1}, v{G+3}, s[{mC}:{mC+1}]')
    k.lds(f'ds_write_b64 v{VST}, {v(SM,2)}','sw')
    for t in range(4,8):
        k.lds(f'ds_read_b64_tr_b16 {v(XT+4*t,2)}, v{VXR+(t&1)} offset:{2048*(t>>1)}','xt2')
        k.lds(f'ds_read_b64_tr_b16 {v(XT+4*t+2,2)}, v{VXR+(t&1)} offset:{2048*(t>>1)+1024}','xt2')
    pf_point(1,TT)
    k.wait(lg=['sw']); k('s_barrier')
    R=A1
    for q in range(2): k.lds(f'ds_read_b128 {v(R+4*q,4)}, v{VSR} offset:{16*q}','sr')
    k.wait(lg=['sr'])
    for a_,b_ in ((0,2),(4,6),(0,4)):
        k(f'v_pk_add_f32 {v(R+a_,2)}, {v(R+a_,2)}, {v(R+b_,2)}')
    k(f'v_mul_f32 v{R+3}, {fl(1/1024)}, v{R}\nv_mul_f32 v{R+2}, v{R+3}, v{R+3}\nv_mul_f32 v{R+1}, {fl(1/1024)}, v{R+1}\nv_sub_f32 v{R+1}, v{R+1}, v{R+2}')
    k(f'v_max_f32 v{R+1}, 0, v{R+1}\nv_add_f32 v{R+1}, {fl(1e-5)}, v{R+1}\nv_rsq_f32 v{R+1}, v{R+1}')
    M=R+4; CI=G
    k(f'v_mov_b32 v{CI}, 0\nv_mul_f32 v{R}, -v{R+3}, v{R+1}')
    k.vmem(f'buffer_store_dword v{R+3}, v{VMX}, s[{sWS}:{sWS+3}], s31 offen offset:64{SC}','st1')
    for i in range(8):
        ln=(i&3)+8*(i>>2)
        k(f'v_mul_f32_dpp v{M+i}, v{R+1}, v{PM+i} row_newbcast:{ln} row_mask:0xf bank_mask:0xf')
    for i in range(8):
        ln=(i&3)+8*(i>>2)
        k(f'v_fmac_f32_dpp v{CI}, v{R}, v{PM+i} row_newbcast:{ln} row_mask:0xf bank_mask:0xf')
    MH=SM; ML=T+8
    for i in range(4): k(f'v_cvt_pk_bf16_f32 v{MH+i}, v{M+2*i}, v{M+2*i+1}')
    k(f'v_mov_b32 v{CI+1}, v{CI}')
    for i in range(2):
        k(f'v_lshlrev_b32 v{R+12}, 16, v{MH+i}\nv_and_b32 v{R+13}, 0xffff0000, v{MH+i}\nv_pk_add_f32 {v(M+2*i,2)}, {v(M+2*i,2)}, {v(R+12,2)} neg_lo:[0,1] neg_hi:[0,1]')
    k(f'v_permlane16_swap_b32 v{CI}, v{CI+1}')
    for i in range(2,4):
        k(f'v_lshlrev_b32 v{R+12}, 16, v{MH+i}\nv_and_b32 v{R+13}, 0xffff0000, v{MH+i}\nv_pk_add_f32 {v(M+2*i,2)}, {v(M+2*i,2)}, {v(R+12,2)} neg_lo:[0,1] neg_hi:[0,1]')
        if i==2: k(f'v_add_f32 v{CI}, v{CI}, v{CI+1}\nv_mov_b32 v{CI+1}, v{CI}')
    k(f'v_permlane32_swap_b32 v{CI}, v{CI+1}')
    for i in range(4): k(f'v_cvt_pk_bf16_f32 v{ML+i}, v{M+2*i}, v{M+2*i+1}')
    k(f'v_add_f32 v{CI}, v{CI}, v{CI+1}\nv_mov_b32 v{CI+1}, v{CI}\nv_mov_b32 v{CI+2}, v{CI}\nv_mov_b32 v{CI+3}, v{CI}')
    k.wait(lg=['xt2']); k('s_nop 0')
    for t in range(8): k(f'v_mfma_f32_16x16x32_bf16 {v(ZD+4*t,4)}, {v(XT+4*t,4)}, {v(MH,4)}, {v(CI,4)}')
    for t in range(8): k(f'v_mfma_f32_16x16x32_bf16 {v(ZD+4*t,4)}, {v(XT+4*t,4)}, {v(ML,4)}, {v(ZD+4*t,4)}')
    k('s_nop 0')
    for t in range(8):
        k(f'v_cvt_pk_bf16_f32 v{ZD+4*t}, v{ZD+4*t}, v{ZD+4*t+1}\nv_cvt_pk_bf16_f32 v{ZD+4*t+1}, v{ZD+4*t+2}, v{ZD+4*t+3}')
        k.lds(f'ds_write_b64 v{VZW}, {v(ZD+4*t,2)} offset:{128*(t>>1)+32*(t&1)}','zw')
    k.wait_all(vm=False); k('s_barrier')
    for q in range(2):
        for ks in range(2):
            for hf in range(2):
                k.lds(f'ds_read_b64_tr_b16 {v(A1+8*q+4*ks+2*hf,2)}, v{VZR} offset:{q*ZSTR+(16*ks+4*hf)*64}',('a1',q,ks))
    pf_point(2,TT)
    EP=240
    k.lds(f'ds_read_u16 v{EP+2}, v{VE}','ez')
    k.lds(f'ds_read_u16 v{EP+3}, v{VE} offset:{ZSTR}','ez')
    UR,UI,VR,VI=D1,D1+16,D1+32,D1+48
    for q,(dr,di) in enumerate(((UR,UI),(VR,VI))):
        for ks in range(2):
            k.wait(lg=[('a1',q,ks)])
            k(f'v_mfma_f32_32x32x16_bf16 {v(dr,16)}, {v(A1+8*q+4*ks,4)}, {v(B1+4*ks,4)}, {"0" if ks==0 else v(dr,16)}')
            k(f'v_mfma_f32_32x32x16_bf16 {v(di,16)}, {v(A1+8*q+4*ks,4)}, {v(B1+8+4*ks,4)}, {"0" if ks==0 else v(di,16)}')
    k.wait(lg=['ez'])
    k(f's_xor_b32 s30, s{sH1}, 1\ns_mov_b32 s31_, 0'.replace('s31_','s29'))
    k(f'v_lshl_or_b32 v{TT}, v{EP+3}, 16, v{EP+2}\nv_xor_b32 v{TT+1}, 0x80000000, v{TT}\ns_mov_b32 s16, s30\ns_mov_b32 s17, 0\ns_nop 0')
    k(f'v_cndmask_b32 v{EP+2}, v{TT}, v{EP+2}, s[16:17]\nv_cndmask_b32 v{EP+3}, v{TT+1}, v{EP+3}, s[16:17]\ns_nop 4')
    k(f's_cmp_eq_u32 s{sWq}, 0\ns_cbranch_scc1 {name}_nocomb')
    for r in range(0,16,2):
        t0=TT+(r%4)
        k(f'v_pk_add_f32 {v(t0,2)}, {v(UR+r,2)}, {v(VI+r,2)}')
        k(f'v_pk_add_f32 {v(UR+r,2)}, {v(UR+r,2)}, {v(VI+r,2)} neg_lo:[0,1] neg_hi:[0,1]')
        k(f'v_pk_add_f32 {v(VI+r,2)}, {v(UI+r,2)}, {v(VR+r,2)} neg_lo:[0,1] neg_hi:[0,1]')
        k(f'v_pk_add_f32 {v(UI+r,2)}, {v(UI+r,2)}, {v(VR+r,2)}')
        k(f'v_pk_mov_b32 {v(VR+r,2)}, {v(t0,2)}, {v(t0,2)} op_sel:[0,1]')
    k.label(f'{name}_nocomb')
    for o,(dr,di) in enumerate(((UR,UI),(VR,VI))):
        for r in range(0,16,2):
            t0=T+(r%4)*2
            k(f'v_pk_mul_f32 {v(t0,2)}, {v(di+r,2)}, {v(TWS+r,2)}')
            k(f'v_pk_mul_f32 {v(t0+2,2)}, {v(dr+r,2)}, {v(TWS+r,2)}')
            k(f'v_pk_fma_f32 {v(dr+r,2)}, {v(dr+r,2)}, {v(TWC+r,2)}, {v(t0,2)}')
            k(f'v_pk_fma_f32 {v(di+r,2)}, {v(di+r,2)}, {v(TWC+r,2)}, {v(t0+2,2)} neg_lo:[0,0,1] neg_hi:[0,0,1]')
            k(f'v_cvt_pk_bf16_f32 v{A2+16*o+r//2}, v{dr+r}, v{dr+r+1}')
            k(f'v_cvt_pk_bf16_f32 v{A2+16*o+8+r//2}, v{di+r}, v{di+r+1}')
        k('s_nop 1')
        for (d,B) in ((di,B2N),(dr,B2)):
            first=True
            for part in range(2):
                for ks in range(2):
                    k(f'v_mfma_f32_32x32x16_bf16 {v(d,16)}, {v(A2+16*o+8*part+4*ks,4)}, {v(B+8*part+4*ks,4)}, {"0" if first else v(d,16)}')
                    first=False
    for o,(d,dn) in enumerate(((UR,UI),(VR,VI))):
        if o==0: pass
        k(f'v_cndmask_b32 v{d}, v{d}, v{dn}, s[28:29]')
        for r in range(8): k(f'v_cvt_pk_bf16_f32 v{d+r}, v{d+2*r}, v{d+2*r+1}')
        k('s_nop 1')
        for r in range(4): k(f'v_permlane16_swap_b32 v{d+r}, v{d+4+r}')
        for hf in range(2): k.vmem(f'buffer_store_dwordx4 {v(d+4*hf,4)}, v{VOUT2 if hf else VOUT}, s[{sWS}:{sWS+3}], s{58+o} offen{SC}','st1')
    stamp(3)
    pf_point(3,TT)
    CT=8; VFr=72; FM=104; FD=120; XD=136; XM=144; ACC2=160; MY=176; EF=184; MXV=216; T=220; VRD=1; VMA=3; VSA=5; VT0=6; VTM=244; VDV=7; L_E=L_P1
    k(f's_lshl_b32 s3, s{sWave}, 9\ns_add_u32 s52, s3, s{sRb}\nv_lshl_add_u32 v{VT0}, v{VN}, 4, s52')
    k(f'v_lshlrev_b32 v{T+2}, 3, v{VG}\ns_lshl_b32 s53, s{sCb}, 6\nv_add_u32 v{T+2}, s53, v{T+2}')
    k(f'v_lshl_add_u32 v{T+3}, v{VT0}, 11, v{T+2}\ns_mov_b32 s54, {256*2048}')
    k.wait(vm=['non'])
    Lq=k.newlabel('nspin'); Lr=k.newlabel('nok')
    k(f's_mov_b32 s47, {1<<18}')
    k.label(Lq)
    k(f'v_readfirstlane_b32 s{sNon}, v{VNON}\nv_readfirstlane_b32 s{sNon+1}, v{VNON+1}\ns_sub_u32 s47, s47, 1\ns_cbranch_scc1 {Lr}\ns_cmp_lg_u32 s{sNon}, 0\ns_cbranch_scc1 {Lr}')
    k(f's_sleep 1\nbuffer_load_dwordx2 {v(VNON,2)}, v{VJ}, s[{sB}:{sB+3}], 0 offen sc1\ns_waitcnt vmcnt(0)\ns_branch {Lq}')
    k.label(Lr)
    k(f's_cmp_eq_u32 s{sCb}, 0\ns_cselect_b32 s16, 0xffff, 0\ns_mov_b32 s17, 0\nv_mov_b32 v{T+8}, 0x40000000')
    for tt in range(2):
        k(f'v_sub_u32 v{VTM+tt}, {2048-256*tt}, v{VT0}\nv_and_b32 v{VTM+tt}, 2047, v{VTM+tt}')
        k(f'v_lshlrev_b32 v{T+6+tt}, 11, v{VTM+tt}\nv_sub_u32 v{T+4+tt}, v{T+6+tt}, v{T+2}\nv_add_u32 v{T+4+tt}, {2048-8-32}, v{T+4+tt}\nv_cndmask_b32 v{T+6+tt}, v{T+8}, v{T+6+tt}, s[16:17]')
    TF=T+12; BS=T+14
    k(f'v_cvt_f32_u32 v{TF}, v{VT0}\nv_cvt_f32_u32 v{T+16}, v{VG}\nv_mul_f32 v{TF}, {fl(1/2048)}, v{TF}\nv_add_f32 v{TF+1}, {fl(0.125)}, v{TF}\nv_mul_f32 v{T+16}, 4.0, v{T+16}')
    k(f'v_mul_f32 v{BS}, v{TF}, v{T+16}\nv_mul_f32 v{BS+1}, v{TF+1}, v{T+16}')
    def ctgen(u,tt):
        S=VFr+16*((u*2+tt)&1)
        for i in range(8): k(f'v_fmamk_f32 v{S+i}, v{TF+tt}, {fl(32*u+(i&3)+16*(i>>2))}, v{BS+tt}')
        for i in range(8): k(f'v_sin_f32 v{S+8+i}, v{S+i}')
        for i in range(8): k(f'v_cos_f32 v{S+i}, v{S+i}')
        for i in range(4): k(f'v_cvt_pk_bf16_f32 v{CT+((u+4)*2+tt)*4+i}, v{S+8+2*i}, v{S+9+2*i}')
        for i in range(4): k(f'v_cvt_pk_bf16_f32 v{CT+(u*2+tt)*4+i}, v{S+2*i}, v{S+1+2*i}')
    todo=[(u,tt) for u in range(4) for tt in range(2)]
    for _ in range(cfg.get('ctpre',5)): ctgen(*todo.pop(0))
    k.wait(vm=['st1'])
    signal(31,EP,keep=True)
    stamp(4)
    for tt in range(2):
        for j in range(2):
            k.vmem(f'buffer_load_dwordx2 {v(XD+(tt*2+j)*2,2)}, v{T+3}, s[{sXS}:{sXS+3}], {"s54" if tt else "0"} offen offset:{32*j}','x2')
    for tt in range(2):
        for j in range(2):
            k.vmem(f'buffer_load_dwordx3 {v(XM+(tt*2+j)*4,3)}, v{T+4+tt}, s[{sXS}:{sXS+3}], 0 offen offset:{32*(1-j)}','x2')
        k.vmem(f'buffer_load_dword v{XM+(tt*2)*4+3}, v{T+6+tt}, s[{sXS}:{sXS+3}], 0 offen offset:1024','x2')
    pf_point(4,EF+8)
    while todo: ctgen(*todo.pop(0))
    for tt in range(2):
        k(f'v_and_b32 v{T+8}, 15, v{VTM+tt}\nv_lshlrev_b32 v{T+8}, 2, v{T+8}\nv_lshrrev_b32 v{T+9}, 9, v{VTM+tt}\nv_add_u32 v{T+8}, v{T+8}, v{T+9}')
        k(f'v_bfe_u32 v{T+9}, v{VTM+tt}, 8, 1\nv_bfe_u32 v{T+10}, v{VTM+tt}, 4, 4\nv_lshl_add_u32 v{T+11}, v{VG}, 4, v{T+10}\nv_lshlrev_b32 v{T+11}, 4, v{T+11}')
        k(f'v_lshl_add_u32 v{T+11}, v{T+9}, 10, v{T+11}\nv_lshl_add_u32 v{VMA+tt}, v{T+8}, 16, v{T+11}')
        k(f'v_lshl_add_u32 v{T+10}, v{T+9}, 4, v{T+10}\nv_lshlrev_b32 v{T+10}, 2, v{T+10}\nv_lshl_add_u32 v{T+10}, v{VG}, 9, v{T+10}\nv_lshl_add_u32 v{VSM+tt}, v{T+8}, 12, v{T+10}')
    k(f'v_and_b32 v{T+2}, 31, v{VL}\nv_lshlrev_b32 v{T+2}, 2, v{T+2}\nv_lshrrev_b32 v{T+3}, 5, v{VL}\nv_lshl_add_u32 v{VSA}, v{T+3}, 11, v{T+2}')
    k(f's_lshl_b32 s20, s{sTb}, 16\ns_lshl_b32 s21, s{sCb}, 11\ns_add_u32 s21, s21, {WS_H1}\ns_add_u32 s20, s20, s21\ns_add_u32 s21, s21, {16*2048}')
    k(f's_lshl_b32 s22, s{sTb}, 12\ns_lshl_b32 s3, s{sCb}, 7\ns_add_u32 s22, s22, s3\ns_add_u32 s22, s22, {WS_ST}')
    k(f'v_lshrrev_b32 v{T+8}, 2, v{VL}\nv_lshlrev_b32 v{T+8}, 6, v{T+8}\nv_and_b32 v{T+9}, 3, v{VL}\nv_lshl_add_u32 v{T+8}, v{T+9}, 3, v{T+8}\nv_and_b32 v{T+9}, 16, v{VL}\nv_lshlrev_b32 v{T+9}, 1, v{T+9}\nv_add_u32 v{T+8}, {L_V}, v{T+8}')
    k(f'v_add_u32 v{VRD}, v{T+8}, v{T+9}\nv_sub_u32 v{VRD+1}, v{T+8}, v{T+9}\nv_add_u32 v{VRD+1}, 32, v{VRD+1}')
    k(f'v_lshrrev_b32 v{T}, 2, v{VL}\nv_and_b32 v{T+1}, 3, v{VL}\nv_and_b32 v{T+2}, 1, v{VG}\nv_lshlrev_b32 v{T+2}, 1, v{T+2}\nv_xor_b32 v{T+1}, v{T+1}, v{T+2}')
    k(f'v_lshlrev_b32 v{T}, {6 if VB else 10}, v{T}\nv_lshl_add_u32 v{VDV}, v{T+1}, 4, v{T}')
    if VB: k(f's_lshl_b32 s23, s{sRb}, 18\ns_lshl_b32 s3, s{sCb}, 14\ns_add_u32 s23, s23, s3\ns_lshl_b32 s3, s{sWave}, 12\ns_add_u32 s23, s23, s3\ns_add_u32 s28, s3, {L_V}')
    else: k(f's_lshl_b32 s23, s{sRb}, 18\ns_lshl_b32 s3, s{sCb}, 6\ns_add_u32 s23, s23, s3\ns_lshl_b32 s3, s{sWave}, 16\ns_add_u32 s23, s23, s3\ns_lshl_b32 s28, s{sWave}, 12\ns_add_u32 s28, s28, {L_V}')
    k(f's_sub_u32 s3, 16, s{sRb}\ns_min_u32 s3, s3, s{sRb}\ns_bfe_u32 s30, s3, 0x10002\ns_lshl_b32 s30, s30, 14\ns_add_u32 s30, s30, {WS_R1}\ns_and_b32 s3, s3, 3\ns_lshl_b32 s3, s3, 4\ns_add_u32 s29, s30, s3')
    k(f'v_lshlrev_b32 v{T+4}, 7, v{VL}\nv_add_u32 v{T+5}, 0x2000, v{T+4}')
    for i,src in enumerate((VT0,VTM,VTM+1)):
        k(f'v_and_b32 v{T+9+i}, 127, v{src}\nv_lshlrev_b32 v{T+9+i}, 7, v{T+9+i}\nv_lshrrev_b32 v{T+8}, 7, v{src}\nv_lshl_add_u32 v{T+9+i}, v{T+8}, 2, v{T+9+i}')
    k(f'v_and_b32 v{T+6}, 32, v{VL}\nv_lshlrev_b32 v{T+6}, 1, v{T+6}\nv_bfe_u32 v{T+7}, v{VL}, 2, 2\nv_lshl_add_u32 v{T+6}, v{T+7}, 4, v{T+6}\nv_bfe_u32 v{T+7}, v{VL}, 4, 1\nv_lshl_add_u32 v{T+6}, v{T+7}, 3, v{T+6}\nv_and_b32 v{T+7}, 3, v{VL}\nv_lshl_add_u32 v{T+6}, v{T+7}, 1, v{T+6}')
    k(f'v_add_u32 v{T+6}, {L_E}, v{T+6}\nv_lshlrev_b32 v{T+7}, 4, v{VG}\nv_add_u32 v{T+7}, {L_E}, v{T+7}')
    k(f's_cmp_ge_u32 s{sRb}, 8\ns_cselect_b64 s[18:19], -1, 0')
    k.wait(vm=['x2'])
    for tt in range(2):
        k(f'v_cndmask_b32 v{XM+tt*8+2}, v{XM+tt*8+2}, v{XM+tt*8+3}, s[16:17]')
    for tt in range(2):
        for j in range(2):
            m=XM+(tt*2+j)*4; f=FM+(tt*2+j)*4
            k(f'v_lshlrev_b32 v{f}, 16, v{m+2}\nv_and_b32 v{f+1}, 0xffff0000, v{m+1}\nv_lshlrev_b32 v{f+2}, 16, v{m+1}\nv_and_b32 v{f+3}, 0xffff0000, v{m}')
            m=XD+(tt*2+j)*2; f=FD+(tt*2+j)*4
            k(f'v_lshlrev_b32 v{f}, 16, v{m}\nv_and_b32 v{f+1}, 0xffff0000, v{m}\nv_lshlrev_b32 v{f+2}, 16, v{m+1}\nv_and_b32 v{f+3}, 0xffff0000, v{m+1}')
    if EW and EWP: w1_offsets(XD,None,None,XM)
    EW1=min(EW,cfg.get('ew1',3)) if EWP else 0
    def early_w(lo,hi):
        for st in range(lo,hi):
            k(f's_mov_b32 s58, {st*128*7168}')
            for q in range(7):
                k(f's_add_u32 m0, s{sWl}, {st*STG3+q*1024}\ns_nop 0')
                k.vmem(f'buffer_load_dwordx4 v{XD+q}, s[{sW}:{sW+3}], s58 offen lds',('W',st))
    Lw=k.newlabel('w1')
    k(f's_cmp_eq_u32 s{sWave}, 0\ns_cbranch_scc1 {Lw}')
    vm0=list(k.vm); early_w(0,EW1); k.vm=vm0
    k.label(Lw)
    PD=EF
    def e_stage():
        for i in range(2):
            k(f'v_cndmask_b32 v{PD+4*i+2}, v{PD+4*i+2}, v{PD+4*i+3}, s[18:19]')
            k(f'ds_write_b16 v{T+6}, v{PD+4*i+2} offset:{128*i}\nds_write_b16_d16_hi v{T+6}, v{PD+4*i+2} offset:{128*i+256}')
        k('s_waitcnt lgkmcnt(0)')
    poll0(T+4,29,PD,True,extra=e_stage)
    stamp(5)
    for q in range(4):
        if VB:
            if q==0: k(f's_mov_b32 m0, s28\ns_nop 0')
            k.vmem(f'buffer_load_dwordx4 v{VDV}, s[{sWS}:{sWS+3}], s23 offen offset:{q*1024}{SC} lds','v')
        else:
            k(f's_add_u32 m0, s28, {q*1024}\ns_add_u32 s3, s23, {q*16384}')
            k.vmem(f'buffer_load_dwordx4 v{VDV}, s[{sWS}:{sWS+3}], s3 offen{SC} lds','v')
    k.vmem(f'buffer_load_dword v{MXV}, v{T+9}, s[{sWS}:{sWS+3}], s30 offen offset:64{SC}','mx')
    k.vmem(f'buffer_load_dword v{MXV+2}, v{T+9}, s[{sWS}:{sWS+3}], s30 offen offset:72{SC}','mx')
    for tt in range(2): k.vmem(f'buffer_load_dword v{MXV+2*tt+1}, v{T+10+tt}, s[{sWS}:{sWS+3}], s30 offen offset:64{SC}','mx')
    for u in range(8): k.lds(f'ds_read_b128 {v(EF+4*u,4)}, v{T+7} offset:{64*u}',('er',u))
    for u in range(8):
        k.wait(lg=[('er',u)])
        for tt in range(2):
            d=MY+4*tt
            k(f'v_mfma_f32_16x16x32_bf16 {v(d,4)}, {v(EF+4*u,4)}, {v(CT+(u*2+tt)*4,4)}, {"0" if u==0 else v(d,4)}')
    Lw=k.newlabel('w0'); Lx=k.newlabel('w0e')
    k(f's_cmp_lg_u32 s{sWave}, 0\ns_cbranch_scc1 {Lw}')
    vm0=list(k.vm)
    early_w(0,EW1)
    k.wait(vm=['mx'])
    vm1=list(k.vm)
    k(f's_branch {Lx}'); k.label(Lw)
    k.vm=vm0; k.wait(vm=['mx'])
    k.label(Lx); k.vm=vm1
    k('s_barrier')
    pf_point(5,T)
    def rd2(u):
        for j in range(2):
            for q in range(2):
                k.lds(f'ds_read_b64_tr_b16 {v(VFr+((u&3)*2+j)*4+2*q,2)}, v{VRD+j} offset:{(32*u+16*q)*64}',('f',u))
    for u in range(3): rd2(u)
    for tt in range(2):
        k(f'v_pk_add_f32 {v(MXV+2*tt,2)}, {v(MXV+2*tt,2)}, {v(MY+4*tt,2)}')
    for tt in range(2):
        for (F0,which) in ((FM,1),(FD,0)):
            sel=f'op_sel:[0,{which}] op_sel_hi:[1,{which}] neg_lo:[0,1] neg_hi:[0,1]'
            for j in range(2):
                f=F0+(tt*2+j)*4
                for hh in range(2): k(f'v_pk_add_f32 {v(f+2*hh,2)}, {v(f+2*hh,2)}, {v(MXV+2*tt,2)} {sel}')
    for u in range(8):
        k.wait(lg=[('f',u)])
        for j in range(2):
            for tt in range(2):
                d=ACC2+(j*2+tt)*4
                k(f'v_mfma_f32_16x16x32_bf16 {v(d,4)}, {v(VFr+((u&3)*2+j)*4,4)}, {v(CT+(u*2+tt)*4,4)}, {"0" if u==0 else v(d,4)}')
        if u+3<8: rd2(u+3)
    HD=CT; HM=CT+8; Q=CT+48
    k(f'v_mov_b32 v{VM}, v{MXV}\nv_mov_b32 v{VM+1}, v{MXV+2}\ns_nop 5')
    for tt in range(2):
        for (F0,H,which) in ((FM,HM,1),(FD,HD,0)):
            if which==0: k(f'v_cndmask_b32 v{ACC2+tt*4}, v{ACC2+tt*4}, 0, s[16:17]')
            for j in range(2):
                y=ACC2+(j*2+tt)*4; f=F0+(tt*2+j)*4
                for hh in range(2): k(f'v_pk_add_f32 {v(f+2*hh,2)}, {v(f+2*hh,2)}, {v(y+2*hh,2)}')
                for hh in range(2): k(f'v_cvt_pk_bf16_f32 v{H+4*tt+2*j+hh}, v{f+2*hh}, v{f+2*hh+1}')
            if which: k.vmem(f'buffer_store_dwordx4 {v(HM+4*tt,4)}, v{VMA+tt}, s[{sWS}:{sWS+3}], s21 offen{SC}','st2')
            else: k.vmem(f'buffer_store_dwordx4 {v(HD+4*tt,4)}, v{VTO}, s[{sWS}:{sWS+3}], s20 offen offset:{1024*tt}{SC}','st2')
    for tt in range(2):
        for (F0,which) in ((FM,1),(FD,0)):
            q=Q+(which*2+tt)*2
            for j in range(2):
                f=F0+(tt*2+j)*4
                for hh in range(2):
                    if j==0 and hh==0: k(f'v_pk_mul_f32 {v(q,2)}, {v(f,2)}, {v(f,2)}')
                    else: k(f'v_pk_fma_f32 {v(q,2)}, {v(f+2*hh,2)}, {v(f+2*hh,2)}, {v(q,2)}')
    for i in range(4): k(f'v_add_f32 v{Q+2*i}, v{Q+2*i}, v{Q+2*i+1}')
    k(f's_nop 0\nv_permlane32_swap_b32 v{Q}, v{Q+4}\nv_permlane32_swap_b32 v{Q+2}, v{Q+6}\nv_add_f32 v{Q}, v{Q}, v{Q+4}\nv_add_f32 v{Q+2}, v{Q+2}, v{Q+6}\ns_nop 1')
    k(f'v_permlane16_swap_b32 v{Q}, v{Q+2}\nv_add_f32 v{Q}, v{Q}, v{Q+2}')
    k.vmem(f'buffer_store_dword v{Q}, v{VSA}, s[{sWS}:{sWS+3}], s22 offen{SC}','st2')
    stamp(6)
    NS=5; LAF=cfg.get('LAF3',7); NB=8; NSTG=16; ROWB=224; ND=7
    ACC=[0,56]; WF=112; OH=144; SQ=OH+40; AUGB=[200,202]; VW=204; VWR=211; VWS=218; VRD=219; VCUR=220; T0=222; BF=226
    VWo,VWg,VWk,VTK,VOA=240,241,244,245,246
    TK=256
    w1_offsets(VW,VWR,VWS,T0)
    k(f'v_lshrrev_b32 v{T0}, 2, v{VL}\nv_mul_u32_u24 v{T0+1}, {ROWB}, v{T0}\nv_and_b32 v{T0+2}, 3, v{VL}\nv_lshl_add_u32 v{VRD}, v{T0+2}, 3, v{T0+1}')
    k(f's_lshl_b32 s3, s{sTb}, 16\ns_add_u32 s3, s3, {WS_H1}')
    srd(sT,pWS,65536,addreg=3)
    k(f's_lshl_b32 s55, s{sRb}, 4\ns_add_u32 s55, s55, s{sCb}\ns_lshl_b32 s55, s55, 6\ns_add_u32 s54, s55, {WS_F3}\ns_add_u32 s55, s55, {WS_F2}')
    k.wait(vm=['st2'])
    signal(55,T0)
    sWoff,sToff=52,53
    state={'woff':None,'toff':None}
    def woff_for(S):
        s_=S&7; p_=(S>>3)*224
        return (s_*128*7168 if s_<4 else (1536-128*s_-127)*7168)+p_
    def dma(S,q):
        slot=S%NS; s_=S&7
        want=(S>>3)*224 if (s_==4 and q==0) else woff_for(S)
        if state['woff']!=want:
            k(f's_mov_b32 s{sWoff}, {want}'); state['woff']=want
        k(f's_add_u32 m0, s{sWl}, {slot*STG3+q*1024}')
        vo = VWS if (s_==4 and q==0) else (VWR+q if s_>=4 else VW+q)
        return lambda: k.vmem(f'buffer_load_dwordx4 v{vo}, s[{sW}:{sW+3}], s{sWoff} offen lds', ('W',S))
    def tok(sg,t):
        base=(sg//2)*4096
        if state['toff']!=base:
            k(f's_mov_b32 s{sToff}, {base}'); state['toff']=base
        k.vmem(f'buffer_load_dwordx4 {reg(TK+8*sg+4*t,4)}, v{VTO}, s[{sT}:{sT+3}], s{sToff} offen offset:{(sg%2)*2048+t*1024}{TKF}', ('T',sg,t))
    if EWP: EW=EW1
    for S in range(EW,NS-1):
        for q in range(ND):
            f_=dma(S,q); k('s_nop 0'); f_()
    k(f's_mul_i32 s3, s{sTb}, {224*1024}\ns_mul_i32 s48, s{sCb}, {14*1024}\ns_add_u32 s3, s3, s48\ns_add_u32 s3, s3, {WS_HH}')
    srd(sO,pWS,14*1024,addreg=3)
    srd(sB,pB1,3584*2)
    k(f's_lshl_b32 s58, s{sTb}, 12\ns_add_u32 s58, s58, {WS_ST}\ns_mov_b32 s46, {WS_ST}')
    k(f's_sub_u32 s3, 16, s{sRb}\ns_and_b32 s3, s3, 15\ns_lshl_b32 s3, s3, 10\ns_lshl_b32 s48, s{sRb}, 10\nv_mov_b32 v{T0}, s3\nv_mov_b32 v{T0+1}, s48\nv_and_b32 v{T0+2}, 1, v{VG}\nv_cmp_eq_u32 vcc, 0, v{T0+2}\ns_mov_b32 s59, {WS_F2}\ns_nop 0\nv_cndmask_b32 v{T0}, v{T0}, v{T0+1}, vcc\nv_lshl_add_u32 v{T0}, v{VN}, 6, v{T0}')
    k(f'v_lshrrev_b32 v{T0+1}, 3, v{VL}\nv_and_b32 v{T0+2}, 7, v{VL}\nv_and_b32 v{T0+3}, 6, v{T0+1}\nv_xor_b32 v{T0+2}, v{T0+2}, v{T0+3}\nv_lshlrev_b32 v{T0+2}, 4, v{T0+2}\nv_lshl_add_u32 v{T0+1}, v{T0+1}, 11, v{T0+2}')
    k(f's_lshl_b32 s48, s{sWave}, 14\nv_add_u32 v{VWg}, s48, v{T0+1}\ns_mul_i32 s3, s{sC8}, {224*2048}\nv_add_u32 v{VWo}, s3, v{VWg}\nv_mov_b32 v{VWk}, v{VWg}\nv_mov_b32 v{VTK}, v{VTO}')
    pf_point(6,SQ+4)
    poll0(T0,59,SQ,False)
    stamp(7)
    P0=cfg.get('P0',4)
    for sg in range(P0):
        for t in range(2): tok(sg,t)
    pend=[('tok',sg,t) for sg in range(P0,32) for t in range(2)]
    FPS=28; NFR=FPS*NSTG
    def rd(f,q):
        if f>=NFR: return
        S=f//FPS; u=(f%FPS)//7; j=f%7
        k.lds(f'ds_read_b64_tr_b16 {v(WF+(f%NB)*4+2*q,2)}, v{VCUR+(S&1)} offset:{(32*u+16*q)*ROWB+j*32}', ('R',f))
    def setcur(S):
        if S<NSTG: k(f'v_add_u32 v{VCUR+(S&1)}, {(S%NS)*STG3}, v{VRD}')
    events={}
    def at(f,item): events.setdefault(f,[]).append(item)
    def run_events(f,post):
        for ev in events.get(f,[]):
            if ev[0]=='vm': post.append(ev[1])
            elif ev[0]=='valu': post.append(lambda s_=ev[1]: k(s_))
            elif ev[0]=='wait': post.append(lambda t_=ev[1]: k.wait(vm=[t_]))
    k(f'v_lshlrev_b32 v{T0}, 2, v{VN}\nv_lshl_add_u32 v{T0}, v{VG}, 9, v{T0}')
    for tt in range(2):
        for i in range(4):
            k.vmem(f'buffer_load_dword v{SQ+8*tt+i}, v{T0}, s[{sWS}:{sWS+3}], s58 offen offset:{128*i+64*tt}{SC}','sq')
            k.vmem(f'buffer_load_dword v{SQ+8*tt+4+i}, v{VSM+tt}, s[{sWS}:{sWS+3}], s46 offen offset:{2048+128*i}{SC}','sq')
    f0=0
    V=[('wait','sq')]
    for tt in range(2):
        b=SQ+8*tt
        for i in (1,2,3,4,5,6,7): V.append(f'v_add_f32 v{b}, v{b}, v{b+i}')
    a_=SQ; b_=SQ+8; P_=AUGB[0]
    V+= [f'v_permlane32_swap_b32 v{a_}, v{b_}', f'v_add_f32 v{a_}, v{a_}, v{b_}', f'v_mov_b32 v{b_}, v{a_}', f'v_permlane16_swap_b32 v{a_}, v{b_}', f'v_add_f32 v{a_}, v{a_}, v{b_}',
         f'v_mov_b32 v{b_}, {fl(1e-5)}', f'v_fmac_f32 v{b_}, {fl(1/1024)}, v{a_}', f'v_sqrt_f32 v{a_}, v{b_}', f'v_rcp_f32 v{VRS}, v{b_}',
         f'v_cvt_pk_bf16_f32 v{a_+1}, v{a_}, v{a_}', f'v_and_b32 v{a_+1}, 0xffff0000, v{a_+1}', f'v_sub_f32 v{a_+1}, v{a_}, v{a_+1}', f'v_cvt_pk_bf16_f32 v{P_}, v{a_}, v{a_+1}',
         f'v_mov_b32 v{a_+4}, v{P_}', f'v_mov_b32 v{P_+1}, 0', f'v_mov_b32 v{P_+2}, 0', f'v_mov_b32 v{P_+3}, 0', f'v_permlane32_swap_b32 v{a_+4}, v{P_+2}',
         f'v_mov_b32 v{VRS+1}, v{VRS}', f'v_lshlrev_b32 v{T0+1}, 1, v{VL}', f'v_permlane32_swap_b32 v{VRS}, v{VRS+1}',
         f'v_cmp_gt_u32 vcc, 16, v{VL}', f'v_mov_b32 v{T0}, 0x40000000', f'v_cndmask_b32 v{T0+1}, v{T0}, v{T0+1}, vcc']
    for j in range(7): V.append(f'v_mov_b32 v{BF+2*j+1}, 0')
    f1=cfg.get('sq_use',3)*FPS
    for i,x in enumerate(V): at(f1+i, x if isinstance(x,tuple) else ('valu',x))
    assert f1+len(V)<7*FPS
    for p_ in range(2):
        for j in range(7):
            at((8*p_+7)*FPS+2*j,('vm',lambda j=j,p_=p_: k.vmem(f'buffer_load_ushort v{BF+2*j}, v{T0+1}, s[{sB}:{sB+3}], s57 offen offset:{32*j+224*p_}','bf')))
    def pf_one():
        if pieces: p_,o_=pieces.pop(0); pf_any(p_,T0+2,o_,QW,f'v{T0+3}')
    for i_ in range(8): at((cfg.get('pf3',7)+i_)*FPS+cfg.get('pf3o',10),('vm',pf_one))
    def epilogue3(p_):
        A=ACC[p_]; tm=ACC[1-p_] if p_==0 else ACC[0]
        k.wait(vm=['bf'])
        for j in range(7): k(f'v_lshl_or_b32 v{BF+2*j}, v{BF+2*j}, 16, v{BF+2*j}')
        def aug(j):
            for t in range(2):
                D=A+(j*2+t)*4
                k(f'v_mfma_f32_16x16x16_bf16 {v(D,4)}, {v(BF+2*j,2)}, {v(AUGB[t],2)}, {v(D,4)}')
        k('s_nop 0')
        for j in range(4): aug(j)
        k('s_nop 1')
        for j in range(7):
            if j+4<7: aug(j+4)
            J=7*p_+j; e=J>>1
            for t in range(2):
                R=A+(j*2+t)*4; d=OH+8*e+4*t+2*(J&1); x=tm+4*((2*j+t)&3)
                for r in range(4): k(f'v_max_f32 v{x+r}, 0, v{R+r}')
                for r in range(0,4,2): k(f'v_pk_mul_f32 {v(R+r,2)}, {v(R+r,2)}, {v(x+r,2)}')
                for r in range(2): k(f'v_cvt_pk_bf16_f32 v{d+r}, v{R+2*r}, v{R+2*r+1}')
                if J&1:
                    o=(2*e+t)*1024
                    if state['toff']!=o//4096*4096: k(f's_mov_b32 s{sToff}, {o//4096*4096}'); state['toff']=o//4096*4096
                    k.room(1)
                    k.vmem(f'buffer_store_dwordx4 {v(OH+8*e+4*t,4)}, v{VTO}, s[{sO}:{sO+3}], s{sToff} offen offset:{o%4096} sc1',('st3',p_))
    NS4=32; ROT=7; STG4=4096; NTS=32; C=32*2048
    DL=cfg.get('DL',24)
    U=[]
    for e in range(28): U+= [('G',e),('K',e)]
    for tau in range(28,56+DL):
        if tau<56: U.append(('G',tau))
        if tau>=28+DL: U.append(('K',tau-DL))
    NU=len(U); uidx={u_:i for i,u_ in enumerate(U)}
    def estep(e):
        if e<28: return (e-7)//3, 7*((e-7)//3)+(e-7)%3
        return (e-28)//4, 7*((e-28)//4)+3+(e-28)%4
    def bias_fix(e,vr,unit):
        i,_=estep(e)
        first = (e<28 and (e-7)%3==0) or (e>=28 and (e-28)%4==0)
        if e==28: k(f's_cmp_lt_u32 s{sC8}, 7\ns_cselect_b32 s3, {7*unit}, 0\nv_subrev_u32 v{vr}, s3, v{vr}')
        if first: k(f's_cmp_eq_u32 s{sC8}, {i}\ns_cselect_b32 s3, {7*unit}, 0\nv_add_u32 v{vr}, s3, v{vr}')
    sG=sW; sGoff=50; sWl4=49; sT4off=51
    st4={'T':None}
    def dma4(n,_q=0):
        part,e=U[n]; sr=sG if part=='G' else sK
        if e<7: vo=VWo; lit=e*C
        else:
            vo=VWg if part=='G' else VWk; bias_fix(e,vo,C); lit=estep(e)[1]*C
        k(f's_mov_b32 s{sGoff}, {lit}\ns_add_u32 m0, s{sWl4}, {((n+ROT)%NS4)*STG4}')
        return lambda: k.vmem(f'buffer_load_dwordx4 v{vo}, s[{sr}:{sr+3}], s{sGoff} offen lds', ('W4',n))
    def tokreg(e,t): return (OH+8*e if e<7 else 256+8*((e-7)%NTS))+4*t
    def tok4(e,t):
        if t==0: bias_fix(e,VTK,2048)
        o=estep(e)[1]*2048; base=o//4096*4096
        if st4['T']!=base:
            k(f's_mov_b32 s{sT4off}, {base}'); st4['T']=base
        k.vmem(f'buffer_load_dwordx4 {reg(tokreg(e,t),4)}, v{VTK}, s[{sXS}:{sXS+3}], s{sT4off} offen offset:{o-base+t*1024}{TKF}', ('T4',e,t))
    def issue(p,now):
        if p[0]=='fn':
            if now: p[2](); return None
            return p[2]
        if p[0] in ('tok','tok4'):
            g=tok if p[0]=='tok' else tok4
            if now: g(p[1],p[2]); return None
            return lambda: g(p[1],p[2])
        f_=(dma if p[0]=='dma' else dma4)(p[1],p[2])
        if now: k('s_nop 0'); f_(); return None
        return f_
    def flush(item):
        while item in pend: k.room(1); issue(pend.pop(0),True)
    LAF4=cfg.get('LAF4',7)
    def prio(p):
        if p[0]=='fn': return p[1]
        if p[0]=='tok': return p[1]*7
        if p[0]=='dma': return p[1]*FPS-LAF-cfg.get('wlead',14)
        if p[0]=='tok4': return NFR+uidx[('G',p[1])]*4
        return NFR+p[1]*4-LAF4
    pace={'last':-99}
    def pick(now,gap,urg):
        if len(k.vm)>=cfg.get('vmmax',56): return None
        for i,p in enumerate(pend):
            d=prio(p)-now
            if d>((cfg.get('wwin',60) if now<cfg.get('wfree',6)*FPS else 999) if p[0]=='dma' else cfg.get('win',400)): continue
            if now-pace['last']>=gap or d<=urg:
                pace['last']=now; return issue(pend.pop(i),False)
            return None
        return None
    flags={'A':False,'B':False}
    VPA=247
    def sigA():
        k.wait(vm=[('st3',0)]); signal(54,T0+2-0 if False else 0)
    def polA_issue():
        k(f's_mul_i32 s3, s{sTb}, {56*4096}\ns_mul_i32 s48, s{sHf}, {28*4096}\ns_add_u32 s3, s3, s48\ns_add_u32 s3, s3, {WS_HH}')
        srd(sXS,pWS,28*4096,addreg=3)
        k(f's_lshl_b32 s3, s{sRb}, 10\ns_lshl_b32 s48, s{sHf}, 9\ns_add_u32 s55, s3, s48\ns_add_u32 s55, s55, {WS_F3}\nv_and_b32 v{VPA}, 7, v{VL}\nv_lshlrev_b32 v{VPA}, 6, v{VPA}')
        poll_issue(VPA,55,4,False)
    def polA_check():
        poll_check(VPA,55,4,False); flags['A']=True
    at(cfg.get('sigA',9*FPS+14),('vm',sigA))
    at(cfg.get('polAi',13)*FPS,('vm',polA_issue))
    at(cfg.get('polAc',14)*FPS,('vm',polA_check))
    t4_next=7; dma_next=0
    setcur(0); setcur(1)
    k.wait(vm=[('W',0)])
    if EW==0: k('s_barrier')
    for f in range(LAF): rd(f,0); rd(f,1)
    WE=cfg.get('WE3',2)
    for f in range(NFR):
        S=f//FPS; u=(f%FPS)//7; j=f%7; p_=S>>3; sg=4*(S&7)+u
        if f==1: stamp(8)
        if cfg.get('p3st') is not None and f%FPS==0 and 0<=S-cfg['p3st']<8: k(f's_memtime s[{64+2*(S-cfg["p3st"])}:{65+2*(S-cfg["p3st"])}]')
        if f==8*FPS:
            stamp(9); epilogue3(0); stamp(10)
        if j==0 and p_==1 and flags['A']:
            while t4_next<28 and t4_next-7<sg:
                pend+= [('tok4',t4_next,0),('tok4',t4_next,1)]; t4_next+=1
        pend.sort(key=prio)
        tw=[]
        if j==0 and p_==0:
            for t in range(2): flush(('tok',sg,t)); tw.append(('T',sg,t))
        lw=[('R',ff) for ff in range(f,min(f+WE,NFR))] if f%WE==0 else []
        k.wait(vm=tw, lg=lw)
        pre=None; post=[]
        run_events(f,post)
        for t in range(2):
            D=ACC[p_]+(j*2+t)*4
            C_='0' if sg==0 else v(D,4)
            k(f'v_mfma_f32_16x16x32_bf16 {v(D,4)}, {v(WF+(f%NB)*4,4)}, {reg(TK+8*sg+4*t,4)}, {C_}')
            if t==0:
                if (f+LAF)%FPS==0 and S+1<NSTG:
                    flush(('dma',S+1,ND-1))
                    k.wait(vm=[('W',S+1)]); k('s_barrier')
                    for q in range(ND):
                        if S-1+NS<NSTG: pend.append(('dma',S-1+NS,q))
                    if S==12:
                        flush(('dma',15,ND-1))
                        k(f's_mul_i32 s3, s{sHf}, {1792*2048}\ns_lshl_b32 s48, s{sC8}, 8\ns_add_u32 s3, s3, s48\ns_lshl_b32 s48, s{sHf}, 7\ns_add_u32 s59, s3, s48\ns_sub_u32 s58, s3, s48\ns_add_u32 s58, s58, 128')
                        for (d,o) in ((sG,58),(sK,59)):
                            k(f's_add_u32 s{d}, s{pW2}, s{o}\ns_addc_u32 s{d+1}, s{pW2+1}, 0\ns_and_b32 s{d+1}, s{d+1}, 0xffff\ns_sub_u32 s{d+2}, {1024*7168}, s{o}\ns_mov_b32 s{d+3}, 0x20000')
                        k(f's_lshl_b32 s{sWl4}, s{sWave}, 10')
                    if S>=12:
                        while dma_next<7*(S-11): pend.append(('dma4',dma_next,0)); dma_next+=1
                    pend.sort(key=prio)
                if f%FPS==0 and S>0: setcur(S+1)
                pre=pick(f,cfg.get('gap3',2),cfg.get('urg3',24))
            rd(f+LAF,t)
        if pre: pre()
        for p in post: p()
        k.check_vm()
    stamp('a')
    epilogue3(1)
    stamp('b')
    LAF=LAF4; BU=cfg.get('BU',4)
    PRE=0; AG=32; AK=64; VFL=96; VZ=100; XR=200; VRD=232; T0=104; HX=200; B2R=224; VS=108
    k(f'v_lshrrev_b32 v{T0}, 2, v{VL}\nv_lshlrev_b32 v{T0+1}, 7, v{T0}\nv_and_b32 v{T0+2}, 3, v{VL}\nv_lshl_add_u32 v{T0+1}, v{T0+2}, 3, v{T0+1}')
    k(f'v_and_b32 v{T0+2}, 6, v{T0}\nv_lshlrev_b32 v{T0+2}, 4, v{T0+2}')
    for j in range(4):
        k(f'v_xor_b32 v{T0+3}, {32*j}, v{T0+2}\nv_add_u32 v{VRD+j}, v{T0+1}, v{T0+3}\nv_add_u32 v{VRD+4+j}, 0x10000, v{VRD+j}')
    def rd4(f,q):
        if f>=NU*4: return
        n=f//4; j=f%4; slot=(n+ROT)%NS4
        k.lds(f'ds_read_b64_tr_b16 {v(WF+(f%NB)*4+2*q,2)}, v{VRD+4*(slot//16)+j} offset:{16*q*128+(slot%16)*STG4}', ('R4',f))
    flush(('dma4',BU-1,0))
    k.wait(vm=[('W4',n) for n in range(BU)]); k('s_barrier')
    for f in range(LAF): rd4(f,0); rd4(f,1)
    while dma_next<NS4: pend.append(('dma4',dma_next,0)); dma_next+=1
    events={}
    NF4=NU*4
    def sigB():
        k.wait(vm=[('st3',1)]); k(f's_add_u32 s54, s54, 16384'); signal(54,VFL)
    def polB_issue():
        k(f's_add_u32 s55, s55, 16384'); poll_issue(VPA,55,VFL,False)
    def polB_check():
        poll_check(VPA,55,VFL,False); flags['B']=True
    at(cfg.get('sigB',56),('vm',sigB))
    at(cfg.get('polBi',128),('vm',polB_issue))
    at(cfg.get('polBc',152),('vm',polB_check))
    def side():
        srd(sB,pB2,2048); srd(sO,pOUT,2048*2048); srd(sXC,pWS,8<<20,addlit=WS_X)
        k(f's_lshl_b32 s57, s{sC8}, 1\ns_add_u32 s57, s57, s{sHf}')
        k(f's_sub_u32 s3, 23, s57\ns_cmp_ge_u32 s57, 8\ns_cselect_b32 s3, s3, s57\ns_cselect_b32 s48, 3, 0\ns_lshl_b32 s3, s3, 12\ns_lshl_b32 s46, s{sTb}, 16\ns_add_u32 s46, s46, {WS_H1}\ns_add_u32 s56, s46, s3')
        k(f'v_xor_b32 v{VS}, s48, v{VG}\nv_lshlrev_b32 v{VS}, 8, v{VS}\nv_lshl_add_u32 v{VS}, v{VN}, 4, v{VS}')
        k(f'v_sub_u32 v{VS+1}, 0, v{VG}\nv_and_b32 v{VS+1}, 3, v{VS+1}\nv_lshlrev_b32 v{VS+1}, 8, v{VS+1}\nv_lshl_add_u32 v{VS+1}, v{VN}, 4, v{VS+1}\nv_cmp_eq_u32 vcc, 0, v{VG}')
        k(f'v_add_u32 v{VS+2}, 8, v{VS+1}\nv_add_u32 v{VS+3}, 2040, v{VS+1}\nv_cndmask_b32 v{VS+2}, v{VS+1}, v{VS+2}, vcc\nv_cndmask_b32 v{VS+1}, v{VS+1}, v{VS+3}, vcc')
        k(f's_cmp_eq_u32 s57, 8\ns_cselect_b32 s3, {hex((-16*2048)&0xffffffff)}, 0\nv_mov_b32 v{VS+3}, s3\nv_cndmask_b32 v{VS+3}, 0, v{VS+3}, vcc\nv_add_u32 v{VS+3}, v{VS+3}, v{VS+1}\nv_add_u32 v{VS+3}, {15*4096}, v{VS+3}\ns_sub_u32 s59, s56, {15*4096}')
        k(f's_mov_b32 s46, s56\ns_lshl_b32 s56, s57, 7\nv_lshlrev_b32 v{VZ+1}, 3, v{VG}')
        L_=[]
        for jj in range(4):
            for tt in range(2): L_.append(f'buffer_load_dwordx2 {v(HX+(jj*2+tt)*2,2)}, v{VS}, s[{sWS}:{sWS+3}], s46 offen offset:{(jj>>1)*2048+(jj&1)*8+1024*tt}')
        for jj in range(4):
            for tt in range(2):
                if jj==3: L_.append(f'buffer_load_dword v{HX+16+jj*2+tt}, v{VS+3}, s[{sWS}:{sWS+3}], s59 offen offset:{2048+8+1024*tt}')
                else: L_.append(f'buffer_load_dword v{HX+16+jj*2+tt}, v{VS+1+(1-(jj&1))}, s[{sWS}:{sWS+3}], s46 offen offset:{(jj>>1)*2048+(jj&1)*8+1024*tt}')
        for j in range(4): L_.append(f'buffer_load_dwordx2 {v(B2R+2*j,2)}, v{VZ+1}, s[{sB}:{sB+3}], s33_ offen offset:{32*j}'.replace('s33_','s45'))
        k('s_mov_b32 s45, s56')
        for i_,t_ in enumerate(L_): pend.append(('fn',NFR+g_end-100+i_,lambda t_=t_: k.vmem(t_,'hx')))
        k(f's_lshl_b32 s16, s{sWave}, 9\ns_add_u32 s16, s16, s{sRb}\ns_lshl_b32 s16, s16, 11\ns_add_u32 s16, s16, s56\ns_add_u32 s17, s16, {256*2048}')
        k(f'v_lshlrev_b32 v{VOA}, 15, v{VN}\nv_and_b32 v{VZ}, 1, v{VG}\nv_lshl_add_u32 v{VOA}, v{VZ}, 5, v{VOA}\nv_lshrrev_b32 v{VZ}, 1, v{VG}\nv_lshl_add_u32 v{VOA}, v{VZ}, 4, v{VOA}')
        k(f's_lshl_b32 s3, s2, 2\ns_add_u32 s3, s3, s{sWave}\ns_lshl_b32 s18, s3, 13\ns_xor_b32 s19, s18, {4<<13}\ns_lshl_b32 s52, s3, 6\ns_add_u32 s52, s52, {WS_FX}\ns_xor_b32 s58, s52, 256\nv_mov_b32 v{VZ}, 0')
    g_end=(uidx[('G',55)]+1)*4
    at(cfg.get('side_at',2),('vm',side))
    def hfix():
        assert not any(p[0]=='fn' for p in pend)
        k.wait(vm=['hx'])
        L=k.newlabel('hfix')
        k(f's_cmp_lt_u32 s57, 8\ns_cbranch_scc1 {L}\ns_mov_b32 s3, 0x07060100')
        for jj in range(8):
            h=HX+jj*2; s1=HX+16+jj
            k(f'v_perm_b32 v{s1}, v{h+1}, v{s1}, s3\nv_perm_b32 v{h+1}, v{h}, v{h+1}, s3\nv_mov_b32 v{h}, v{s1}')
        for jj in range(2):
            for x in range(4): k(f'v_swap_b32 v{HX+jj*4+x}, v{HX+(3-jj)*4+x}')
        k.label(L)
    V=[('vm',hfix)]
    for j in range(4):
        b=B2R+2*j
        V+= [f'v_lshlrev_b32 v{T0}, 16, v{b}', f'v_and_b32 v{T0+1}, 0xffff0000, v{b}', f'v_lshlrev_b32 v{T0+2}, 16, v{b+1}', f'v_and_b32 v{T0+3}, 0xffff0000, v{b+1}']
        for tt in range(2):
            h=HX+(j*2+tt)*2; p=PRE+(j*2+tt)*4
            V+= [f'v_lshlrev_b32 v{p}, 16, v{h}', f'v_and_b32 v{p+1}, 0xffff0000, v{h}', f'v_lshlrev_b32 v{p+2}, 16, v{h+1}', f'v_and_b32 v{p+3}, 0xffff0000, v{h+1}']
            for r in range(4): V.append(f'v_add_f32 v{p+r}, v{p+r}, v{T0+r}')
            for r in range(4): V.append(f'v_add_f32 v{p+r}, v{p+r}, v{VM+tt}')
    fs=g_end+cfg.get('pre_at',12); per=cfg.get('pre_per',2)
    for i,x in enumerate(V): at(fs+i//per, x if isinstance(x,tuple) else ('valu',x))
    assert fs+len(V)//per<g_end+cfg.get('xc',78)
    for i in range(8):
        def xs(i=i):
            if i%4==0: k(f's_add_u32 s56, s18, {i*1024}')
            k.vmem(f'buffer_store_dwordx4 {v(AG+4*i,4)}, v{VTO}, s[{sXC}:{sXC+3}], s56 offen offset:{(i%4)*1024} sc1','xs')
        at(g_end+3+i,('vm',xs))
    fA=g_end+cfg.get('xa',40); fB=g_end+cfg.get('xb',62); fC=g_end+cfg.get('xc',78)
    assert fC<NF4
    at(fA,('wait','xs'))
    at(fA,('vm',lambda: signal(52,VFL,barrier=False)))
    at(fB,('vm',lambda: poll_issue(VZ,58,VS,False)))
    def chk():
        poll_check(VZ,58,VS,False)
        k.room(8)
        for i in range(8):
            if i%4==0: k(f's_add_u32 s56, s19, {i*1024}')
            k.vmem(f'buffer_load_dwordx4 {v(XR+4*i,4)}, v{VTO}, s[{sXC}:{sXC+3}], s56 offen offset:{(i%4)*1024} sc1','xr')
    at(fC,('vm',chk))
    WE=cfg.get('WE4',3)
    kdone=6
    for f in range(NF4):
        n=f//4; j=f%4; part,e=U[n]
        if cfg.get('p4st') is not None:
            i_=(f-cfg['p4st'])//cfg.get('qs',16)
            if f>=cfg['p4st'] and (f-cfg['p4st'])%cfg.get('qs',16)==0 and i_<10: k(f's_memtime s[{62+2*i_}:{63+2*i_}]')
        else:
            if f==uidx[('G',7)]*4: stamp('c')
            if f==uidx[('G',28)]*4: stamp('d')
            if f==g_end: stamp('e')
        if j==0:
            if n>0 and U[n-1][0]=='K': kdone=U[n-1][1]
            while t4_next<56 and (t4_next<28 or flags['B']) and (t4_next-NTS<7 or t4_next-NTS<=kdone):
                pend+= [('tok4',t4_next,0),('tok4',t4_next,1)]; t4_next+=1
        pend.sort(key=prio)
        tw=[]
        if j==0 and part=='G' and e>=7:
            assert e<t4_next
            for t in range(2): flush(('tok4',e,t)); tw.append(('T4',e,t))
        lw=[('R4',ff) for ff in range(f,min(f+WE,NF4))] if f%WE==0 else []
        k.wait(vm=tw, lg=lw)
        pre=None; post=[]
        run_events(f,post)
        for t in range(2):
            D=(AG if part=='G' else AK)+(j*2+t)*4
            C_='0' if e==0 else v(D,4)
            k(f'v_mfma_f32_16x16x32_bf16 {v(D,4)}, {v(WF+(f%NB)*4,4)}, {reg(tokreg(e,t),4)}, {C_}')
            if t==0:
                nn=(f+LAF)//4
                if (f+LAF)%4==0 and nn<NU and nn%BU==0:
                    last=min(nn+BU,NU)-1
                    flush(('dma4',last,0))
                    k.wait(vm=[('W4',m) for m in range(nn,last+1)]); k('s_barrier')
                    while dma_next<NU and dma_next-NS4<=n-1:
                        pend.append(('dma4',dma_next,0)); dma_next+=1
                    pend.sort(key=prio)
                pre=pick(NFR+f,cfg.get('gap4',2),cfg.get('urg4',32))
            rd4(f+LAF,t)
        if pre: pre()
        for p in post: p()
        k.check_vm()
    stamp('f')
    k.wait(vm=['xr'])
    k('s_nop 5')
    for p in range(2):
        for tt in range(2):
            d=WF+4*(2*p+tt)
            for jj in range(2):
                j=2*p+jj; a_=AK+(j*2+tt)*4; pr=PRE+(j*2+tt)*4; x_=XR+(j*2+tt)*4
                for hh in range(2): k(f'v_pk_add_f32 {v(a_+2*hh,2)}, {v(a_+2*hh,2)}, {v(x_+2*hh,2)}')
                for hh in range(2):
                    k(f'v_pk_fma_f32 {v(a_+2*hh,2)}, {v(a_+2*hh,2)}, {v(VRS,2)}, {v(pr+2*hh,2)} op_sel:[0,{tt},0] op_sel_hi:[1,{tt},1]')
                for hh in range(2): k(f'v_cvt_pk_bf16_f32 v{d+2*jj+hh}, v{a_+2*hh}, v{a_+2*hh+1}')
            k(f's_nop 1\nv_permlane16_swap_b32 v{d}, v{d+2}\nv_permlane16_swap_b32 v{d+1}, v{d+3}')
            k.vmem(f'buffer_store_dwordx4 {v(d,4)}, v{VOA}, s[{sO}:{sO+3}], s{16+tt} offen offset:{64*p}')
    if ST:
        k('s_waitcnt vmcnt(0)\ns_memtime s[56:57]\ns_memrealtime s[84:85]\ns_waitcnt lgkmcnt(0)')
        k(f's_lshl_b32 s3, s2, 2\ns_add_u32 s3, s3, s{sWave}\ns_lshl_b32 s3, s3, 7\ns_add_u32 s3, s3, {WS_STAMP}\ns_add_u32 s50, s{pWS}, s3\ns_addc_u32 s51, s{pWS+1}, 0')
        for i in range(26): k(f'v_mov_b32 v{i}, s{60+i}')
        k(f'v_mov_b32 v26, s56\nv_mov_b32 v27, s57\nv_mov_b32 v28, 0\nv_mov_b32 v29, 0\nv_mov_b32 v30, 0\nv_mov_b32 v31, 0\nv_mov_b32 v32, 0\ns_mov_b64 exec, 1')
        for i in range(8): k(f'global_store_dwordx4 v32, v[{4*i}:{4*i+3}], s[50:51] offset:{16*i}')
    k.label(f'{name}_end')
    k('s_endpgm')
    return (k,512,102,256), LDS_TOTAL

NAME='sequential_preLN__spectral_fnet__dense_activation_squared_relu__prompt_kernel'
def build(path,stamps=False,over={},listform=False):
    cfg=dict(stamps=stamps); cfg.update(over)
    kk,l=gen(NAME,cfg)
    hdr=[f'; @launch {"kernel="+NAME+" " if listform else ""}grid=(256,1,1) block=(256,1,1) lds={l}']
    open(path,'w').write(assemble_file(hdr,[kk]))
if __name__=='__main__':
    over={}
    for a in sys.argv[3:]:
        kk,vv=a.split('='); over[kk]=int(vv)
    build(sys.argv[1], sys.argv[2]=='1', over, listform=True)
```

```python
from asmlib import *
from layout import *
import struct, sys
def f2u(x): return struct.unpack('<I', struct.pack('<f', x))[0]
def fl(x): return hex(f2u(x))
GRP=[[0,8,1,15],[2,14,3,13],[4,12,5,11],[6,10,7,9]]
def grp_word():
    w=0
    for p in range(4):
        for i in range(4): w|=GRP[p][i]<<(4*(p*4+i))
    return w
ZSTR=2056
STG3=16384
L_X=6*STG3
L_V=8*STG3
L_Z=L_V; L_ST=L_Z+8*ZSTR; L_DUM=L_ST+512; L_E=L_DUM+512
LDS_TOTAL=L_E+512
assert LDS_TOTAL<=163840

def gen(name,cfg):
    k=K(name)
    ST=cfg.get('stamps')
    SB=cfg.get('sb',0)
    MAPB={8:1,9:2,10:3,'a':4,'b':5,'c':6,'d':7,'e':8,'f':9}
    def stamp(i):
        if cfg.get('diag'):
            m={2:0,5:1,7:2,'b':3}
            if i in m: k(f's_memrealtime s[{60+2*m[i]}:{61+2*m[i]}]')
            return
        if not ST: return
        if cfg.get('p3st') is not None and i!=8: return
        if cfg.get('p4st') is not None: return
        if SB:
            if i not in MAPB: return
            i=MAPB[i]
        elif isinstance(i,str): return
        k(f's_memtime s[{60+2*i}:{61+2*i}]')
    SC=' sc1'
    OF=['',' nt',' sc1',' sc1 nt'][cfg.get('of',0)]
    PFF=['',' nt',' sc1',' sc0 sc1',' sc1 nt'][cfg.get('pff',0)]
    XF=['',' nt'][cfg.get('xnt',1)]
    W1F=' nt' if cfg.get('wnt',0)&1 else ''
    W2F=' nt' if cfg.get('wnt',0)&2 else ''
    TKF=' sc1' if cfg.get('toksc1') else ''
    SM1='' if cfg.get('small_plain') else ' sc1'
    pX,pW1,pB1,pW2,pB2,pOUT,pDBG,pWS=86,88,90,92,94,96,98,100
    sXS,sWS,sW,sT,sO,sB,sK=4,8,12,16,20,24,28
    sXC=32
    sWave,sRb,sHf,sC8,sTb,sCb=36,37,38,39,40,41
    sNon=42
    sFlg=44
    VL,VN,VG,VTO,VM,VRS=248,249,250,251,252,253
    VSM=242; VT32=254; VH=255
    def srd(d,lo,nbytes,addreg=None,addlit=None):
        if addreg is not None: k(f's_add_u32 s{d}, s{lo}, s{addreg}\ns_addc_u32 s{d+1}, s{lo+1}, 0\ns_and_b32 s{d+1}, s{d+1}, 0xffff')
        elif addlit is not None: k(f's_add_u32 s{d}, s{lo}, {addlit}\ns_addc_u32 s{d+1}, s{lo+1}, 0\ns_and_b32 s{d+1}, s{d+1}, 0xffff')
        else: k(f's_mov_b32 s{d}, s{lo}\ns_and_b32 s{d+1}, s{lo+1}, 0xffff')
        k(f's_mov_b32 s{d+2}, {nbytes}\ns_mov_b32 s{d+3}, 0x20000')
    def signal(off_sreg, vf, keep=False, barrier=True):
        L=k.newlabel('sig')
        if barrier: k(f's_barrier\ns_cmp_lg_u32 s{sWave}, 0\ns_cbranch_scc1 {L}')
        k(f'v_mov_b32 v{vf}, s{sNon}\nv_mov_b32 v{vf+1}, s{sNon+1}')
        if not keep: k(f'v_mov_b32 v{vf+2}, 0\nv_mov_b32 v{vf+3}, 0')
        k(f's_mov_b64 exec, 15')
        t=f'buffer_store_dwordx4 {v(vf,4)}, v{VTO}, s[{sWS}:{sWS+3}], s{off_sreg} offen sc1'
        if barrier: k(t)
        else: k.vmem(t,'flag')
        k('s_mov_b64 exec, -1')
        if barrier: k.label(L)
    def poll_loads(vaddr, soff, vd, wide):
        if wide: return [f'buffer_load_dwordx4 {v(vd+4*i,4)}, v{vaddr+i}, s[{sWS}:{sWS+3}], s{soff} offen sc1' for i in range(2)]
        return [f'buffer_load_dwordx2 {v(vd,2)}, v{vaddr}, s[{sWS}:{sWS+3}], s{soff} offen sc1']
    def poll_issue(vaddr, soff, vd, wide):
        k.room(2)
        for t in poll_loads(vaddr,soff,vd,wide): k.vmem(t,'poll')
    def poll_check(vaddr, soff, vd, wide):
        L=k.newlabel('poll'); Lo=k.newlabel('pok')
        k.wait(vm=['poll'])
        k(f's_mov_b32 s47, {1<<18}')
        k.label(L)
        ld=poll_loads(vaddr,soff,vd,wide)
        k(f'v_cmp_ne_u64 vcc, s[{sNon}:{sNon+1}], {v(vd,2)}')
        if wide: k(f'v_cmp_ne_u64 s[48:49], s[{sNon}:{sNon+1}], {v(vd+4,2)}\ns_nop 1\ns_or_b64 s[44:45], vcc, s[48:49]\ns_cbranch_scc0 {Lo}\ns_sub_u32 s47, s47, 1\ns_cbranch_scc1 {Lo}')
        else: k(f's_sub_u32 s47, s47, 1\ns_cbranch_scc1 {Lo}\ns_cmp_eq_u64 vcc, 0\ns_cbranch_scc1 {Lo}')
        if cfg.get('slp',1): k(f's_sleep {cfg.get("slp",1)}')
        k(f's_mov_b64 exec, vcc\n{ld[0]}')
        if wide: k(f's_mov_b64 exec, s[48:49]\n{ld[1]}')
        k(f's_mov_b64 exec, -1\ns_waitcnt vmcnt(0)\ns_branch {L}')
        k.label(Lo)
    def poll0(vaddr, soff, vd, wide, extra=None):
        Ls=k.newlabel('pskip')
        k(f's_cmp_lg_u32 s{sWave}, 0\ns_cbranch_scc1 {Ls}')
        vm0=list(k.vm)
        poll_issue(vaddr,soff,vd,wide); poll_check(vaddr,soff,vd,wide)
        if extra: extra()
        k.vm=vm0
        k.label(Ls)
        k('s_barrier')
    if ST:
        k('s_memtime s[60:61]\ns_memrealtime s[82:83]')
        for i in range(62,82): k(f's_mov_b32 s{i}, 0')
    DG=cfg.get('diag')
    if DG: k('s_memrealtime s[82:83]')
    k(f's_cmp_ge_u32 s2, 256\ns_cbranch_scc1 {name}_end')
    k(f's_load_dwordx2 s[{pX}:{pX+1}], s[0:1], 0\ns_load_dwordx8 s[{pW1}:{pW1+7}], s[0:1], 48\ns_load_dwordx4 s[{pOUT}:{pOUT+3}], s[0:1], 80\ns_load_dwordx2 s[{pWS}:{pWS+1}], s[0:1], 96\ns_memrealtime s[{sNon}:{sNon+1}]')
    if cfg.get('cpf',1):
        NL=cfg.get('cpfl',16)
        k(f's_getpc_b64 s[48:49]\ns_lshr_b32 s3, s2, 3\ns_mul_i32 s3, s3, {NL*128}\nv_lshlrev_b32 v1, 7, v0\nv_add_u32 v1, s3, v1\nv_min_u32 v1, {name}_end-{name}-256, v1\nv_cmp_gt_u32 vcc, {NL}, v0\ns_and_saveexec_b64 s[50:51], vcc\ns_cbranch_execz {name}_nocpf')
        k(f'global_load_dword a255, v1, s[48:49]'+[ '',' nt',' sc1'][cfg.get('cnt',0)])
        k.label(f'{name}_nocpf')
        k('s_mov_b64 exec, s[50:51]')
    XG=8; XT=40; PM=72; B1=80; B2=96; B2N=112; TWC=128; TWS=144; ONES=160; T=164; A1=184; D1=8; A2=200; ZD=200; TT=232
    VGR=1; VXR=3; VZW=5; VZR=6; VST=7; VSR=236; VOUT=237; VF=238; VE=239; VMX=238; VJ=247; VNON=244; VOUT2=246
    k(f'v_lshrrev_b32 v{T}, 6, v0\nv_and_b32 v{VL}, 63, v0\nv_and_b32 v{VN}, 15, v0\nv_readfirstlane_b32 s{sWave}, v{T}\nv_bfe_u32 v{VG}, v0, 4, 2\nv_lshlrev_b32 v{VTO}, 4, v{VL}')
    w=grp_word()
    k(f's_bfe_u32 s{sRb}, s2, 0x20001\ns_lshl_b32 s{sRb}, s{sRb}, 2\ns_bfe_u32 s3, s2, 0x20003\ns_add_u32 s3, s3, s{sRb}\ns_lshl_b32 s3, s3, 2')
    k(f's_mov_b32 s48, {hex(w&0xffffffff)}\ns_mov_b32 s49, {hex(w>>32)}\ns_lshr_b64 s[48:49], s[48:49], s3\ns_and_b32 s{sRb}, s48, 15')
    k(f's_and_b32 s{sHf}, s2, 1\ns_lshr_b32 s{sC8}, s2, 5\ns_lshl_b32 s{sCb}, s{sHf}, 3\ns_add_u32 s{sCb}, s{sCb}, s{sC8}\ns_lshl_b32 s{sTb}, s{sRb}, 2\ns_add_u32 s{sTb}, s{sTb}, s{sWave}')
    sSlo,sWq=50,51
    sH1=46
    if cfg.get('xdup',0): k(f's_lshl_b32 s{sSlo}, s{sC8}, 4\ns_add_u32 s{sSlo}, s{sSlo}, s{sRb}\ns_mov_b32 s{sH1}, s{sHf}')
    else: k(f's_and_b32 s3, s2, 7\ns_lshl_b32 s3, s3, 4\ns_lshr_b32 s{sSlo}, s2, 4\ns_add_u32 s{sSlo}, s{sSlo}, s3\ns_bfe_u32 s{sH1}, s2, 0x10003')
    k(f's_lshl_b32 s{sWq}, s{sH1}, 2\ns_add_u32 s{sWq}, s{sWq}, s{sWave}')
    k(f'v_lshrrev_b32 v{T}, 3, v{VL}\nv_and_b32 v{T+1}, 6, v{T}\nv_and_b32 v{T+2}, 7, v{VL}\nv_xor_b32 v{T+1}, v{T+1}, v{T+2}\nv_lshlrev_b32 v{T}, 18, v{T}\nv_lshl_add_u32 v{T}, v{T+1}, 4, v{T}')
    k(f's_lshl_b32 s52, s{sSlo}, 11\ns_lshl_b32 s53, s{sWave}, 9\ns_add_u32 s52, s52, s53\ns_add_u32 s54, s52, {8<<18}\ns_lshl_b32 s55, s{sWave}, 13\ns_add_u32 s55, s55, {L_X}')
    sWl=56
    k(f's_mul_i32 s57, s{sCb}, 448\nv_and_b32 v{VT32}, 31, v0\nv_bfe_u32 v{VH}, v0, 5, 1')
    k('s_waitcnt lgkmcnt(0)')
    stamp(1)
    srd(sXS,pX,2048*2048)
    for p in range(4):
        for rh in range(2):
            k(f's_add_u32 m0, s55, {p*2048+rh*1024-128*p}\ns_nop 0')
            k.vmem(f'buffer_load_dwordx4 v{T}, s[{sXS}:{sXS+3}], s{54 if rh else 52} offen offset:{128*p}{XF} lds',('x',p))
    srd(sWS,pWS,WS_HH)
    def pf_any(ptr,junk,first,nbytes,dst='a255'):
        per=nbytes//128//1024
        srd(sXC,ptr,first+nbytes)
        k(f's_lshl_b32 s3, s2, 2\ns_add_u32 s3, s3, s{sWave}\ns_mul_i32 s3, s3, {per*128}\ns_add_u32 s3, s3, {first}\nv_lshlrev_b32 v{junk}, 7, v{VL}\nv_cmp_gt_u32 vcc, {per}, v{VL}\nv_mov_b32 v{junk+1}, 0x40000000\ns_nop 0\nv_cndmask_b32 v{junk}, v{junk+1}, v{junk}, vcc')
        k.vmem(f'buffer_load_dword {dst}, v{junk}, s[{sXC}:{sXC+3}], s3 offen{PFF}','pf')
    QW=256*7168
    XT_=cfg.get('xt',0)
    def pf_xcd(ptr,i,junk,dst):
        srd(sXC,ptr,1024*7168)
        k(f's_lshr_b32 s3, s2, 3\ns_lshl_b32 s3, s3, 2\ns_add_u32 s3, s3, s{sWave}\ns_bfe_u32 s48, s2, 0x20001\ns_add_u32 s48, s48, {i}\ns_and_b32 s48, s48, 3')
        if ptr==pW1:
            k(f's_lshl_b32 s48, s48, 7\ns_add_u32 s3, s3, s48\ns_mul_i32 s3, s3, {2*7168}\ns_mul_i32 s48, s{sHf}, 3584\ns_add_u32 s3, s3, s48')
            k(f'v_lshlrev_b32 v{junk}, 7, v{VL}\nv_add_u32 v{junk+1}, {7168-28*128}, v{junk}\nv_cmp_gt_u32 vcc, 28, v{VL}\ns_nop 1\nv_cndmask_b32 v{junk}, v{junk+1}, v{junk}, vcc')
        else:
            k(f's_lshl_b32 s48, s48, 7\ns_add_u32 s3, s3, s48\ns_mul_i32 s3, s3, {56*128}\ns_mul_i32 s48, s{sHf}, {1792*2048}\ns_add_u32 s3, s3, s48\nv_lshlrev_b32 v{junk}, 7, v{VL}')
        k(f'v_cmp_gt_u32 vcc, 56, v{VL}\nv_mov_b32 v{junk+1}, 0x40000000\ns_nop 0\nv_cndmask_b32 v{junk}, v{junk+1}, v{junk}, vcc')
        k.vmem(f'buffer_load_dword {dst}, v{junk}, s[{sXC}:{sXC+3}], s3 offen{PFF}','pf')
    pieces=[(pW1,0),(pW1,QW),(pW1,3*QW),(pW1,2*QW),(pW2,0),(pW2,2*QW),(pW2,QW),(pW2,3*QW)]
    def pf_piece(junk,dst='a255'):
        nonlocal pieces
        if not pieces: return
        n_=8-len(pieces); p_,o_=pieces.pop(0)
        if XT_&(1 if p_==pW1 else 2): pf_xcd(p_,n_&3,junk,dst)
        else: pf_any(p_,junk,o_,QW,dst)
    def pf_w123(ptr,first,nbytes,junk):
        per=-(-nbytes//128//768)
        L=k.newlabel('pf3w')
        k(f's_cmp_eq_u32 s{sWave}, 0\ns_cbranch_scc1 {L}')
        srd(sXC,ptr,first+nbytes)
        k(f's_mul_i32 s3, s2, 3\ns_add_u32 s3, s3, s{sWave}\ns_sub_u32 s3, s3, 1\ns_mul_i32 s3, s3, {per*128}\ns_add_u32 s3, s3, {first}\nv_lshlrev_b32 v{junk}, 7, v{VL}\nv_cmp_gt_u32 vcc, {per}, v{VL}\nv_mov_b32 v{junk+1}, 0x40000000\ns_nop 0\nv_cndmask_b32 v{junk}, v{junk+1}, v{junk}, vcc')
        k(f'buffer_load_dword a255, v{junk}, s[{sXC}:{sXC+3}], s3 offen{PFF}')
        k.label(L)
    plan=str(cfg.get('plan',30010000)).zfill(8)
    def pf_point(i,junk,dst='a255'):
        for _ in range(int(plan[i])): pf_piece(junk,dst)
    if cfg.get('pf0',0):
        for _ in range(cfg['pf0']): pf_piece(242)
    if cfg.get('tlb',0):
        PG=cfg.get('pg',21)
        for (ptr,nb) in ((pWS,34<<20),(pW1,1024*7168),(pW2,1024*7168),(pOUT,4<<20)):
            srd(sXC,ptr,nb)
            for rnd in range(-(-nb>>PG)//256+1 if PG<19 else 1):
                k(f'v_lshlrev_b32 v242, {PG}, v0\ns_mov_b32 s3, {rnd*256<<PG}')
                k.vmem(f'buffer_load_dword a255, v242, s[{sXC}:{sXC+3}], s3 offen sc1','pf')
    srd(sB,pDBG,256)
    Ln=k.newlabel('non')
    k(f's_or_b32 s3, s2, s{sWave}\ns_cmp_lg_u32 s3, 0\ns_cbranch_scc1 {Ln}\ns_and_b32 s48, s{sNon}, -8\ns_or_b32 s48, s48, 8\nv_mov_b32 v{VNON}, s48\nv_mov_b32 v{VNON+1}, s{sNon+1}\nv_mov_b32 v{VJ}, 0\ns_mov_b64 exec, 1')
    k(f'buffer_store_dwordx2 {v(VNON,2)}, v{VJ}, s[{sB}:{sB+3}], 0 offen sc1\ns_mov_b64 exec, -1')
    k.label(Ln)
    k(f's_sub_u32 s3, {1024*7168}, s57')
    k(f's_add_u32 s{sW}, s{pW1}, s57\ns_addc_u32 s{sW+1}, s{pW1+1}, 0\ns_and_b32 s{sW+1}, s{sW+1}, 0xffff\ns_mov_b32 s{sW+2}, s3\ns_mov_b32 s{sW+3}, 0x20000')
    k(f'v_and_b32 v{T+1}, 6, v{VN}\nv_xor_b32 v{T+1}, v{T+1}, v{VG}\nv_lshlrev_b32 v{T+2}, 7, v{VN}\nv_add_u32 v{T+2}, s55, v{T+2}\nv_lshl_add_u32 v{VGR}, v{T+1}, 4, v{T+2}\nv_xor_b32 v{VGR+1}, 64, v{VGR}')
    k(f'v_bfe_u32 v{T+1}, v0, 2, 3\nv_lshlrev_b32 v{T+2}, 7, v{T+1}\nv_and_b32 v{T+1}, 6, v{T+1}\nv_lshlrev_b32 v{T+1}, 4, v{T+1}\nv_and_b32 v{T+3}, 32, v{VL}\nv_lshlrev_b32 v{T+3}, 1, v{T+3}\nv_xor_b32 v{T+1}, v{T+1}, v{T+3}')
    k(f'v_and_b32 v{T+3}, 3, v0\nv_lshlrev_b32 v{T+3}, 3, v{T+3}\nv_add3_u32 v{T+2}, v{T+2}, v{T+3}, s55\nv_add_u32 v{VXR}, v{T+2}, v{T+1}\nv_xor_b32 v{VXR+1}, 32, v{VXR}')
    k(f'v_and_b32 v{T+1}, 7, v0\nv_mul_u32_u24 v{VZW}, {ZSTR}, v{T+1}\nv_and_b32 v{T+2}, 8, v0\nv_lshlrev_b32 v{T+2}, 3, v{T+2}\nv_lshl_add_u32 v{T+2}, v{VG}, 3, v{T+2}\ns_add_u32 s3, s53, {L_Z}\nv_add3_u32 v{VZW}, v{VZW}, v{T+2}, s3')
    k(f'v_lshrrev_b32 v{T+4}, 5, v{VL}\nv_lshlrev_b32 v{T+4}, 9, v{T+4}\nv_bfe_u32 v{T+5}, v0, 2, 2\nv_lshl_add_u32 v{T+4}, v{T+5}, 6, v{T+4}')
    k(f'v_and_b32 v{T+5}, 16, v0\nv_lshlrev_b32 v{T+5}, 1, v{T+5}\nv_add3_u32 v{T+4}, v{T+4}, v{T+5}, v{T+3}\ns_mul_i32 s3, s{sWave}, {2*ZSTR}\ns_add_u32 s3, s3, {L_Z}\nv_add_u32 v{VZR}, s3, v{T+4}')
    k(f'v_lshrrev_b32 v{T+4}, 2, v{VN}\nv_cmp_eq_u32 vcc, v{T+4}, v{VG}\ns_lshl_b32 s3, s{sWave}, 3\ns_add_u32 s3, s3, {L_ST}\nv_lshl_add_u32 v{T+5}, v{VN}, 5, s3')
    k(f'v_lshlrev_b32 v{T+6}, 3, v{VL}\nv_add_u32 v{T+6}, {L_DUM}, v{T+6}\nv_cndmask_b32 v{VST}, v{T+6}, v{T+5}, vcc')
    k(f'v_and_b32 v{T+4}, 1, v{VG}\nv_lshlrev_b32 v{T+4}, 2, v{T+4}\nv_xor_b32 v{T+5}, v{VN}, v{T+4}\nv_lshlrev_b32 v{T+6}, 5, v{T+5}\nv_add_u32 v{VSR}, {L_ST}, v{T+6}')
    k(f's_lshl_b32 s31, s{sH1}, 7\ns_add_u32 s31, s31, s{sSlo}\ns_lshl_b32 s31, s31, 7\ns_add_u32 s31, s31, {WS_R1}\nv_lshlrev_b32 v{VMX}, 2, v{T+5}\nv_cmp_gt_u32 vcc, 16, v0\nv_mov_b32 v{VE}, 0x40000000\ns_nop 0\nv_cndmask_b32 v{VMX}, v{VE}, v{VMX}, vcc')
    mA,mB,mC,mE=16,18,20,22
    k(f'v_and_b32 v{T+5}, 3, v0\nv_cmp_eq_u32 s[{mA}:{mA+1}], 1, v{T+5}\nv_cmp_eq_u32 s[{mB}:{mB+1}], 2, v{T+5}\nv_cmp_eq_u32 s[{mC}:{mC+1}], 3, v{T+5}')
    k(f's_mov_b32 s28, 0x10001\ns_mov_b32 s29, 0')
    k(f's_lshl_b32 s3, s{sH1}, 3\nv_add_u32 v{T+7}, s3, v{T+1}\nv_lshrrev_b32 v{T+5}, 1, v{T+7}\nv_cmp_eq_u32 vcc, 1, v{T+7}\nv_and_b32 v{T+6}, 1, v{T+7}\ns_nop 0\nv_cndmask_b32 v{T+5}, v{T+5}, 8, vcc\nv_cndmask_b32 v{T+6}, v{T+6}, 0, vcc')
    k(f'v_and_b32 v{VE}, 3, v0\nv_mul_u32_u24 v{VE}, {2*ZSTR}, v{VE}\nv_add_u32 v{VE}, {L_Z}, v{VE}')
    k(f'v_cvt_f32_u32 v{T+5}, v{T+5}\nv_cvt_f32_u32 v{T+6}, v{T+6}\nv_cvt_f32_u32 v{T+4}, v{T+4}\nv_mul_f32 v{T+5}, {fl(1/16)}, v{T+5}\nv_mul_f32 v{T+6}, {fl(0.25)}, v{T+6}')
    k(f'v_fmac_f32 v{T+6}, v{T+5}, v{T+4}')
    for i in range(8): k(f'v_fmamk_f32 v{PM+i}, v{T+5}, {fl((i&3)+8*(i>>2))}, v{T+6}')
    for i in range(8): k(f'v_cos_f32 v{PM+i}, v{PM+i}')
    k(f'v_lshrrev_b32 v{T+4}, 3, v{VN}\nv_lshrrev_b32 v{T+5}, 1, v{VG}\nv_cmp_eq_u32 vcc, v{T+4}, v{T+5}')
    for i in range(4): k(f'v_mov_b32 v{ONES+i}, 0x3f803f80')
    for i in range(8): k(f'v_cndmask_b32 v{PM+i}, 0, v{PM+i}, vcc')
    E1=T+7; H4=T+8
    k(f'v_and_b32 v{T+4}, 4, v0\nv_lshlrev_b32 v{T+4}, 2, v{T+4}\nv_and_b32 v{T+5}, 3, v0\nv_bfe_u32 v{T+6}, v0, 3, 2\nv_lshl_add_u32 v{T+5}, v{T+6}, 2, v{T+5}\nv_add_u32 v{T+4}, v{T+4}, v{T+5}')
    k(f'v_lshlrev_b32 v{T+9}, 31, v{T+4}\nv_lshrrev_b32 v{T+10}, 16, v{T+9}\nv_or_b32 v{T+9}, v{T+9}, v{T+10}')
    k(f'v_cvt_f32_u32 v{E1}, v{T+4}\nv_lshrrev_b32 v{H4}, 5, v{VL}\nv_cvt_f32_u32 v{H4}, v{H4}')
    k(f'v_mul_f32 v{T+4}, {fl(1/32)}, v{E1}\nv_mul_f32 v{T+5}, {fl(8.0)}, v{H4}\nv_mul_f32 v{T+5}, v{T+5}, v{T+4}')
    S=A2
    for i in range(8): k(f'v_fmamk_f32 v{S+i}, v{T+4}, {fl(i)}, v{T+5}')
    for i in range(8): k(f'v_sin_f32 v{S+8+i}, v{S+i}')
    for i in range(8): k(f'v_cos_f32 v{S+i}, v{S+i}')
    for i in range(4): k(f'v_cvt_pk_bf16_f32 v{B1+8+i}, -v{S+8+2*i}, -v{S+9+2*i}')
    for i in range(4): k(f'v_cvt_pk_bf16_f32 v{B1+i}, v{S+2*i}, v{S+1+2*i}')
    for i in range(4): k(f'v_xor_b32 v{B1+4+i}, v{B1+i}, v{T+9}\nv_xor_b32 v{B1+12+i}, v{B1+8+i}, v{T+9}')
    k(f'v_mul_f32 v{T+4}, {fl(1/1024)}, v{E1}\nv_mul_f32 v{T+5}, 4.0, v{H4}\nv_mul_f32 v{T+5}, v{T+5}, v{T+4}')
    for r in range(16): k(f'v_fmamk_f32 v{TWC+r}, v{T+4}, {fl((r&3)+8*(r>>2))}, v{T+5}')
    for _ in range(cfg.get('pfc1',0)): pf_piece(TT)
    for r in range(16): k(f'v_sin_f32 v{TWS+r}, v{TWC+r}')
    for r in range(16): k(f'v_cos_f32 v{TWC+r}, v{TWC+r}')
    k(f'v_cvt_f32_u32 v{T+4}, v{VN}\nv_mul_f32 v{T+4}, {fl(1/32)}, v{T+4}\nv_mul_f32 v{T+5}, 4.0, v{H4}\nv_mul_f32 v{T+5}, v{T+5}, v{T+4}')
    k(f'v_and_b32 v{T+6}, 1, v{VG}\nv_cvt_f32_u32 v{T+6}, v{T+6}\nv_fmac_f32 v{T+5}, {fl(0.25)}, v{T+6}')
    k(f'v_lshlrev_b32 v{T+9}, 31, v{VN}\nv_lshrrev_b32 v{T+10}, 16, v{T+9}\nv_or_b32 v{T+9}, v{T+9}, v{T+10}')
    for i in range(8): k(f'v_fmamk_f32 v{S+i}, v{T+4}, {fl((i&3)+8*(i>>2))}, v{T+5}')
    for i in range(8): k(f'v_sin_f32 v{S+8+i}, v{S+i}')
    for i in range(8): k(f'v_cos_f32 v{S+i}, v{S+i}')
    for i in range(4): k(f'v_cvt_pk_bf16_f32 v{B2+8+i}, v{S+8+2*i}, v{S+9+2*i}')
    for i in range(4): k(f'v_cvt_pk_bf16_f32 v{B2+i}, v{S+2*i}, v{S+1+2*i}')
    for i in range(4): k(f'v_xor_b32 v{B2+4+i}, v{B2+i}, v{T+9}\nv_xor_b32 v{B2+12+i}, v{B2+8+i}, v{T+9}')
    for _ in range(cfg.get('pfc2',0)): pf_piece(TT)
    for i in range(16): k(f'v_xor_b32 v{B2N+i}, 0x80000000, v{B2+i}')
    VB=cfg.get('vblk',1)
    if VB:
        k(f'v_lshlrev_b32 v{T+5}, 4, v{VG}\nv_lshl_add_u32 v{T+5}, v{VN}, 14, v{T+5}\ns_lshl_b32 s3, s{sSlo}, 6\nv_add_u32 v{VOUT}, s3, v{T+5}\nv_add_u32 v{VOUT2}, 0x2000, v{VOUT}')
    else:
        k(f'v_lshlrev_b32 v{T+5}, 4, v{VG}\nv_lshl_add_u32 v{T+5}, v{VN}, 6, v{T+5}\ns_lshl_b32 s3, s{sSlo}, 10\nv_add_u32 v{VOUT}, s3, v{T+5}\nv_add_u32 v{VOUT2}, 0x20000, v{VOUT}')
    k(f's_lshl_b32 s58, s{sWq}, 18\ns_sub_u32 s59, 16, s{sWq}\ns_cmp_eq_u32 s{sWq}, 0\ns_cselect_b32 s59, 8, s59\ns_lshl_b32 s59, s59, 18\nv_mov_b32 v{VJ}, 0')
    def x2_early():
        q=A2
        k(f's_lshl_b32 s3, s{sWave}, 9\ns_add_u32 s3, s3, s{sRb}\nv_lshl_add_u32 v{q}, v{VT32}, 4, s3')
        k(f'v_lshlrev_b32 v{q+2}, 5, v{VH}\ns_lshl_b32 s3, s{sCb}, 6\nv_add_u32 v{q+2}, s3, v{q+2}\nv_lshl_add_u32 v{q+3}, v{q}, 11, v{q+2}')
        k(f'v_sub_u32 v{q+1}, 2048, v{q}\nv_and_b32 v{q+1}, 2047, v{q+1}\nv_lshlrev_b32 v{q+6}, 11, v{q+1}\nv_sub_u32 v{q+4}, v{q+6}, v{q+2}\nv_add_u32 v{q+4}, {2048-32}, v{q+4}')
        k(f'v_add_u32 v{q+5}, 32, v{q+4}\nv_add_u32 v{q+6}, 1024, v{q+6}\nv_cmp_eq_u32 vcc, 0, v{q+2}\ns_nop 1\nv_cndmask_b32 v{q+5}, v{q+5}, v{q+6}, vcc')
        for i in range(2): k.vmem(f'buffer_load_dwordx4 a[{4*i}:{4*i+3}], v{q+3}, s[{sXS}:{sXS+3}], 0 offen offset:{16*i}{XF}','x2')
        for i in range(2): k.vmem(f'buffer_load_dwordx4 a[{8+4*i}:{11+4*i}], v{q+4}, s[{sXS}:{sXS+3}], 0 offen offset:{16*i}{XF}','x2')
        k.vmem(f'buffer_load_dword a16, v{q+5}, s[{sXS}:{sXS+3}], 0 offen{XF}','x2')
    if cfg.get('x2pos',0)==0: x2_early()
    G=T; SM=T+4
    for p in range(4):
        k.wait(vm=[('x',p)])
        for sub in range(2): k.lds(f'ds_read_b128 {v(XG+8*p+4*sub,4)}, v{VGR+sub} offset:{2048*p}',('g',2*p+sub))
    stamp(2)
    if cfg.get('x2pos',0)==1: x2_early()
    k.vmem(f'buffer_load_dwordx2 {v(VNON,2)}, v{VJ}, s[{sB}:{sB+3}], 0 offen sc1','non')
    pf_point(0,TT)
    for q in range(8):
        k.wait(lg=[('g',q)])
        k(f'v_mfma_f32_16x16x32_bf16 {v(G,4)}, {v(XG+4*q,4)}, {v(XG+4*q,4)}, {"0" if q==0 else v(G,4)}')
        k(f'v_mfma_f32_16x16x32_bf16 {v(SM,4)}, {v(ONES,4)}, {v(XG+4*q,4)}, {"0" if q==0 else v(SM,4)}')
    for t in range(4):
        k.lds(f'ds_read_b64_tr_b16 {v(XT+4*t,2)}, v{VXR+(t&1)} offset:{2048*(t>>1)}','xt')
        k.lds(f'ds_read_b64_tr_b16 {v(XT+4*t+2,2)}, v{VXR+(t&1)} offset:{2048*(t>>1)+1024}','xt')
    k(f'v_cndmask_b32 v{SM+1}, v{G}, v{G+1}, s[{mA}:{mA+1}]\nv_cndmask_b32 v{SM+1}, v{SM+1}, v{G+2}, s[{mB}:{mB+1}]\nv_cndmask_b32 v{SM+1}, v{SM+1}, v{G+3}, s[{mC}:{mC+1}]')
    k.lds(f'ds_write_b64 v{VST}, {v(SM,2)}','sw')
    for t in range(4,8):
        k.lds(f'ds_read_b64_tr_b16 {v(XT+4*t,2)}, v{VXR+(t&1)} offset:{2048*(t>>1)}','xt2')
        k.lds(f'ds_read_b64_tr_b16 {v(XT+4*t+2,2)}, v{VXR+(t&1)} offset:{2048*(t>>1)+1024}','xt2')
    pf_point(1,TT)
    k.wait(lg=['sw']); k('s_barrier')
    R=A1
    for q in range(2): k.lds(f'ds_read_b128 {v(R+4*q,4)}, v{VSR} offset:{16*q}','sr')
    k.wait(lg=['sr'])
    for a_,b_ in ((0,2),(4,6),(0,4)):
        k(f'v_pk_add_f32 {v(R+a_,2)}, {v(R+a_,2)}, {v(R+b_,2)}')
    k(f'v_mul_f32 v{R+3}, {fl(1/1024)}, v{R}\nv_mul_f32 v{R+2}, v{R+3}, v{R+3}\nv_mul_f32 v{R+1}, {fl(1/1024)}, v{R+1}\nv_sub_f32 v{R+1}, v{R+1}, v{R+2}')
    k(f'v_max_f32 v{R+1}, 0, v{R+1}\nv_add_f32 v{R+1}, {fl(1e-5)}, v{R+1}\nv_rsq_f32 v{R+1}, v{R+1}')
    M=R+4; CI=G
    k(f'v_mov_b32 v{CI}, 0\nv_mul_f32 v{R}, -v{R+3}, v{R+1}')
    k(f'v_mov_b32 v{VSR}, v{R+3}')
    for i in range(8):
        ln=(i&3)+8*(i>>2)
        k(f'v_mul_f32_dpp v{M+i}, v{R+1}, v{PM+i} row_newbcast:{ln} row_mask:0xf bank_mask:0xf')
    for i in range(8):
        ln=(i&3)+8*(i>>2)
        k(f'v_fmac_f32_dpp v{CI}, v{R}, v{PM+i} row_newbcast:{ln} row_mask:0xf bank_mask:0xf')
    MH=SM; ML=T+8
    for i in range(4): k(f'v_cvt_pk_bf16_f32 v{MH+i}, v{M+2*i}, v{M+2*i+1}')
    k(f'v_mov_b32 v{CI+1}, v{CI}')
    for i in range(2):
        k(f'v_lshlrev_b32 v{R+12}, 16, v{MH+i}\nv_and_b32 v{R+13}, 0xffff0000, v{MH+i}\nv_pk_add_f32 {v(M+2*i,2)}, {v(M+2*i,2)}, {v(R+12,2)} neg_lo:[0,1] neg_hi:[0,1]')
    k(f'v_permlane16_swap_b32 v{CI}, v{CI+1}')
    for i in range(2,4):
        k(f'v_lshlrev_b32 v{R+12}, 16, v{MH+i}\nv_and_b32 v{R+13}, 0xffff0000, v{MH+i}\nv_pk_add_f32 {v(M+2*i,2)}, {v(M+2*i,2)}, {v(R+12,2)} neg_lo:[0,1] neg_hi:[0,1]')
        if i==2: k(f'v_add_f32 v{CI}, v{CI}, v{CI+1}\nv_mov_b32 v{CI+1}, v{CI}')
    k(f'v_permlane32_swap_b32 v{CI}, v{CI+1}')
    for i in range(4): k(f'v_cvt_pk_bf16_f32 v{ML+i}, v{M+2*i}, v{M+2*i+1}')
    k(f'v_add_f32 v{CI}, v{CI}, v{CI+1}\nv_mov_b32 v{CI+1}, v{CI}\nv_mov_b32 v{CI+2}, v{CI}\nv_mov_b32 v{CI+3}, v{CI}')
    k.wait(lg=['xt2']); k('s_nop 0')
    for t in range(8): k(f'v_mfma_f32_16x16x32_bf16 {v(ZD+4*t,4)}, {v(XT+4*t,4)}, {v(MH,4)}, {v(CI,4)}')
    for t in range(8): k(f'v_mfma_f32_16x16x32_bf16 {v(ZD+4*t,4)}, {v(XT+4*t,4)}, {v(ML,4)}, {v(ZD+4*t,4)}')
    k('s_nop 0')
    for t in range(8):
        k(f'v_cvt_pk_bf16_f32 v{ZD+4*t}, v{ZD+4*t}, v{ZD+4*t+1}\nv_cvt_pk_bf16_f32 v{ZD+4*t+1}, v{ZD+4*t+2}, v{ZD+4*t+3}')
        k.lds(f'ds_write_b64 v{VZW}, {v(ZD+4*t,2)} offset:{128*(t>>1)+32*(t&1)}','zw')
    k.wait_all(vm=False); k('s_barrier')
    for q in range(2):
        for ks in range(2):
            for hf in range(2):
                k.lds(f'ds_read_b64_tr_b16 {v(A1+8*q+4*ks+2*hf,2)}, v{VZR} offset:{q*ZSTR+(16*ks+4*hf)*64}',('a1',q,ks))
    pf_point(2,TT)
    EP=240
    k.lds(f'ds_read_u16 v{EP+2}, v{VE}','ez')
    k.lds(f'ds_read_u16 v{EP+3}, v{VE} offset:{ZSTR}','ez')
    UR,UI,VR,VI=D1,D1+16,D1+32,D1+48
    for q,(dr,di) in enumerate(((UR,UI),(VR,VI))):
        for ks in range(2):
            k.wait(lg=[('a1',q,ks)])
            k(f'v_mfma_f32_32x32x16_bf16 {v(dr,16)}, {v(A1+8*q+4*ks,4)}, {v(B1+4*ks,4)}, {"0" if ks==0 else v(dr,16)}')
            k(f'v_mfma_f32_32x32x16_bf16 {v(di,16)}, {v(A1+8*q+4*ks,4)}, {v(B1+8+4*ks,4)}, {"0" if ks==0 else v(di,16)}')
    k.wait(lg=['ez'])
    k(f's_xor_b32 s30, s{sH1}, 1\ns_mov_b32 s31_, 0'.replace('s31_','s29'))
    k(f'v_lshl_or_b32 v{TT}, v{EP+3}, 16, v{EP+2}\nv_xor_b32 v{TT+1}, 0x80000000, v{TT}\ns_mov_b32 s16, s30\ns_mov_b32 s17, 0\ns_nop 0')
    k(f'v_cndmask_b32 v{EP+2}, v{TT}, v{EP+2}, s[16:17]\nv_cndmask_b32 v{EP+3}, v{TT+1}, v{EP+3}, s[16:17]\ns_nop 4')
    k(f's_cmp_eq_u32 s{sWq}, 0\ns_cbranch_scc1 {name}_nocomb')
    for r in range(0,16,2):
        t0=TT+(r%4)
        k(f'v_pk_add_f32 {v(t0,2)}, {v(UR+r,2)}, {v(VI+r,2)}')
        k(f'v_pk_add_f32 {v(UR+r,2)}, {v(UR+r,2)}, {v(VI+r,2)} neg_lo:[0,1] neg_hi:[0,1]')
        k(f'v_pk_add_f32 {v(VI+r,2)}, {v(UI+r,2)}, {v(VR+r,2)} neg_lo:[0,1] neg_hi:[0,1]')
        k(f'v_pk_add_f32 {v(UI+r,2)}, {v(UI+r,2)}, {v(VR+r,2)}')
        k(f'v_pk_mov_b32 {v(VR+r,2)}, {v(t0,2)}, {v(t0,2)} op_sel:[0,1]')
    k.label(f'{name}_nocomb')
    for o,(dr,di) in enumerate(((UR,UI),(VR,VI))):
        for r in range(0,16,2):
            t0=T+(r%4)*2
            k(f'v_pk_mul_f32 {v(t0,2)}, {v(di+r,2)}, {v(TWS+r,2)}')
            k(f'v_pk_mul_f32 {v(t0+2,2)}, {v(dr+r,2)}, {v(TWS+r,2)}')
            k(f'v_pk_fma_f32 {v(dr+r,2)}, {v(dr+r,2)}, {v(TWC+r,2)}, {v(t0,2)}')
            k(f'v_pk_fma_f32 {v(di+r,2)}, {v(di+r,2)}, {v(TWC+r,2)}, {v(t0+2,2)} neg_lo:[0,0,1] neg_hi:[0,0,1]')
            k(f'v_cvt_pk_bf16_f32 v{A2+16*o+r//2}, v{dr+r}, v{dr+r+1}')
            k(f'v_cvt_pk_bf16_f32 v{A2+16*o+8+r//2}, v{di+r}, v{di+r+1}')
        k('s_nop 1')
        for (d,B) in ((di,B2N),(dr,B2)):
            first=True
            for part in range(2):
                for ks in range(2):
                    k(f'v_mfma_f32_32x32x16_bf16 {v(d,16)}, {v(A2+16*o+8*part+4*ks,4)}, {v(B+8*part+4*ks,4)}, {"0" if first else v(d,16)}')
                    first=False
    k.vmem(f'buffer_store_dword v{VSR}, v{VMX}, s[{sWS}:{sWS+3}], s31 offen offset:64{SC}','st1')
    for o,(d,dn) in enumerate(((UR,UI),(VR,VI))):
        k(f'v_cndmask_b32 v{d}, v{d}, v{dn}, s[28:29]')
        for r in range(8): k(f'v_cvt_pk_bf16_f32 v{d+r}, v{d+2*r}, v{d+2*r+1}')
        k('s_nop 1')
        for r in range(4): k(f'v_permlane16_swap_b32 v{d+r}, v{d+4+r}')
        for hf in range(2): k.vmem(f'buffer_store_dwordx4 {v(d+4*hf,4)}, v{VOUT2 if hf else VOUT}, s[{sWS}:{sWS+3}], s{58+o} offen{SC}','st1')
    stamp(3)
    pf_point(3,TT)
    CT=8; VFr=72; FM=96; FD=112; XD=128; XM=136; EF=146; MXV=158; ACC2=160; MY=176; T=220; VRD=1; VMA=3; VSA=5; VT0=6; VTM=4; VDV=7
    VWA=202; VWAr=206; VWAs=210; VWB=211; VWBr=214; VWBs=217
    k(f's_lshl_b32 s3, s{sWave}, 9\ns_add_u32 s52, s3, s{sRb}\nv_lshl_add_u32 v{VT0}, v{VT32}, 4, s52')
    k.wait(vm=['non'])
    Lq=k.newlabel('nspin'); Lr=k.newlabel('nok')
    k(f's_mov_b32 s47, {1<<18}')
    k.label(Lq)
    k(f'v_readfirstlane_b32 s{sNon}, v{VNON}\nv_readfirstlane_b32 s{sNon+1}, v{VNON+1}\ns_sub_u32 s47, s47, 1\ns_cbranch_scc1 {Lr}\ns_cmp_lg_u32 s{sNon}, 0\ns_cbranch_scc1 {Lr}')
    k(f's_sleep 1\nbuffer_load_dwordx2 {v(VNON,2)}, v{VJ}, s[{sB}:{sB+3}], 0 offen sc1\ns_waitcnt vmcnt(0)\ns_branch {Lq}')
    k.label(Lr)
    k(f's_cmp_eq_u32 s{sCb}, 0\ns_cselect_b32 s16, -1, 0\ns_mov_b32 s17, 0\nv_sub_u32 v{VTM}, 2048, v{VT0}\nv_and_b32 v{VTM}, 2047, v{VTM}')
    TF=T+12; BS=T+13
    k(f'v_cvt_f32_u32 v{TF}, v{VT0}\nv_cvt_f32_u32 v{BS}, v{VH}\nv_mul_f32 v{TF}, {fl(1/2048)}, v{TF}\nv_mul_f32 v{BS}, {fl(8.0)}, v{BS}\nv_mul_f32 v{BS}, v{BS}, v{TF}')
    def ctgen(ks):
        S=VFr+16*(ks&1) if False else (VFr if ks&1 else 160)
        for i in range(8): k(f'v_fmamk_f32 v{S+i}, v{TF}, {fl(16*ks+i)}, v{BS}')
        for i in range(8): k(f'v_sin_f32 v{S+8+i}, v{S+i}')
        for i in range(8): k(f'v_cos_f32 v{S+i}, v{S+i}')
        for i in range(4): k(f'v_cvt_pk_bf16_f32 v{CT+(ks+8)*4+i}, v{S+8+2*i}, v{S+9+2*i}')
        for i in range(4): k(f'v_cvt_pk_bf16_f32 v{CT+ks*4+i}, v{S+2*i}, v{S+1+2*i}')
    todo=list(range(8))
    for _ in range(cfg.get('ctpre',5)): ctgen(todo.pop(0))
    k.wait(vm=['st1'])
    signal(31,EP,keep=True)
    stamp(4)
    pf_point(4,T)
    W2P=cfg.get('w2p',0)
    while todo: ctgen(todo.pop(0))
    k(f'v_and_b32 v{T+8}, 15, v{VTM}\nv_lshlrev_b32 v{T+8}, 2, v{T+8}\nv_lshrrev_b32 v{T+9}, 9, v{VTM}\nv_add_u32 v{T+8}, v{T+8}, v{T+9}\nv_bfe_u32 v{T+10}, v{VTM}, 4, 5')
    k(f'v_lshl_add_u32 v{T+11}, v{VH}, 5, v{T+10}\nv_lshlrev_b32 v{T+11}, 4, v{T+11}\nv_lshl_add_u32 v{VMA}, v{T+8}, 16, v{T+11}')
    k(f'v_lshlrev_b32 v{T+10}, 2, v{T+10}\nv_lshl_add_u32 v{T+10}, v{T+8}, 12, v{T+10}\nv_add_u32 v{T+10}, 2048, v{T+10}\ns_lshl_b32 s3, s{sTb}, 12\nv_lshl_add_u32 v{T+9}, v{VT32}, 2, s3\nv_cmp_eq_u32 vcc, 0, v{VH}')
    k(f'v_lshlrev_b32 v{T+2}, 2, v{VT32}\nv_lshl_add_u32 v{VSA}, v{VH}, 11, v{T+2}\nv_cndmask_b32 v{VSM}, v{T+10}, v{T+9}, vcc')
    k(f's_lshl_b32 s20, s{sTb}, 16\ns_lshl_b32 s21, s{sCb}, 11\ns_add_u32 s21, s21, {WS_H1}\ns_add_u32 s20, s20, s21\ns_add_u32 s21, s21, {16*2048}')
    k(f's_lshl_b32 s22, s{sTb}, 12\ns_lshl_b32 s3, s{sCb}, 7\ns_add_u32 s22, s22, s3\ns_add_u32 s22, s22, {WS_ST}')
    CP=243
    k(f'v_and_b32 v{T+8}, 1, v{VL}\nv_lshlrev_b32 v{T+8}, 5, v{T+8}\nv_and_b32 v{T+9}, 16, v{VL}\nv_and_b32 v{T+10}, 2, v{VL}\nv_lshlrev_b32 v{T+10}, 2, v{T+10}\nv_add3_u32 v{CP}, v{T+8}, v{T+9}, v{T+10}')
    k(f'v_bfe_u32 v{T+8}, v{VL}, 2, 2\nv_lshl_add_u32 v{T+8}, v{VH}, 3, v{T+8}\nv_lshl_add_u32 v{VRD}, v{T+8}, 6, v{CP}\nv_add_u32 v{VRD}, {L_V}, v{VRD}')
    k(f's_lshl_b32 s23, s{sRb}, 18\ns_lshl_b32 s3, s{sCb}, 14\ns_add_u32 s23, s23, s3\ns_lshl_b32 s3, s{sWave}, 12\ns_add_u32 s23, s23, s3\ns_add_u32 s28, s3, {L_V}')
    k(f's_sub_u32 s3, 16, s{sRb}\ns_min_u32 s3, s3, s{sRb}\ns_bfe_u32 s30, s3, 0x10002\ns_lshl_b32 s30, s30, 14\ns_add_u32 s30, s30, {WS_R1}\ns_and_b32 s3, s3, 3\ns_lshl_b32 s3, s3, 4\ns_add_u32 s29, s30, s3')
    k(f'v_lshlrev_b32 v{T+4}, 7, v{VL}\nv_add_u32 v{T+5}, 0x2000, v{T+4}')
    for i,src in enumerate((VT0,VTM)):
        k(f'v_and_b32 v{T+9+i}, 127, v{src}\nv_lshlrev_b32 v{T+9+i}, 7, v{T+9+i}\nv_lshrrev_b32 v{T+8}, 7, v{src}\nv_lshl_add_u32 v{T+9+i}, v{T+8}, 2, v{T+9+i}')
    k(f'v_lshlrev_b32 v{T+6}, 1, v{VL}\nv_add_u32 v{T+6}, {L_E}, v{T+6}\nv_lshlrev_b32 v{T+7}, 4, v{VH}\nv_add_u32 v{T+7}, {L_E}, v{T+7}')
    k(f's_cmp_ge_u32 s{sRb}, 8\ns_cselect_b64 s[18:19], -1, 0')
    t0=T+14
    k(f'v_lshrrev_b32 v{t0}, 4, v{VL}\nv_lshlrev_b32 v{t0+1}, 2, v{t0}\nv_xor_b32 v{t0+1}, v{VN}, v{t0+1}\nv_lshlrev_b32 v{t0+1}, 4, v{t0+1}\ns_lshl_b32 s3, s{sWave}, 4\nv_add_u32 v{t0}, s3, v{t0}\nv_mul_u32_u24 v{t0+2}, 7168, v{t0}')
    for q in range(4):
        k(f'v_add3_u32 v{VWA+q}, v{t0+2}, v{t0+1}, s3'.replace('s3',f's48') if False else f's_mov_b32 s48, {q*(4*7168-1024)}\nv_add3_u32 v{VWA+q}, v{t0+2}, v{t0+1}, s48')
        k(f's_mov_b32 s48, {63*7168+4096-q*(4*7168+1024)}\nv_sub_u32 v{VWAr+q}, s48, v{t0+2}\nv_add_u32 v{VWAr+q}, v{VWAr+q}, v{t0+1}')
    k(f'v_add_u32 v{VWAs}, {961*7168-4096}, v{VWAr}\nv_add_u32 v{t0+2}, {512*7168}, v{t0+1}\nv_cmp_eq_u32 vcc, 0, v{t0}\ns_mul_i32 s3, s{sWave}, 192\nv_add_u32 v{t0}, s3, v{VL}\nv_cndmask_b32 v{VWAs}, v{VWAs}, v{t0+2}, vcc')
    for q in range(3):
        k(f'v_mul_u32_u24 v{t0+1}, 43691, v{t0}\nv_lshrrev_b32 v{t0+1}, 19, v{t0+1}\nv_mul_u32_u24 v{t0+2}, 12, v{t0+1}\nv_sub_u32 v{t0+2}, v{t0}, v{t0+2}\nv_lshlrev_b32 v{t0+2}, 4, v{t0+2}\nv_mul_u32_u24 v{t0+3}, 7168, v{t0+1}')
        k(f'v_add_u32 v{VWB+q}, v{t0+3}, v{t0+2}\nv_sub_u32 v{t0+3}, {63*7168+4096-1024*q}, v{t0+3}\nv_add_u32 v{VWBr+q}, v{t0+3}, v{t0+2}')
        if q: k(f'v_subrev_u32 v{VWB+q}, {1024*q}, v{VWB+q}')
        else: k(f'v_add_u32 v{VWBs}, {961*7168-4096}, v{VWBr}\nv_add_u32 v{t0+3}, {512*7168}, v{t0+2}\nv_cmp_eq_u32 vcc, 0, v{t0+1}\ns_nop 1\nv_cndmask_b32 v{VWBs}, v{VWBs}, v{t0+3}, vcc')
        if q<2: k(f'v_add_u32 v{t0}, 64, v{t0}')
    sWlA,sWlB=56,44
    k(f's_lshl_b32 s{sWlA}, s{sWave}, 12')
    sCA,sCB=84,85
    k(f's_bitcmp1_b32 s{sC8}, 0\ns_cselect_b32 s{sCA}, 192, 0\ns_cselect_b32 s{sCB}, 0, 256')
    NS=8; NSTG=32; sWoff,sToff=52,53
    state={'woff':None,'toff':None,'m0':None}
    def dma(S,q):
        p_=S>>4; s_=S&15
        sp=(s_==8 and q==0)
        want = (p_, 0 if sp else (s_*64*7168 if s_<8 else (1536-64*s_-63)*7168-4096))
        if state['woff']!=want:
            k(f's_add_u32 s{sWoff}, s{sCB if p_ else sCA}, {want[1]}'); state['woff']=want
        if state['m0']!=('W',S):
            k(f's_add_u32 m0, s{sWlB if p_ else sWlA}, {(S%NS)*STG3}'); state['m0']=('W',S)
        vo=((VWBs if p_ else VWAs) if sp else ((VWBr if p_ else VWAr) if s_>=8 else (VWB if p_ else VWA))+q)
        return lambda: k.vmem(f'buffer_load_dwordx4 v{vo}, s[{sW}:{sW+3}], s{sWoff} offen offset:{1024*q}{W1F} lds', ('W',S))
    def dma_now(S,q):
        f_=dma(S,q); k('s_nop 0'); f_()
    k.wait(vm=['x2'])
    for i in range(17): k(f'v_accvgpr_read_b32 v{XD+i}, a{i}')
    for r in range(16):
        k(f'v_lshlrev_b32 v{FD+r}, 16, v{XD+r//2}' if r%2==0 else f'v_and_b32 v{FD+r}, 0xffff0000, v{XD+r//2}')
        i=16-r
        k(f'v_lshlrev_b32 v{FM+r}, 16, v{XM+i//2}' if i%2==0 else f'v_and_b32 v{FM+r}, 0xffff0000, v{XM+i//2}')
    EWP=cfg.get('ewpos',2); EW=cfg.get('ew',2)
    PD=EF
    def e_stage():
        for i in range(2):
            k(f'v_cndmask_b32 v{PD+4*i+2}, v{PD+4*i+2}, v{PD+4*i+3}, s[18:19]')
            k(f'ds_write_b16 v{T+6}, v{PD+4*i+2} offset:{128*i}\nds_write_b16_d16_hi v{T+6}, v{PD+4*i+2} offset:{128*i+256}')
        k('s_waitcnt lgkmcnt(0)')
    if W2P//10: pf_w123(pW2,0,(W2P//10)*2*QW,T)
    poll0(T+4,29,PD,True,extra=e_stage)
    stamp(5)
    k(f's_mov_b32 m0, s28\ns_mul_i32 s{sWlB}, s{sWave}, 3072')
    for q in range(4): k.vmem(f'buffer_load_dwordx4 v{VTO}, s[{sWS}:{sWS+3}], s23 offen offset:{q*1024}{SC} lds','v')
    for i in range(2): k.vmem(f'buffer_load_dword v{MXV+i}, v{T+9+i}, s[{sWS}:{sWS+3}], s30 offen offset:64{SC}','mx')
    def rdE(ks): k.lds(f'ds_read_b128 {v(EF+4*(ks%3),4)}, v{T+7} offset:{32*ks}',('er',ks))
    rdE(0); rdE(1)
    for ks in range(16):
        k.wait(lg=[('er',ks)])
        k(f'v_mfma_f32_32x32x16_bf16 {v(MY,16)}, {v(EF+4*(ks%3),4)}, {v(CT+4*ks,4)}, {"0" if ks==0 else v(MY,16)}')
        if ks+2<16: rdE(ks+2)
    k.wait(vm=['mx'])
    k('s_barrier')
    def rd2(ks):
        for q in range(2): k.lds(f'ds_read_b64_tr_b16 {v(VFr+(ks%6)*4+2*q,2)}, v{VRD} offset:{(16*ks+4*q)*64}',('f',ks))
    for ks in range(5): rd2(ks)
    pf_point(5,T)
    k(f'v_pk_add_f32 {v(MXV,2)}, {v(MXV,2)}, {v(MY,2)}')
    lst=[(S,q) for S in range(EW) for q in range(4)] if EWP==2 else []
    for ks in range(16):
        k.wait(lg=[('f',ks)])
        k(f'v_mfma_f32_32x32x16_bf16 {v(ACC2,16)}, {v(VFr+(ks%6)*4,4)}, {v(CT+4*ks,4)}, {"0" if ks==0 else v(ACC2,16)}')
        if ks+5<16: rd2(ks+5)
        F0,which=((FM,1),(FD,0))[ks>>3]; r=2*(ks&7)
        k(f'v_pk_add_f32 {v(F0+r,2)}, {v(F0+r,2)}, {v(MXV,2)} op_sel:[0,{which}] op_sel_hi:[1,{which}] neg_lo:[0,1] neg_hi:[0,1]')
        for _ in range(-(-EW*4//16)):
            if lst: dma_now(*lst.pop(0))
    HD=CT; HM=CT+8; Q=CT+16
    k(f'v_mov_b32 v{VM}, v{MXV}\ns_nop 10')
    for (F0,H,which) in ((FM,HM,1),(FD,HD,0)):
        if which==0: k(f'v_cndmask_b32 v{ACC2}, v{ACC2}, 0, s[16:17]')
        for jj in range(2):
            for r in range(8*jj,8*jj+8,2):
                k(f'v_pk_add_f32 {v(F0+r,2)}, {v(F0+r,2)}, {v(ACC2+r,2)}')
            for r in range(8*jj,8*jj+8,2): k(f'v_cvt_pk_bf16_f32 v{H+r//2}, v{F0+r}, v{F0+r+1}')
            if which: k.vmem(f'buffer_store_dwordx4 {v(HM+4*jj,4)}, v{VMA}, s[{sWS}:{sWS+3}], s21 offen offset:{1024*jj}{SC}','st2')
            else: k.vmem(f'buffer_store_dwordx4 {v(HD+4*jj,4)}, v{VTO}, s[{sWS}:{sWS+3}], s20 offen offset:{1024*jj}{SC}','st2')
    for r in range(0,16,2):
        for (F0,which) in ((FD,0),(FM,1)):
            q=Q+2*which
            if r==0: k(f'v_pk_mul_f32 {v(q,2)}, {v(F0,2)}, {v(F0,2)}')
            else: k(f'v_pk_fma_f32 {v(q,2)}, {v(F0+r,2)}, {v(F0+r,2)}, {v(q,2)}')
    k(f'v_add_f32 v{Q}, v{Q}, v{Q+1}\nv_add_f32 v{Q+2}, v{Q+2}, v{Q+3}\ns_nop 1\nv_permlane32_swap_b32 v{Q}, v{Q+2}\nv_add_f32 v{Q}, v{Q}, v{Q+2}')
    k.vmem(f'buffer_store_dword v{Q}, v{VSA}, s[{sWS}:{sWS+3}], s22 offen{SC}','st2')
    stamp(6)
    LAF=cfg.get('LAF3',7); NB=8
    ACC=[0,64]; NT_=[4,3]; WF=112; OH=144; SQ=OH+40; AUGB=200; VRA=218; VRB=226; T0=228; BF=232
    VWo,VWg,VOA,VPA=240,241,246,247; AU4=244; VBA=242
    TK=256
    k(f'v_bfe_u32 v{T0}, v{VL}, 2, 2\nv_lshl_add_u32 v{T0+1}, v{VH}, 4, v{T0}\nv_lshl_add_u32 v{T0+2}, v{T0+1}, 8, v{CP}\nv_lshlrev_b32 v{T0}, 6, v{T0}')
    for j in range(4): k(f'v_xor_b32 v{T0+3}, {64*j}, v{T0}\nv_add_u32 v{VRA+j}, v{T0+2}, v{T0+3}\nv_add_u32 v{VRA+4+j}, 0x10000, v{VRA+j}')
    k(f'v_mul_u32_u24 v{T0+1}, 192, v{T0+1}\nv_add_u32 v{VRB}, v{T0+1}, v{CP}\nv_add_u32 v{VRB+1}, 0x10000, v{VRB}')
    k(f's_lshl_b32 s3, s{sTb}, 16\ns_add_u32 s3, s3, {WS_H1}')
    srd(sT,pWS,65536,addreg=3)
    k(f's_lshl_b32 s55, s{sRb}, 4\ns_add_u32 s55, s55, s{sCb}\ns_lshl_b32 s55, s55, 6\ns_add_u32 s54, s55, {WS_F3}\ns_add_u32 s55, s55, {WS_F2}')
    k(f's_mul_i32 s3, s{sTb}, {224*1024}\ns_mul_i32 s48, s{sCb}, {14*1024}\ns_add_u32 s3, s3, s48\ns_add_u32 s3, s3, {WS_HH}')
    srd(sO,pWS,14*1024,addreg=3)
    srd(sB,pB1,3584*2)
    k(f's_mov_b32 s46, {WS_ST}')
    k(f'v_lshrrev_b32 v{T0+1}, 3, v{VL}\nv_and_b32 v{T0+2}, 7, v{VL}\nv_and_b32 v{T0+3}, 2, v{T0+1}\nv_lshlrev_b32 v{T0+3}, 1, v{T0+3}\nv_xor_b32 v{T0+2}, v{T0+2}, v{T0+3}\nv_lshlrev_b32 v{T0+2}, 4, v{T0+2}\nv_lshl_add_u32 v{T0+1}, v{T0+1}, 11, v{T0+2}')
    k(f's_lshl_b32 s48, s{sWave}, 14\nv_add_u32 v{VWg}, s48, v{T0+1}\ns_mul_i32 s3, s{sC8}, {224*2048}\nv_add_u32 v{VWo}, s3, v{VWg}')
    k.wait(vm=['st2'])
    signal(55,T0)
    if EWP!=2: EW=0
    WPRE=max(EW,cfg.get('wpre',6))
    for S in range(EW,WPRE):
        for q in range(4): dma_now(S,q)
    k(f's_sub_u32 s3, 16, s{sRb}\ns_and_b32 s3, s3, 15\ns_lshl_b32 s3, s3, 10\ns_lshl_b32 s48, s{sRb}, 10\nv_mov_b32 v{T0}, s3\nv_mov_b32 v{T0+1}, s48\nv_and_b32 v{T0+2}, 1, v{VG}\nv_cmp_eq_u32 vcc, 0, v{T0+2}\ns_mov_b32 s59, {WS_F2}\ns_nop 0\nv_cndmask_b32 v{T0}, v{T0}, v{T0+1}, vcc\nv_lshl_add_u32 v{T0}, v{VN}, 6, v{T0}')
    pf_point(6,SQ+4)
    if W2P%10: pf_w123(pW2,(W2P//10)*2*QW,(W2P%10)*2*QW,SQ+4)
    if W2P: pieces=pieces[:max(0,len(pieces)-2*(W2P//10+W2P%10))] if False else [p for p in pieces if p[0]==pW1]+[(pW2,o) for o in (0,QW,2*QW,3*QW) if o>=2*QW*(W2P//10+W2P%10)]
    if EW==0: k.wait(vm=[('W',0),('W',1)])
    poll0(T0,59,SQ,False)
    stamp(7)
    def tok(sg,_t=0):
        base=(sg//4)*4096
        if state['toff']!=base:
            k(f's_mov_b32 s{sToff}, {base}'); state['toff']=base
        k.vmem(f'buffer_load_dwordx4 {reg(TK+4*sg,4)}, v{VTO}, s[{sT}:{sT+3}], s{sToff} offen offset:{(sg%4)*1024}{TKF}', ('T',sg))
    P0=cfg.get('P0',8)
    for sg in range(P0): tok(sg)
    for i in range(16): k.vmem(f'buffer_load_dword v{SQ+i}, v{VSM}, s[{sWS}:{sWS+3}], s46 offen offset:{128*i}{SC}','sq')
    FR=[(S,u,j) for S in range(NSTG) for u in range(4) for j in range(NT_[S>>4])]
    NFR=len(FR); F0S={}
    for f,(S,u,j) in enumerate(FR): F0S.setdefault(S,f)
    F0S[NSTG]=NFR
    NDq=lambda S: 3 if S>>4 else 4
    pend=[('tok',sg,0) for sg in range(P0,64)]+[('dma',S,q) for S in range(WPRE,NS-1) for q in range(4)]
    def rd(f,q):
        if f>=NFR: return
        S,u,j=FR[f]; slot=S%NS; row=32*(u>>1)+8*(u&1)+4*q
        if S<16: ar=VRA+4*(slot//4)+j; off=row*256
        else: ar=VRB+slot//4; off=row*192+64*j
        k.lds(f'ds_read_b64_tr_b16 {v(WF+(f%NB)*4+2*q,2)}, v{ar} offset:{off+(slot%4)*STG3}', ('R',f))
    events={}
    def at(f,item): events.setdefault(f,[]).append(item)
    def run_events(f,post):
        for ev in events.get(f,[]):
            if ev[0]=='vm': post.append(ev[1])
            elif ev[0]=='valu': post.append(lambda s_=ev[1]: k(s_))
            elif ev[0]=='wait': post.append(lambda t_=ev[1]: k.wait(vm=[t_]))
    V=[('wait','sq')]
    for st_ in (8,4,2,1):
        for i in range(st_): V.append(f'v_add_f32 v{SQ+i}, v{SQ+i}, v{SQ+i+st_}')
    a_=SQ; b_=SQ+1
    V+= [f'v_mov_b32 v{b_}, v{a_}', f'v_mov_b32 v{AUGB+1}, 0', f'v_permlane32_swap_b32 v{a_}, v{b_}', f'v_add_f32 v{a_}, v{a_}, v{b_}',
         f'v_mov_b32 v{b_}, {fl(1e-5)}', f'v_fmac_f32 v{b_}, {fl(1/1024)}, v{a_}', f'v_sqrt_f32 v{a_}, v{b_}',
         f'v_cvt_pk_bf16_f32 v{b_}, v{a_}, v{a_}', f'v_and_b32 v{b_}, 0xffff0000, v{b_}', f'v_sub_f32 v{b_}, v{a_}, v{b_}', f'v_cvt_pk_bf16_f32 v{AUGB}, v{a_}, v{b_}',
         f'v_mul_f32 v{a_}, v{a_}, v{a_}', f'v_cvt_pk_bf16_f32 v{b_}, v{a_}, v{a_}', f'v_and_b32 v{b_}, 0xffff0000, v{b_}', f'v_sub_f32 v{b_}, v{a_}, v{b_}', f'v_cvt_pk_bf16_f32 v{AU4}, v{a_}, v{b_}', f'v_rcp_f32 v{VRS}, v{a_}',
         f'v_mul_f32 v{a_}, v{a_}, v{VM}', f'v_cvt_pk_bf16_f32 v{b_}, v{a_}, v{a_}', f'v_and_b32 v{b_}, 0xffff0000, v{b_}', f'v_sub_f32 v{b_}, v{a_}, v{b_}', f'v_cvt_pk_bf16_f32 v{AU4+1}, v{a_}, v{b_}',
         f'v_and_b32 v{T0}, 4, v{VL}', f'v_lshlrev_b32 v{T0}, 3, v{T0}', f'v_and_b32 v{T0+1}, 3, v{VL}', f'v_lshl_add_u32 v{T0}, v{T0+1}, 1, v{T0}', f'v_and_b32 v{T0+1}, 24, v{VL}', f'v_add_u32 v{T0}, v{T0}, v{T0+1}',
         f'v_lshl_add_u32 v{VBA}, v{VH}, 30, v{T0}']
    for j in range(4): V.append(f'v_mov_b32 v{BF+2*j+1}, 0')
    f1=F0S[cfg.get('sq_use',5)]
    for i,x in enumerate(V): at(f1+2*i, x if isinstance(x,tuple) else ('valu',x))
    assert f1+2*len(V)<F0S[14]
    for p_ in range(2):
        for j in range(NT_[p_]):
            if j==0: at(F0S[16*p_+14],('valu',f's_mov_b32 s59, s57' if p_ else f's_add_u32 s59, s57, s{sCA}'))
            at(F0S[16*p_+14]+2*j,('vm',lambda j=j,p_=p_: k.vmem(f'buffer_load_ushort v{BF+2*j}, v{VBA}, s[{sB}:{sB+3}], s59 offen offset:{64*j}','bf')))
    if cfg.get('trk',0):
        LPW=cfg.get('lpw',4); NP=-(-56//LPW)
        def trk_setup():
            srd(sXC,pW2,1024*7168)
            k(f's_lshl_b32 s3, s2, 2\ns_add_u32 s3, s3, s{sWave}\ns_mul_i32 s58, s3, {LPW*128}\nv_lshlrev_b32 v{T0+2}, 7, v{VL}\nv_cmp_gt_u32 vcc, {LPW}, v{VL}\nv_mov_b32 v{T0+3}, 0x40000000\ns_nop 0\nv_cndmask_b32 v{T0+2}, v{T0+3}, v{T0+2}, vcc')
        trk_setup()
        f_a=F0S[cfg.get('trk0',1)]; f_b=F0S[cfg.get('trk1',24)]
        for i_ in range(NP):
            def one(i_=i_):
                k.vmem(f'buffer_load_dword v{T0+3}, v{T0+2}, s[{sXC}:{sXC+3}], s58 offen','pf')
                k(f's_add_u32 s58, s58, {LPW*128*1024}')
            at(f_a+(f_b-f_a)*i_//NP+3,('vm',one))
    elif cfg.get('qw',0):
        quiet=[]
        def big(first,nb,fpos):
            def go():
                for p in [p for p in pend if p[0]=='dma']: flush(p)
                pf_any(pW2,T0+2,first,nb,f'v{T0+3}')
                pace['quiet']=fpos+cfg.get('qlen',48)
            at(fpos,('vm',go))
        if cfg.get('qw',1)==1: big(0,4*QW,F0S[16]-cfg.get('qpre',2))
        else:
            big(0,2*QW,F0S[16]-cfg.get('qpre',2)); big(2*QW,2*QW,F0S[cfg.get('q2',22)])
    else:
        def pf_one(): pf_piece(T0+2,f'v{T0+3}')
        for i_ in range(8):
            S_=cfg.get('pf3',16)+i_*cfg.get('pf3s',2)
            if S_<NSTG: at(F0S[S_]+cfg.get('pf3o',6),('vm',pf_one))
    later=[]
    def epilogue3(p_):
        A=ACC[p_]; tm=ACC[1-p_]; n_=NT_[p_]
        k.wait(vm=['bf'])
        for j in range(n_): k(f'v_lshl_or_b32 v{BF+2*j}, v{BF+2*j}, 16, v{BF+2*j}')
        k('s_nop 7')
        for j in range(n_): k(f'v_mfma_f32_32x32x8_bf16 {v(A+16*j,16)}, {v(BF+2*j,2)}, {v(AUGB,2)}, {v(A+16*j,16)}')
        k(f's_nop {12-n_}')
        for j in range(n_):
            e=4*p_+j
            for jj in range(2):
                R=A+16*j+8*jj; d=OH+8*e+4*jj; x=tm+8*jj
                for r in range(8): k(f'v_max_f32 v{x+r}, 0, v{R+r}')
                for r in range(0,8,2): k(f'v_pk_mul_f32 {v(R+r,2)}, {v(R+r,2)}, {v(x+r,2)}')
                for r in range(4): k(f'v_cvt_pk_bf16_f32 v{d+r}, v{R+2*r}, v{R+2*r+1}')
                o=(2*e+jj)*1024
                def st_(o=o,d=d):
                    if state['toff']!=o//4096*4096: k(f's_mov_b32 s{sToff}, {o//4096*4096}'); state['toff']=o//4096*4096
                    k.room(1)
                    k.vmem(f'buffer_store_dwordx4 {v(d,4)}, v{VTO}, s[{sO}:{sO+3}], s{sToff} offen offset:{o%4096} sc1',('st3',p_))
                idx=2*j+jj
                if idx<cfg.get('st_now',2) or not cfg.get('st_gap',8): st_()
                else: later.append(st_)
    NS4=32; STG4=4096; NTS=32; C=32*2048; EB=35
    DL=cfg.get('DL',20)
    U=[]
    for e in range(EB): U+= [('G',e),('K',e)]
    for tau in range(EB,56+DL):
        if tau<56: U.append(('G',tau))
        if tau>=EB+DL: U.append(('K',tau-DL))
    NU=len(U); uidx={u_:i for i,u_ in enumerate(U)}
    def estep(e):
        if e<EB: return (e-7)//4, 7*((e-7)//4)+(e-7)%4
        return (e-EB)//3, 7*((e-EB)//3)+4+(e-EB)%3
    def bias_fix(e,sr,unit,two=False):
        i,st_=estep(e)
        if e in (7,EB):
            k(f's_mul_i32 s{sr}, s{sC8}, {7*unit}\ns_add_u32 s{sr}, s{sr}, {7*unit}')
            if two:
                d_=3*unit if e==7 else (-4*unit)&0xffffffff
                k(f's_bitcmp1_b32 s{sC8}, 0\ns_cselect_b32 s3, {d_}, 0\ns_add_u32 s{sr+1}, s{sr}, s3\ns_cselect_b32 s3, 0, {d_}'.replace('s_add_u32 s%d, s%d, s3\ns_cselect_b32 s3, 0, %d'%(sr+1,sr,d_),'s_cselect_b32 s48, 0, %d\ns_add_u32 s%d, s%d, s3'%(d_,sr+1,sr))+f'\ns_add_u32 s{sr}, s{sr}, s48')
        if st_-7*i in (0,4):
            k(f's_cmp_eq_u32 s{sC8}, {7-i}\ns_cselect_b32 s3, {56*unit}, 0\ns_sub_u32 s{sr}, s{sr}, s3')
            if two: k(f's_sub_u32 s{sr+1}, s{sr+1}, s3')
    sG=sW; sGoff=50; sWl4=49; sT4off=51; sBG,sBK,sBT=86,98,46
    st4={'T':None}
    def dma4(n,_q=0):
        part,e=U[n]; sr=sG if part=='G' else sK
        if e<7:
            vo=VWo; k(f's_add_u32 s{sGoff}, s{sCA if e<4 else sCB}, {e*C}')
        else:
            vo=VWg; sb_=sBG if part=='G' else sBK; bias_fix(e,sb_,C,True); i,st_=estep(e); k(f's_add_u32 s{sGoff}, s{sb_+(i&1)}, {st_*C}')
        k(f's_add_u32 m0, s{sWl4}, {(n%NS4)*STG4}'); state['m0']=('W4',n)
        return lambda: k.vmem(f'buffer_load_dwordx4 v{vo}, s[{sr}:{sr+3}], s{sGoff} offen{W2F} lds', ('W4',n))
    def tokreg(e,t): return (OH+8*e if e<7 else 256+8*((e-7)%NTS))+4*t
    def tok4(e,t):
        i,st_=estep(e); a_=st_-7*i; key=(e>=EB,i,a_//2)
        if t==0: bias_fix(e,sBT,2048)
        if st4['T']!=key:
            k(f's_add_u32 s{sT4off}, s{sBT}, {(7*i+a_//2*2)*2048}'); st4['T']=key
        k.vmem(f'buffer_load_dwordx4 {reg(tokreg(e,t),4)}, v{VTO}, s[{sXS}:{sXS+3}], s{sT4off} offen offset:{(a_%2)*2048+t*1024}{TKF}', ('T4',e,t))
    def issue(p,now):
        if p[0]=='fn':
            if now: p[2](); return None
            return p[2]
        if p[0] in ('tok','tok4'):
            g=tok if p[0]=='tok' else tok4
            if now: g(p[1],p[2]); return None
            return lambda: g(p[1],p[2])
        f_=(dma if p[0]=='dma' else dma4)(p[1],p[2])
        if now: k('s_nop 0'); f_(); return None
        return f_
    def flush(item):
        while item in pend: k.room(1); issue(pend.pop(0),True)
    LAF4=cfg.get('LAF4',7); BU3=cfg.get('BU3',2)
    def prio(p):
        if p[0]=='fn': return p[1]
        if p[0]=='tok': return p[1]*4
        if p[0]=='dma': return F0S[p[1]//BU3*BU3]-LAF-cfg.get('wlead',14)
        if p[0]=='tok4': return NFR+uidx[('G',p[1])]*4
        return NFR+p[1]*4-LAF4
    pace={'last':-99}
    def pick(now,gap,urg):
        if len(k.vm)>=cfg.get('vmmax',56) or now<pace.get('quiet',0): return None
        for i,p in enumerate(pend):
            d=prio(p)-now
            if d>((cfg.get('wwin',48) if now<F0S[cfg.get('wfree',13)] else 999) if p[0]=='dma' else cfg.get('win',400)): continue
            if now-pace['last']>=gap or d<=urg:
                pace['last']=now; return issue(pend.pop(i),False)
            return None
        return None
    flags={'A':False,'B':False}
    def sigA():
        k.wait(vm=[('st3',0)]); signal(54,0)
    def polA_issue():
        k(f's_mul_i32 s3, s{sTb}, {56*4096}\ns_mul_i32 s48, s{sHf}, {28*4096}\ns_add_u32 s3, s3, s48\ns_add_u32 s3, s3, {WS_HH}')
        srd(sXS,pWS,28*4096,addreg=3)
        k(f's_lshl_b32 s3, s{sRb}, 10\ns_lshl_b32 s48, s{sHf}, 9\ns_add_u32 s55, s3, s48\ns_add_u32 s55, s55, {WS_F3}\nv_and_b32 v{VPA}, 7, v{VL}\nv_lshlrev_b32 v{VPA}, 6, v{VPA}')
        poll_issue(VPA,55,4,False)
    def polA_check():
        poll_check(VPA,55,4,False); flags['A']=True
    at(F0S[cfg.get('sigA',23)],('vm',sigA))
    at(F0S[cfg.get('polAi',27)],('vm',polA_issue))
    at(F0S[cfg.get('polAc',29)],('vm',polA_check))
    t4_next=7; dma_next=0; w_next=NS-1; built=False
    for f in range(LAF): rd(f,0); rd(f,1)
    WE=cfg.get('WE3',1)
    for f in range(NFR):
        S,u,j=FR[f]; p_=S>>4; sg=4*(S&15)+u
        if f==1: stamp(8)
        if cfg.get('p3st') is not None and f==F0S[S] and S%2==0 and 0<=S//2-cfg['p3st']<8: k(f's_memtime s[{64+2*(S//2-cfg["p3st"])}:{65+2*(S//2-cfg["p3st"])}]')
        if f==F0S[16]:
            stamp(9); epilogue3(0); stamp(10)
            for i_,f_ in enumerate(later): at(f+2+i_*cfg.get('st_gap',8),('vm',f_))
            later.clear()
        if j==0 and p_==1 and flags['A']:
            while t4_next<EB and 2*(t4_next-7)+1<sg:
                pend+= [('tok4',t4_next,0),('tok4',t4_next,1)]; t4_next+=1
        pend.sort(key=prio)
        tw=[]
        if j==0 and p_==0: flush(('tok',sg,0)); tw.append(('T',sg))
        lw=[('R',ff) for ff in range(f,min(f+WE,NFR))] if f%WE==0 else []
        k.wait(vm=tw, lg=lw)
        post=[]
        run_events(f,post)
        D=ACC[p_]+16*j
        isbar = f+LAF<NFR and f+LAF==F0S[FR[f+LAF][0]] and FR[f+LAF][0]%BU3==0
        pre=None
        if cfg.get('vfirst',0) and not isbar: pre=pick(f,cfg.get('gap3',2),cfg.get('urg3',24))
        k(f'v_mfma_f32_32x32x16_bf16 {v(D,16)}, {v(WF+(f%NB)*4,4)}, {reg(TK+4*sg,4)}, {"0" if sg==0 else v(D,16)}')
        if pre: pre()
        if f+LAF<NFR and f+LAF==F0S[FR[f+LAF][0]] and FR[f+LAF][0]%BU3==0:
            S1=FR[f+LAF][0]
            flush(('dma',S1+BU3-1,NDq(S1+BU3-1)-1))
            k.wait(vm=[('W',x) for x in range(S1,S1+BU3)]); k('s_barrier')
            while w_next<NSTG and w_next-NS<=S-1:
                pend+= [('dma',w_next,q) for q in range(NDq(w_next))]; w_next+=1
            if w_next==NSTG and S-1>=NSTG-NS:
                if not built:
                    flush(('dma',NSTG-1,2)); built=True
                    k(f's_mul_i32 s3, s{sHf}, {1792*2048}\ns_lshl_b32 s48, s{sC8}, 8\ns_add_u32 s3, s3, s48\ns_lshl_b32 s48, s{sHf}, 7\ns_add_u32 s59, s3, s48\ns_sub_u32 s58, s3, s48\ns_add_u32 s58, s58, 128')
                    for (d,o) in ((sG,58),(sK,59)):
                        k(f's_add_u32 s{d}, s{pW2}, s{o}\ns_addc_u32 s{d+1}, s{pW2+1}, 0\ns_and_b32 s{d+1}, s{d+1}, 0xffff\ns_sub_u32 s{d+2}, {1024*7168}, s{o}\ns_mov_b32 s{d+3}, 0x20000')
                    k(f's_lshl_b32 s{sWl4}, s{sWave}, 10\ns_add_u32 s57, s57, s{sCB}\ns_bitcmp1_b32 s{sC8}, 0\ns_cselect_b32 s{sCA}, {3*C}, 0\ns_cselect_b32 s{sCB}, {(-4*C)&0xffffffff}, 0')
                while dma_next<4*(S-(NSTG-NS)): pend.append(('dma4',dma_next,0)); dma_next+=1
            pend.sort(key=prio)
        pre=None if cfg.get('vfirst',0) else pick(f,cfg.get('gap3',2),cfg.get('urg3',24))
        rd(f+LAF,0)
        if pre: pre()
        rd(f+LAF,1)
        for p in post: p()
        k.check_vm()
    stamp('a')
    epilogue3(1)
    stamp('b')
    LAF=LAF4; BU=cfg.get('BU',4)
    PRE=0; AG=32; AK=64; VFL=96; VZ=100; XR=200; VRD=232; T0=104; HX=200; B2R=220; VS=108
    k(f'v_bfe_u32 v{T0}, v{VL}, 2, 2\nv_lshl_add_u32 v{T0+1}, v{VH}, 4, v{T0}\nv_lshl_add_u32 v{T0+1}, v{T0+1}, 7, v{CP}\nv_and_b32 v{T0}, 2, v{T0}\nv_lshlrev_b32 v{T0}, 5, v{T0}')
    k(f'v_add_u32 v{VRD}, v{T0+1}, v{T0}\nv_xor_b32 v{VRD+1}, 64, v{VRD}\nv_add_u32 v{VRD+2}, 0x10000, v{VRD}\nv_add_u32 v{VRD+3}, 0x10000, v{VRD+1}')
    def rd4(f,q):
        if f>=NU*4: return
        n=f//4; jj=(f%4)//2; j=f%2; slot=n%NS4
        k.lds(f'ds_read_b64_tr_b16 {v(WF+(f%NB)*4+2*q,2)}, v{VRD+2*(slot//16)+j} offset:{(8*jj+4*q)*128+(slot%16)*STG4}', ('R4',f))
    flush(('dma4',BU-1,0))
    k.wait(vm=[('W4',n) for n in range(BU)]); k('s_barrier')
    for f in range(LAF): rd4(f,0); rd4(f,1)
    while dma_next<NS4: pend.append(('dma4',dma_next,0)); dma_next+=1
    events={}
    for i_,f_ in enumerate(later): at(2+i_*cfg.get('st_gap',8),('vm',f_))
    NF4=NU*4
    def sigB():
        k.wait(vm=[('st3',1)]); k(f's_add_u32 s54, s54, 16384'); signal(54,VFL)
    def polB_issue():
        k(f's_add_u32 s55, s55, 16384'); poll_issue(VPA,55,VFL,False)
    def polB_check():
        poll_check(VPA,55,VFL,False); flags['B']=True
    at(cfg.get('sigB',80),('vm',sigB))
    at(cfg.get('polBi',170),('vm',polB_issue))
    at(cfg.get('polBc',200),('vm',polB_check))
    g_end=(uidx[('G',55)]+1)*4
    def side():
        srd(sB,pB2,2048); srd(sO,pOUT,2048*2048); srd(sXC,pWS,8<<20,addlit=WS_X)
        k(f's_lshl_b32 s57, s{sC8}, 1\ns_add_u32 s57, s57, s{sHf}')
        k(f's_sub_u32 s3, 23, s57\ns_cmp_ge_u32 s57, 8\ns_cselect_b32 s3, s3, s57\ns_cselect_b32 s48, 512, 0\ns_lshl_b32 s3, s3, 12\ns_lshl_b32 s44, s{sTb}, 16\ns_add_u32 s44, s44, {WS_H1}\ns_add_u32 s44, s44, s3')
        k(f'v_xor_b32 v{VS}, s48, v{VTO}')
        k(f'v_cmp_eq_u32 vcc, 0, v{VH}\nv_add_u32 v{VS+1}, 2048, v{VTO}\ns_cmp_eq_u32 s57, 8\ns_cselect_b32 s3, {hex((-16*2048)&0xffffffff)}, 0\nv_cndmask_b32 v{VS+1}, v{VTO}, v{VS+1}, vcc\nv_mov_b32 v{VS+2}, s3')
        k(f'v_cndmask_b32 v{VS+2}, 0, v{VS+2}, vcc\nv_add_u32 v{VS+2}, v{VS+2}, v{VS+1}\nv_add_u32 v{VS+2}, {15*4096}, v{VS+2}\ns_sub_u32 s59, s44, {15*4096}')
        k(f's_lshl_b32 s45, s57, 7\nv_lshlrev_b32 v{VS+3}, 5, v{VH}')
        L_=[]
        for b_ in range(2):
            for jj in range(2): L_.append(f'buffer_load_dwordx4 {v(HX+8*b_+4*jj,4)}, v{VS}, s[{sWS}:{sWS+3}], s44 offen offset:{2048*b_+1024*jj}')
        L_.append(f'buffer_load_dword v{HX+16}, v{VS+1}, s[{sWS}:{sWS+3}], s44 offen')
        L_.append(f'buffer_load_dword v{HX+17}, v{VS+2}, s[{sWS}:{sWS+3}], s59 offen offset:2048')
        for j in range(2): L_.append(f'buffer_load_ushort v{OH+2*j}, v{VBA}, s[{sB}:{sB+3}], s45 offen offset:{64*j}')
        k(f'v_mov_b32 v{OH+1}, 0x3f803f80\nv_cndmask_b32 v{OH+1}, 0, v{OH+1}, vcc\nv_mov_b32 v{OH+3}, v{OH+1}')
        for i_,t_ in enumerate(L_): pend.append(('fn',NFR+g_end-100+i_,lambda t_=t_: k.vmem(t_,'hx')))
        k(f's_lshl_b32 s16, s{sWave}, 9\ns_add_u32 s16, s16, s{sRb}\ns_lshl_b32 s16, s16, 11\ns_add_u32 s16, s16, s45')
        k(f'v_lshlrev_b32 v{VOA}, 15, v{VT32}\nv_add_u32 v{VOA}, v{VOA}, v{VS+3}')
        k(f's_lshl_b32 s3, s2, 2\ns_add_u32 s3, s3, s{sWave}\ns_lshl_b32 s18, s3, 12\ns_xor_b32 s19, s18, {4<<12}\ns_lshl_b32 s52, s3, 6\ns_add_u32 s52, s52, {WS_FX}\ns_xor_b32 s58, s52, 256\nv_mov_b32 v{VZ}, 0')
    at(cfg.get('side_at',84),('vm',side))
    def hfix():
        assert not any(p[0]=='fn' for p in pend)
        k.wait(vm=['hx'])
        L=k.newlabel('hfix')
        k(f's_cmp_lt_u32 s57, 8\ns_cbranch_scc1 {L}\ns_mov_b32 s3, 0x07060100')
        N_=OH+16
        for b_ in range(2):
            for i in range(8):
                lo=HX+16+b_ if i==0 else HX+8*b_+8-i
                k(f'v_perm_b32 v{N_+8*(1-b_)+i}, v{HX+8*b_+7-i}, v{lo}, s3')
        for i in range(0,16,2): k(f'v_pk_mov_b32 {v(HX+i,2)}, {v(N_+i,2)}, {v(N_+i,2)} op_sel:[0,1]')
        k.label(L)
    V=[('vm',hfix)]
    for j in range(2): V.append(f'v_lshl_or_b32 v{OH+2*j}, v{OH+2*j}, 16, v{OH+2*j}')
    for j in range(2): V.append(f'v_mfma_f32_32x32x8_bf16 {v(AK+16*j,16)}, {v(OH+2*j,2)}, {v(AU4,2)}, {v(AK+16*j,16)}')
    assert all(U[n_][0]=='G' for n_ in range((g_end-cfg.get('pre_before',40))//4-1,(g_end-cfg.get('pre_before',40))//4+4))
    for r in range(32):
        V.append(f'v_lshlrev_b32 v{PRE+r}, 16, v{HX+r//2}' if r%2==0 else f'v_and_b32 v{PRE+r}, 0xffff0000, v{HX+r//2}')
    fs=g_end-cfg.get('pre_before',40); per=cfg.get('pre_per',1)
    for i,x in enumerate(V): at(fs+i//per, x if isinstance(x,tuple) else ('valu',x))
    assert fs+len(V)//per<g_end+cfg.get('xc',62)
    for i in range(4):
        def xs(i=i):
            for r in range(4): k(f'v_cvt_pk_bf16_f32 v{AG+8*i+r}, v{AG+8*i+2*r}, v{AG+8*i+2*r+1}')
            k.vmem(f'buffer_store_dwordx4 {v(AG+8*i,4)}, v{VTO}, s[{sXC}:{sXC+3}], s18 offen offset:{i*1024} sc1','xs')
        at(g_end+4+i*cfg.get('xs_gap',6),('vm',xs))
    fA=g_end+cfg.get('xa',36); fB=g_end+cfg.get('xb',48); fC=g_end+cfg.get('xc',62)
    assert fC<NF4
    at(fA,('wait','xs'))
    at(fA,('vm',lambda: signal(52,VFL,barrier=False)))
    at(fB,('vm',lambda: poll_issue(VZ,58,VS,False)))
    def chk():
        poll_check(VZ,58,VS,False)
        k.room(4)
        for i in range(4): k.vmem(f'buffer_load_dwordx4 {v(XR+4*i,4)}, v{VTO}, s[{sXC}:{sXC+3}], s19 offen offset:{i*1024} sc1','xr')
    at(fC,('vm',chk))
    WE=cfg.get('WE4',1)
    kdone=6
    for f in range(NF4):
        n=f//4; jj=(f%4)//2; j=f%2; part,e=U[n]
        if cfg.get('p4st') is not None:
            i_=(f-cfg['p4st'])//cfg.get('qs',16)
            if f>=cfg['p4st'] and (f-cfg['p4st'])%cfg.get('qs',16)==0 and i_<10: k(f's_memtime s[{62+2*i_}:{63+2*i_}]')
        else:
            if f==uidx[('G',7)]*4: stamp('c')
            if f==uidx[('G',EB)]*4: stamp('d')
            if f==g_end: stamp('e')
        if f%4==0:
            if n>0 and U[n-1][0]=='K': kdone=U[n-1][1]
            while t4_next<56 and (t4_next<EB or flags['B']) and (t4_next-NTS<7 or t4_next-NTS<=kdone):
                pend+= [('tok4',t4_next,0),('tok4',t4_next,1)]; t4_next+=1
        pend.sort(key=prio)
        tw=[]
        if j==0 and part=='G' and e>=7:
            assert e<t4_next
            flush(('tok4',e,jj)); tw.append(('T4',e,jj))
        lw=[('R4',ff) for ff in range(f,min(f+WE,NF4))] if f%WE==0 else []
        k.wait(vm=tw, lg=lw)
        post=[]
        run_events(f,post)
        D=(AG if part=='G' else AK)+16*j
        nn=(f+LAF)//4
        pre=None
        if cfg.get('vfirst',0) and not ((f+LAF)%4==0 and nn<NU and nn%BU==0): pre=pick(NFR+f,cfg.get('gap4',2),cfg.get('urg4',32))
        k(f'v_mfma_f32_32x32x16_bf16 {v(D,16)}, {v(WF+(f%NB)*4,4)}, {reg(tokreg(e,jj),4)}, {"0" if (e==0 and jj==0) else v(D,16)}')
        if pre: pre()
        if (f+LAF)%4==0 and nn<NU and nn%BU==0:
            last=min(nn+BU,NU)-1
            flush(('dma4',last,0))
            k.wait(vm=[('W4',m) for m in range(nn,last+1)]); k('s_barrier')
            while dma_next<NU and dma_next-NS4<=n-1:
                pend.append(('dma4',dma_next,0)); dma_next+=1
            pend.sort(key=prio)
        pre=None if cfg.get('vfirst',0) else pick(NFR+f,cfg.get('gap4',2),cfg.get('urg4',32))
        rd4(f+LAF,0)
        if pre: pre()
        rd4(f+LAF,1)
        for p in post: p()
        k.check_vm()
    stamp('f')
    k.wait(vm=['xr'])
    k('s_nop 9')
    for j in range(2):
        for jj in range(2):
            a_=AK+16*j+8*jj; pr=PRE+16*j+8*jj; x_=AG+16*j+8*jj; d=WF+8*j+4*jj
            for r in range(4): k(f'v_lshlrev_b32 v{x_+2*r}, 16, v{XR+8*j+4*jj+r}\nv_and_b32 v{x_+2*r+1}, 0xffff0000, v{XR+8*j+4*jj+r}')
            for r in range(0,8,2): k(f'v_pk_add_f32 {v(a_+r,2)}, {v(a_+r,2)}, {v(x_+r,2)}')
            for r in range(0,8,2): k(f'v_pk_fma_f32 {v(a_+r,2)}, {v(a_+r,2)}, {v(VM,2)}, {v(pr+r,2)} op_sel:[0,1,0] op_sel_hi:[1,1,1]')
            for r in range(4): k(f'v_cvt_pk_bf16_f32 v{d+r}, v{a_+2*r}, v{a_+2*r+1}')
            k.vmem(f'buffer_store_dwordx4 {v(d,4)}, v{VOA}, s[{sO}:{sO+3}], s16 offen offset:{64*j+16*jj}{OF}')
    if ST:
        k('s_waitcnt vmcnt(0)\ns_memtime s[56:57]\ns_memrealtime s[84:85]\ns_waitcnt lgkmcnt(0)')
        k(f's_lshl_b32 s3, s2, 2\ns_add_u32 s3, s3, s{sWave}\ns_lshl_b32 s3, s3, 7\ns_add_u32 s3, s3, {WS_STAMP}\ns_add_u32 s50, s{pWS}, s3\ns_addc_u32 s51, s{pWS+1}, 0')
        for i in range(26): k(f'v_mov_b32 v{i}, s{60+i}')
        k(f'v_mov_b32 v26, s56\nv_mov_b32 v27, s57\nv_mov_b32 v28, 0\nv_mov_b32 v29, 0\nv_mov_b32 v30, 0\nv_mov_b32 v31, 0\nv_mov_b32 v32, 0\ns_mov_b64 exec, 1')
        for i in range(8): k(f'global_store_dwordx4 v32, v[{4*i}:{4*i+3}], s[50:51] offset:{16*i}')
    if DG:
        k('s_waitcnt vmcnt(0)\ns_memrealtime s[84:85]\ns_waitcnt lgkmcnt(0)')
        k(f's_load_dwordx2 s[{pDBG}:{pDBG+1}], s[0:1], 88\ns_waitcnt lgkmcnt(0)')
        srd(sB,pDBG,256)
        k('s_not_b32 s3, s82\ns_mov_b64 exec, 1\nv_mov_b32 v0, 0')
        for i,r in enumerate((3,82,60,62,64,66,84)):
            k(f'v_mov_b32 v1, s{r}\nbuffer_atomic_umax v1, v0, s[{sB}:{sB+3}], 0 offen offset:{16+4*i}\ns_waitcnt vmcnt(0)')
    k.label(f'{name}_end')
    k('s_endpgm')
    return (k,512,102,256), LDS_TOTAL

NAME='sequential_preLN__spectral_fnet__dense_activation_squared_relu__prompt_kernel'
def build(path,stamps=False,over={},listform=False):
    cfg=dict(stamps=stamps); cfg.update(over)
    kk,l=gen(NAME,cfg)
    hdr=[f'; @launch {"kernel="+NAME+" " if listform else ""}grid=(256,1,1) block=(256,1,1) lds={l}']
    open(path,'w').write(assemble_file(hdr,[kk]))
if __name__=='__main__':
    over={}
    for a in sys.argv[3:]:
        kk,vv=a.split('='); over[kk]=int(vv)
    build(sys.argv[1], sys.argv[2]=='1', over, listform=True)
```

```python
from asmlib import *
from layout import *
import struct, sys
def f2u(x): return struct.unpack('<I', struct.pack('<f', x))[0]
def fl(x): return hex(f2u(x))
GRP=[[0,8,1,15],[2,14,3,13],[4,12,5,11],[6,10,7,9]]
def grp_word():
    w=0
    for p in range(4):
        for i in range(4): w|=GRP[p][i]<<(4*(p*4+i))
    return w
ZSTR=2056
STG3=16896
L_X=6*STG3
L_V=8*STG3
L_Z=L_V; L_ST=L_Z+8*ZSTR; L_DUM=L_ST+512; L_E=L_DUM+512
LDS_TOTAL=L_E+512
assert LDS_TOTAL<=163840

def gen(name,cfg):
    k=K(name)
    ST=cfg.get('stamps')
    SB=cfg.get('sb',0)
    TM='s_memrealtime' if cfg.get('rt') else 's_memtime'
    MAPB={8:1,9:2,10:3,'a':4,'b':5,'c':6,'d':7,'e':8,'f':9}
    def p1(i):
        if cfg.get('p1st') and ST: k(f's_memtime s[{60+2*i}:{61+2*i}]')
    def stamp(i):
        if cfg.get('p1st') and i not in (1,2): return
        if cfg.get('diag'):
            m={2:0,5:1,7:2,'b':3}
            if i in m: k(f's_memrealtime s[{60+2*m[i]}:{61+2*m[i]}]')
            return
        if not ST: return
        if cfg.get('p3st') is not None and i!=8: return
        if cfg.get('p4st') is not None: return
        if SB:
            if i not in MAPB: return
            i=MAPB[i]
        elif isinstance(i,str): return
        k(f'{TM} s[{60+2*i}:{61+2*i}]')
    SC=' sc1'
    OF=['',' nt',' sc1',' sc1 nt'][cfg.get('of',0)]
    PFF=['',' nt',' sc1',' sc0 sc1',' sc1 nt'][cfg.get('pff',0)]
    XF=['',' nt'][cfg.get('xnt',0)]
    W1F=' nt' if cfg.get('wnt',0)&1 else ''
    W2F=' nt' if cfg.get('wnt',0)&2 else ''
    TKF=' sc1' if cfg.get('toksc1') else ''
    SM1='' if cfg.get('small_plain') else ' sc1'
    pX,pW1,pB1,pW2,pB2,pOUT,pDBG,pWS=86,88,90,92,94,96,98,100
    sXS,sWS,sW,sT,sO,sB,sK=4,8,12,16,20,24,28
    sXC=32
    sWave,sRb,sHf,sC8,sTb,sCb=36,37,38,39,40,41
    sNon=42
    sFlg=44
    VL,VN,VG,VTO,VM,VRS=248,249,250,251,252,254
    VSM=242
    def srd(d,lo,nbytes,addreg=None,addlit=None):
        if addreg is not None: k(f's_add_u32 s{d}, s{lo}, s{addreg}\ns_addc_u32 s{d+1}, s{lo+1}, 0\ns_and_b32 s{d+1}, s{d+1}, 0xffff')
        elif addlit is not None: k(f's_add_u32 s{d}, s{lo}, {addlit}\ns_addc_u32 s{d+1}, s{lo+1}, 0\ns_and_b32 s{d+1}, s{d+1}, 0xffff')
        else: k(f's_mov_b32 s{d}, s{lo}\ns_and_b32 s{d+1}, s{lo+1}, 0xffff')
        k(f's_mov_b32 s{d+2}, {nbytes}\ns_mov_b32 s{d+3}, 0x20000')
    def signal(off_sreg, vf, keep=False, barrier=True):
        L=k.newlabel('sig')
        if barrier: k(f's_barrier\ns_cmp_lg_u32 s{sWave}, 3\ns_cbranch_scc1 {L}')
        k(f'v_mov_b32 v{vf}, s{sNon}\nv_mov_b32 v{vf+1}, s{sNon+1}')
        if not keep: k(f'v_mov_b32 v{vf+2}, 0\nv_mov_b32 v{vf+3}, 0')
        k(f's_mov_b64 exec, 15')
        t=f'buffer_store_dwordx4 {v(vf,4)}, v{VTO}, s[{sWS}:{sWS+3}], s{off_sreg} offen sc1'
        if barrier: k(t)
        else: k.vmem(t,'flag')
        k('s_mov_b64 exec, -1')
        if barrier: k.label(L)
    def poll_loads(vaddr, soff, vd, wide):
        if wide: return [f'buffer_load_dwordx4 {v(vd+4*i,4)}, v{vaddr+i}, s[{sWS}:{sWS+3}], s{soff} offen sc1' for i in range(2)]
        return [f'buffer_load_dwordx2 {v(vd,2)}, v{vaddr}, s[{sWS}:{sWS+3}], s{soff} offen sc1']
    def poll_issue(vaddr, soff, vd, wide):
        k.room(2)
        for t in poll_loads(vaddr,soff,vd,wide): k.vmem(t,'poll')
    def poll_check(vaddr, soff, vd, wide):
        L=k.newlabel('poll'); Lo=k.newlabel('pok')
        k.wait(vm=['poll'])
        k(f's_mov_b32 s47, {1<<18}')
        k.label(L)
        ld=poll_loads(vaddr,soff,vd,wide)
        k(f'v_cmp_ne_u64 vcc, s[{sNon}:{sNon+1}], {v(vd,2)}')
        if wide: k(f'v_cmp_ne_u64 s[48:49], s[{sNon}:{sNon+1}], {v(vd+4,2)}\ns_nop 1\ns_or_b64 s[44:45], vcc, s[48:49]\ns_cbranch_scc0 {Lo}\ns_sub_u32 s47, s47, 1\ns_cbranch_scc1 {Lo}')
        else: k(f's_sub_u32 s47, s47, 1\ns_cbranch_scc1 {Lo}\ns_cmp_eq_u64 vcc, 0\ns_cbranch_scc1 {Lo}')
        if cfg.get('slp',1): k(f's_sleep {cfg.get("slp",1)}')
        k(f's_mov_b64 exec, vcc\n{ld[0]}')
        if wide: k(f's_mov_b64 exec, s[48:49]\n{ld[1]}')
        k(f's_mov_b64 exec, -1\ns_waitcnt vmcnt(0)\ns_branch {L}')
        k.label(Lo)
    def poll0(vaddr, soff, vd, wide, extra=None):
        Ls=k.newlabel('pskip')
        k(f's_cmp_lg_u32 s{sWave}, 3\ns_cbranch_scc1 {Ls}')
        vm0=list(k.vm)
        poll_issue(vaddr,soff,vd,wide); poll_check(vaddr,soff,vd,wide)
        if extra: extra()
        k.vm=vm0
        k.label(Ls)
        k('s_barrier')
    if ST:
        k(f'{TM} s[60:61]\ns_memrealtime s[82:83]')
        for i in range(62,82): k(f's_mov_b32 s{i}, 0')
    DG=cfg.get('diag')
    if DG: k('s_memrealtime s[82:83]')
    k(f's_cmp_ge_u32 s2, 256\ns_cbranch_scc1 {name}_end')
    k(f's_load_dwordx2 s[{pX}:{pX+1}], s[0:1], 0\ns_load_dwordx8 s[{pW1}:{pW1+7}], s[0:1], 48\ns_load_dwordx4 s[{pOUT}:{pOUT+3}], s[0:1], 80\ns_load_dwordx2 s[{pWS}:{pWS+1}], s[0:1], 96\ns_memrealtime s[{sNon}:{sNon+1}]')
    XG=8; XT=40; PM=72; B1=80; B2=96; B2N=112; TWC=128; TWS=144; ONES=160; T=164; A1=184; D1=8; A2=200; ZD=200; TT=232
    VGR=1; VXR=3; VZW=5; VZR=6; VST=7; VSR=236; VOUT=237; VF=238; VE=239; VMX=238; VJ=247; VNON=244; VOUT2=246
    k(f'v_lshrrev_b32 v{T}, 6, v0\nv_and_b32 v{VL}, 63, v0\nv_and_b32 v{VN}, 15, v0\nv_readfirstlane_b32 s{sWave}, v{T}')
    sSlo,sWq=50,51
    sH1=46
    if cfg.get('xdup',0): k(f's_lshl_b32 s{sSlo}, s{sC8}, 4\ns_add_u32 s{sSlo}, s{sSlo}, s{sRb}\ns_mov_b32 s{sH1}, s{sHf}')
    else: k(f's_and_b32 s3, s2, 7\ns_lshl_b32 s3, s3, 4\ns_lshr_b32 s{sSlo}, s2, 4\ns_add_u32 s{sSlo}, s{sSlo}, s3\ns_bfe_u32 s{sH1}, s2, 0x10003')
    k(f'v_lshrrev_b32 v{T}, 3, v{VL}\nv_and_b32 v{T+1}, 6, v{T}\nv_and_b32 v{T+2}, 7, v{VL}\nv_xor_b32 v{T+1}, v{T+1}, v{T+2}\nv_lshlrev_b32 v{T}, 18, v{T}\nv_lshl_add_u32 v{T}, v{T+1}, 4, v{T}')
    k(f's_lshl_b32 s52, s{sSlo}, 11\ns_lshl_b32 s53, s{sWave}, 9\ns_add_u32 s52, s52, s53\ns_add_u32 s54, s52, {8<<18}\ns_lshl_b32 s55, s{sWave}, 13\ns_add_u32 s55, s55, {L_X}')
    def emit_cpf():
        if cfg.get('cpf',1):
            NL=cfg.get('cpfl',16)
            k(f's_getpc_b64 s[48:49]\ns_lshr_b32 s3, s2, 3\ns_mul_i32 s3, s3, {NL*128}\nv_lshlrev_b32 v242, 7, v0\nv_add_u32 v242, s3, v242\nv_min_u32 v242, {name}_end-{name}-512, v242\nv_cmp_gt_u32 vcc, {NL}, v0\ns_and_saveexec_b64 s[16:17], vcc\ns_cbranch_execz {name}_nocpf')
            k(f'global_load_dword a255, v242, s[48:49]'+[ '',' nt',' sc1'][cfg.get('cnt',0)])
            k.label(f'{name}_nocpf')
            k('s_mov_b64 exec, s[16:17]')
    if cfg.get('cpfpos',0)==0: emit_cpf()
    k('s_waitcnt lgkmcnt(0)')
    stamp(1)
    srd(sXS,pX,2048*2048)
    for p in range(4):
        for rh in range(2):
            k(f's_add_u32 m0, s55, {p*2048+rh*1024-128*p}\ns_nop 0')
            k.vmem(f'buffer_load_dwordx4 v{T}, s[{sXS}:{sXS+3}], s{54 if rh else 52} offen offset:{128*p}{XF} lds',('x',p))
    if cfg.get('cpfpos',0)==1: emit_cpf()
    k(f'v_bfe_u32 v{VG}, v0, 4, 2\nv_lshlrev_b32 v{VTO}, 4, v{VL}\ns_lshl_b32 s{sWq}, s{sH1}, 2\ns_add_u32 s{sWq}, s{sWq}, s{sWave}')
    w=grp_word()
    k(f's_bfe_u32 s{sRb}, s2, 0x20001\ns_lshl_b32 s{sRb}, s{sRb}, 2\ns_bfe_u32 s3, s2, 0x20003\ns_add_u32 s3, s3, s{sRb}\ns_lshl_b32 s3, s3, 2')
    k(f's_mov_b32 s48, {hex(w&0xffffffff)}\ns_mov_b32 s49, {hex(w>>32)}\ns_lshr_b64 s[48:49], s[48:49], s3\ns_and_b32 s{sRb}, s48, 15')
    k(f's_and_b32 s{sHf}, s2, 1\ns_lshr_b32 s{sC8}, s2, 5\ns_lshl_b32 s{sCb}, s{sHf}, 3\ns_add_u32 s{sCb}, s{sCb}, s{sC8}\ns_lshl_b32 s{sTb}, s{sRb}, 2\ns_add_u32 s{sTb}, s{sTb}, s{sWave}')
    sWl=56
    k(f's_mul_i32 s57, s{sCb}, 448')
    srd(sWS,pWS,WS_HH)
    def pf_any(ptr,junk,first,nbytes,dst='a255'):
        per=nbytes//128//1024
        srd(sXC,ptr,first+nbytes)
        k(f's_lshl_b32 s3, s2, 2\ns_add_u32 s3, s3, s{sWave}\ns_mul_i32 s3, s3, {per*128}\ns_add_u32 s3, s3, {first}\nv_lshlrev_b32 v{junk}, 7, v{VL}\nv_cmp_gt_u32 vcc, {per}, v{VL}\nv_mov_b32 v{junk+1}, 0x40000000\ns_nop 0\nv_cndmask_b32 v{junk}, v{junk+1}, v{junk}, vcc')
        k.vmem(f'buffer_load_dword {dst}, v{junk}, s[{sXC}:{sXC+3}], s3 offen{PFF}','pf')
    QW=256*7168
    XT_=cfg.get('xt',0)
    def pf_xcd(ptr,i,junk,dst):
        srd(sXC,ptr,1024*7168)
        k(f's_lshr_b32 s3, s2, 3\ns_lshl_b32 s3, s3, 2\ns_add_u32 s3, s3, s{sWave}\ns_bfe_u32 s48, s2, 0x20001\ns_add_u32 s48, s48, {i}\ns_and_b32 s48, s48, 3')
        if ptr==pW1:
            k(f's_lshl_b32 s48, s48, 7\ns_add_u32 s3, s3, s48\ns_mul_i32 s3, s3, {2*7168}\ns_mul_i32 s48, s{sHf}, 3584\ns_add_u32 s3, s3, s48')
            k(f'v_lshlrev_b32 v{junk}, 7, v{VL}\nv_add_u32 v{junk+1}, {7168-28*128}, v{junk}\nv_cmp_gt_u32 vcc, 28, v{VL}\ns_nop 1\nv_cndmask_b32 v{junk}, v{junk+1}, v{junk}, vcc')
        else:
            k(f's_lshl_b32 s48, s48, 7\ns_add_u32 s3, s3, s48\ns_mul_i32 s3, s3, {56*128}\ns_mul_i32 s48, s{sHf}, {1792*2048}\ns_add_u32 s3, s3, s48\nv_lshlrev_b32 v{junk}, 7, v{VL}')
        k(f'v_cmp_gt_u32 vcc, 56, v{VL}\nv_mov_b32 v{junk+1}, 0x40000000\ns_nop 0\nv_cndmask_b32 v{junk}, v{junk+1}, v{junk}, vcc')
        k.vmem(f'buffer_load_dword {dst}, v{junk}, s[{sXC}:{sXC+3}], s3 offen{PFF}','pf')
    pieces=[(pW1,0),(pW1,QW),(pW1,3*QW),(pW1,2*QW),(pW2,0),(pW2,2*QW),(pW2,QW),(pW2,3*QW)]
    def pf_piece(junk,dst='a255'):
        nonlocal pieces
        if not pieces: return
        n_=8-len(pieces); p_,o_=pieces.pop(0)
        if XT_&(1 if p_==pW1 else 2): pf_xcd(p_,n_&3,junk,dst)
        else: pf_any(p_,junk,o_,QW,dst)
    def pf_w123(ptr,first,nbytes,junk):
        per=-(-nbytes//128//768)
        L=k.newlabel('pf3w')
        k(f's_cmp_eq_u32 s{sWave}, 3\ns_cbranch_scc1 {L}')
        srd(sXC,ptr,first+nbytes)
        k(f's_mul_i32 s3, s2, 3\ns_add_u32 s3, s3, s{sWave}\ns_mul_i32 s3, s3, {per*128}\ns_add_u32 s3, s3, {first}\nv_lshlrev_b32 v{junk}, 7, v{VL}\nv_cmp_gt_u32 vcc, {per}, v{VL}\nv_mov_b32 v{junk+1}, 0x40000000\ns_nop 0\nv_cndmask_b32 v{junk}, v{junk+1}, v{junk}, vcc')
        k(f'buffer_load_dword a255, v{junk}, s[{sXC}:{sXC+3}], s3 offen{PFF}')
        k.label(L)
    plan=str(cfg.get('plan',0)).zfill(8)
    def pf_point(i,junk,dst='a255'):
        for _ in range(int(plan[i])): pf_piece(junk,dst)
    if cfg.get('pf0',0):
        for _ in range(cfg['pf0']): pf_piece(242)
    if cfg.get('tlb',0):
        PG=cfg.get('pg',21)
        for (ptr,nb) in ((pWS,34<<20),(pW1,1024*7168),(pW2,1024*7168),(pOUT,4<<20)):
            srd(sXC,ptr,nb)
            for rnd in range(-(-nb>>PG)//256+1 if PG<19 else 1):
                k(f'v_lshlrev_b32 v242, {PG}, v0\ns_mov_b32 s3, {rnd*256<<PG}')
                k.vmem(f'buffer_load_dword a255, v242, s[{sXC}:{sXC+3}], s3 offen sc1','pf')
    srd(sB,pDBG,256)
    Ln=k.newlabel('non')
    k(f's_or_b32 s3, s2, s{sWave}\ns_cmp_lg_u32 s3, 0\ns_cbranch_scc1 {Ln}\ns_and_b32 s48, s{sNon}, -8\ns_or_b32 s48, s48, 8\nv_mov_b32 v{VNON}, s48\nv_mov_b32 v{VNON+1}, s{sNon+1}\nv_mov_b32 v{VJ}, 0\ns_mov_b64 exec, 1')
    k(f'buffer_store_dwordx2 {v(VNON,2)}, v{VJ}, s[{sB}:{sB+3}], 0 offen sc1\ns_mov_b64 exec, -1')
    k.label(Ln)
    k(f's_sub_u32 s3, {1024*7168}, s57')
    k(f's_add_u32 s{sW}, s{pW1}, s57\ns_addc_u32 s{sW+1}, s{pW1+1}, 0\ns_and_b32 s{sW+1}, s{sW+1}, 0xffff\ns_mov_b32 s{sW+2}, s3\ns_mov_b32 s{sW+3}, 0x20000')
    k(f'v_and_b32 v{T+1}, 6, v{VN}\nv_xor_b32 v{T+1}, v{T+1}, v{VG}\nv_lshlrev_b32 v{T+2}, 7, v{VN}\nv_add_u32 v{T+2}, s55, v{T+2}\nv_lshl_add_u32 v{VGR}, v{T+1}, 4, v{T+2}\nv_xor_b32 v{VGR+1}, 64, v{VGR}')
    k(f'v_bfe_u32 v{T+1}, v0, 2, 3\nv_lshlrev_b32 v{T+2}, 7, v{T+1}\nv_and_b32 v{T+1}, 6, v{T+1}\nv_lshlrev_b32 v{T+1}, 4, v{T+1}\nv_and_b32 v{T+3}, 32, v{VL}\nv_lshlrev_b32 v{T+3}, 1, v{T+3}\nv_xor_b32 v{T+1}, v{T+1}, v{T+3}')
    k(f'v_and_b32 v{T+3}, 3, v0\nv_lshlrev_b32 v{T+3}, 3, v{T+3}\nv_add3_u32 v{T+2}, v{T+2}, v{T+3}, s55\nv_add_u32 v{VXR}, v{T+2}, v{T+1}\nv_xor_b32 v{VXR+1}, 32, v{VXR}')
    k(f'v_and_b32 v{T+1}, 7, v0\nv_mul_u32_u24 v{VZW}, {ZSTR}, v{T+1}\nv_and_b32 v{T+2}, 8, v0\nv_lshlrev_b32 v{T+2}, 3, v{T+2}\nv_lshl_add_u32 v{T+2}, v{VG}, 3, v{T+2}\ns_add_u32 s3, s53, {L_Z}\nv_add3_u32 v{VZW}, v{VZW}, v{T+2}, s3')
    k(f'v_lshrrev_b32 v{T+4}, 5, v{VL}\nv_lshlrev_b32 v{T+4}, 9, v{T+4}\nv_bfe_u32 v{T+5}, v0, 2, 2\nv_lshl_add_u32 v{T+4}, v{T+5}, 6, v{T+4}')
    k(f'v_and_b32 v{T+5}, 16, v0\nv_lshlrev_b32 v{T+5}, 1, v{T+5}\nv_add3_u32 v{T+4}, v{T+4}, v{T+5}, v{T+3}\ns_mul_i32 s3, s{sWave}, {2*ZSTR}\ns_add_u32 s3, s3, {L_Z}\nv_add_u32 v{VZR}, s3, v{T+4}')
    k(f'v_lshrrev_b32 v{T+4}, 2, v{VN}\nv_cmp_eq_u32 vcc, v{T+4}, v{VG}\ns_lshl_b32 s3, s{sWave}, 3\ns_add_u32 s3, s3, {L_ST}\nv_lshl_add_u32 v{T+5}, v{VN}, 5, s3')
    k(f'v_lshlrev_b32 v{T+6}, 3, v{VL}\nv_add_u32 v{T+6}, {L_DUM}, v{T+6}\nv_cndmask_b32 v{VST}, v{T+6}, v{T+5}, vcc')
    k(f'v_and_b32 v{T+4}, 1, v{VG}\nv_lshlrev_b32 v{T+4}, 2, v{T+4}\nv_xor_b32 v{T+5}, v{VN}, v{T+4}\nv_lshlrev_b32 v{T+6}, 5, v{T+5}\nv_add_u32 v{VSR}, {L_ST}, v{T+6}')
    k(f's_lshl_b32 s31, s{sH1}, 7\ns_add_u32 s31, s31, s{sSlo}\ns_lshl_b32 s31, s31, 7\ns_add_u32 s31, s31, {WS_R1}\nv_lshlrev_b32 v{VMX}, 2, v{T+5}\nv_cmp_gt_u32 vcc, 16, v0\nv_mov_b32 v{VE}, 0x40000000\ns_nop 0\nv_cndmask_b32 v{VMX}, v{VE}, v{VMX}, vcc')
    mA,mB,mC,mE=16,18,20,22
    k(f'v_and_b32 v{T+5}, 3, v0\nv_cmp_eq_u32 s[{mA}:{mA+1}], 1, v{T+5}\nv_cmp_eq_u32 s[{mB}:{mB+1}], 2, v{T+5}\nv_cmp_eq_u32 s[{mC}:{mC+1}], 3, v{T+5}')
    k(f's_mov_b32 s28, 0x10001\ns_mov_b32 s29, 0')
    k(f's_lshl_b32 s3, s{sH1}, 3\nv_add_u32 v{T+7}, s3, v{T+1}\nv_lshrrev_b32 v{T+5}, 1, v{T+7}\nv_cmp_eq_u32 vcc, 1, v{T+7}\nv_and_b32 v{T+6}, 1, v{T+7}\ns_nop 0\nv_cndmask_b32 v{T+5}, v{T+5}, 8, vcc\nv_cndmask_b32 v{T+6}, v{T+6}, 0, vcc')
    k(f'v_and_b32 v{VE}, 3, v0\nv_mul_u32_u24 v{VE}, {2*ZSTR}, v{VE}\nv_add_u32 v{VE}, {L_Z}, v{VE}')
    k(f'v_cvt_f32_u32 v{T+5}, v{T+5}\nv_cvt_f32_u32 v{T+6}, v{T+6}\nv_cvt_f32_u32 v{T+4}, v{T+4}\nv_mul_f32 v{T+5}, {fl(1/16)}, v{T+5}\nv_mul_f32 v{T+6}, {fl(0.25)}, v{T+6}')
    k(f'v_fmac_f32 v{T+6}, v{T+5}, v{T+4}')
    for i in range(8): k(f'v_fmamk_f32 v{PM+i}, v{T+5}, {fl((i&3)+8*(i>>2))}, v{T+6}')
    for i in range(8): k(f'v_cos_f32 v{PM+i}, v{PM+i}')
    k(f'v_lshrrev_b32 v{T+4}, 3, v{VN}\nv_lshrrev_b32 v{T+5}, 1, v{VG}\nv_cmp_eq_u32 vcc, v{T+4}, v{T+5}')
    for i in range(4): k(f'v_mov_b32 v{ONES+i}, 0x3f803f80')
    for i in range(8): k(f'v_cndmask_b32 v{PM+i}, 0, v{PM+i}, vcc')
    E1=T+7; H4=T+8
    k(f'v_and_b32 v{T+4}, 4, v0\nv_lshlrev_b32 v{T+4}, 2, v{T+4}\nv_and_b32 v{T+5}, 3, v0\nv_bfe_u32 v{T+6}, v0, 3, 2\nv_lshl_add_u32 v{T+5}, v{T+6}, 2, v{T+5}\nv_add_u32 v{T+4}, v{T+4}, v{T+5}')
    k(f'v_lshlrev_b32 v{T+9}, 31, v{T+4}\nv_lshrrev_b32 v{T+10}, 16, v{T+9}\nv_or_b32 v{T+9}, v{T+9}, v{T+10}')
    k(f'v_cvt_f32_u32 v{E1}, v{T+4}\nv_lshrrev_b32 v{H4}, 5, v{VL}\nv_cvt_f32_u32 v{H4}, v{H4}')
    k(f'v_mul_f32 v{T+4}, {fl(1/32)}, v{E1}\nv_mul_f32 v{T+5}, {fl(8.0)}, v{H4}\nv_mul_f32 v{T+5}, v{T+5}, v{T+4}')
    S=A2
    for i in range(8): k(f'v_fmamk_f32 v{S+i}, v{T+4}, {fl(i)}, v{T+5}')
    for i in range(8): k(f'v_sin_f32 v{S+8+i}, v{S+i}')
    for i in range(8): k(f'v_cos_f32 v{S+i}, v{S+i}')
    for i in range(4): k(f'v_cvt_pk_f16_f32 v{B1+8+i}, -v{S+8+2*i}, -v{S+9+2*i}')
    for i in range(4): k(f'v_cvt_pk_f16_f32 v{B1+i}, v{S+2*i}, v{S+1+2*i}')
    for i in range(4): k(f'v_xor_b32 v{B1+4+i}, v{B1+i}, v{T+9}\nv_xor_b32 v{B1+12+i}, v{B1+8+i}, v{T+9}')
    k(f'v_mul_f32 v{T+4}, {fl(1/1024)}, v{E1}\nv_mul_f32 v{T+5}, 4.0, v{H4}\nv_mul_f32 v{T+5}, v{T+5}, v{T+4}')
    for r in range(16): k(f'v_fmamk_f32 v{TWC+r}, v{T+4}, {fl((r&3)+8*(r>>2))}, v{T+5}')
    for _ in range(cfg.get('pfc1',0)): pf_piece(TT)
    for r in range(16): k(f'v_sin_f32 v{TWS+r}, v{TWC+r}')
    for r in range(16): k(f'v_cos_f32 v{TWC+r}, v{TWC+r}')
    for r in range(8): k(f'v_cvt_pk_f16_f32 v{TWS+r}, v{TWS+2*r}, v{TWS+2*r+1}')
    for r in range(8): k(f'v_cvt_pk_f16_f32 v{TWC+r}, v{TWC+2*r}, v{TWC+2*r+1}')
    k(f'v_cvt_f32_u32 v{T+4}, v{VN}\nv_mul_f32 v{T+4}, {fl(1/32)}, v{T+4}\nv_mul_f32 v{T+5}, 4.0, v{H4}\nv_mul_f32 v{T+5}, v{T+5}, v{T+4}')
    k(f'v_and_b32 v{T+6}, 1, v{VG}\nv_cvt_f32_u32 v{T+6}, v{T+6}\nv_fmac_f32 v{T+5}, {fl(0.25)}, v{T+6}')
    k(f'v_lshlrev_b32 v{T+9}, 31, v{VN}\nv_lshrrev_b32 v{T+10}, 16, v{T+9}\nv_or_b32 v{T+9}, v{T+9}, v{T+10}')
    for i in range(8): k(f'v_fmamk_f32 v{S+i}, v{T+4}, {fl((i&3)+8*(i>>2))}, v{T+5}')
    for i in range(8): k(f'v_sin_f32 v{S+8+i}, v{S+i}')
    for i in range(8): k(f'v_cos_f32 v{S+i}, v{S+i}')
    for i in range(4): k(f'v_cvt_pk_f16_f32 v{B2+8+i}, v{S+8+2*i}, v{S+9+2*i}')
    for i in range(4): k(f'v_cvt_pk_f16_f32 v{B2+i}, v{S+2*i}, v{S+1+2*i}')
    for i in range(4): k(f'v_xor_b32 v{B2+4+i}, v{B2+i}, v{T+9}\nv_xor_b32 v{B2+12+i}, v{B2+8+i}, v{T+9}')
    for i in range(16): k(f'v_xor_b32 v{B2N+i}, 0x80000000, v{B2+i}')
    VB=cfg.get('vblk',1)
    if VB:
        k(f'v_lshlrev_b32 v{T+5}, 4, v{VG}\nv_lshl_add_u32 v{T+5}, v{VN}, 14, v{T+5}\ns_lshl_b32 s3, s{sSlo}, 6\nv_add_u32 v{VOUT}, s3, v{T+5}\nv_add_u32 v{VOUT2}, 0x2000, v{VOUT}')
    else:
        k(f'v_lshlrev_b32 v{T+5}, 4, v{VG}\nv_lshl_add_u32 v{T+5}, v{VN}, 6, v{T+5}\ns_lshl_b32 s3, s{sSlo}, 10\nv_add_u32 v{VOUT}, s3, v{T+5}\nv_add_u32 v{VOUT2}, 0x20000, v{VOUT}')
    k(f's_lshl_b32 s58, s{sWq}, 18\ns_sub_u32 s59, 16, s{sWq}\ns_cmp_eq_u32 s{sWq}, 0\ns_cselect_b32 s59, 8, s59\ns_lshl_b32 s59, s59, 18\nv_mov_b32 v{VJ}, 0')
    def x2_early(q=None):
        q=q or A2
        k(f's_lshl_b32 s3, s{sWave}, 9\ns_add_u32 s3, s3, s{sRb}\nv_lshl_add_u32 v{q}, v{VN}, 4, s3')
        k(f'v_lshlrev_b32 v{q+2}, 3, v{VG}\ns_lshl_b32 s3, s{sCb}, 6\nv_add_u32 v{q+2}, s3, v{q+2}\nv_lshl_add_u32 v{q+3}, v{q}, 11, v{q+2}\nv_cmp_eq_u32 vcc, 0, v{q+2}\nv_mov_b32 v{q+8}, 0x40000000\ns_mov_b32 s3, {256*2048}')
        for tt in range(2):
            k(f'v_sub_u32 v{q+1}, {2048-256*tt}, v{q}\nv_and_b32 v{q+1}, 2047, v{q+1}\nv_lshlrev_b32 v{q+6+tt}, 11, v{q+1}\nv_sub_u32 v{q+4+tt}, v{q+6+tt}, v{q+2}\nv_add_u32 v{q+4+tt}, {2048-8-32}, v{q+4+tt}\nv_cndmask_b32 v{q+6+tt}, v{q+8}, v{q+6+tt}, vcc')
        for tt in range(2):
            for j in range(2): k.vmem(f'buffer_load_dwordx2 a[{(tt*2+j)*2}:{(tt*2+j)*2+1}], v{q+3}, s[{sXS}:{sXS+3}], {"s3" if tt else "0"} offen offset:{32*j}','x2')
        for tt in range(2):
            for j in range(2): k.vmem(f'buffer_load_dwordx3 a[{8+(tt*2+j)*4}:{10+(tt*2+j)*4}], v{q+4+tt}, s[{sXS}:{sXS+3}], 0 offen offset:{32*(1-j)}','x2')
            k.vmem(f'buffer_load_dword a{8+tt*8+3}, v{q+6+tt}, s[{sXS}:{sXS+3}], 0 offen offset:1024','x2')
    if cfg.get('x2pos',2)==0: x2_early()
    PF1=cfg.get('pf1',1); NQ=cfg.get('nq',4)
    if PF1:
        srd(sXC,pW1,1024*7168)
        k(f's_lshl_b32 s3, s2, 2\ns_add_u32 s3, s3, s{sWave}\ns_mul_i32 s45, s3, {14*NQ*128}\nv_lshlrev_b32 v{TT+2}, 7, v{VL}\nv_cmp_gt_u32 vcc, {14*NQ}, v{VL}\nv_mov_b32 v{TT+3}, 0x40000000\ns_nop 0\nv_cndmask_b32 v{TT+2}, v{TT+3}, v{TT+2}, vcc')
        pieces=[(pW1,o*QW) for o in range(3,NQ-1,-1)]+[p for p in pieces if p[0]!=pW1]
    def pf1(pos):
        if PF1==pos: k.vmem(f'buffer_load_dword a255, v{TT+2}, s[{sXC}:{sXC+3}], s45 offen','pf')
    pf1(4)
    G=T; SM=T+4
    for p in range(4):
        k.wait(vm=[('x',p)])
        for sub in range(2): k.lds(f'ds_read_b128 {v(XG+8*p+4*sub,4)}, v{VGR+sub} offset:{2048*p}',('g',2*p+sub))
    stamp(2)
    if cfg.get('x2pos',2)==1: x2_early()
    k.vmem(f'buffer_load_dwordx2 {v(VNON,2)}, v{VJ}, s[{sB}:{sB+3}], 0 offen sc1','non')
    pf1(1)
    pf_point(0,TT)
    for q in range(8):
        k.wait(lg=[('g',q)])
        k(f'v_mfma_f32_16x16x32_bf16 {v(G,4)}, {v(XG+4*q,4)}, {v(XG+4*q,4)}, {"0" if q==0 else v(G,4)}')
        k(f'v_mfma_f32_16x16x32_bf16 {v(SM,4)}, {v(ONES,4)}, {v(XG+4*q,4)}, {"0" if q==0 else v(SM,4)}')
    p1(3)
    for t in range(4):
        k.lds(f'ds_read_b64_tr_b16 {v(XT+4*t,2)}, v{VXR+(t&1)} offset:{2048*(t>>1)}','xt')
        k.lds(f'ds_read_b64_tr_b16 {v(XT+4*t+2,2)}, v{VXR+(t&1)} offset:{2048*(t>>1)+1024}','xt')
    k(f'v_cndmask_b32 v{SM+1}, v{G}, v{G+1}, s[{mA}:{mA+1}]\nv_cndmask_b32 v{SM+1}, v{SM+1}, v{G+2}, s[{mB}:{mB+1}]\nv_cndmask_b32 v{SM+1}, v{SM+1}, v{G+3}, s[{mC}:{mC+1}]')
    k.lds(f'ds_write_b64 v{VST}, {v(SM,2)}','sw')
    for t in range(4,8):
        k.lds(f'ds_read_b64_tr_b16 {v(XT+4*t,2)}, v{VXR+(t&1)} offset:{2048*(t>>1)}','xt2')
        k.lds(f'ds_read_b64_tr_b16 {v(XT+4*t+2,2)}, v{VXR+(t&1)} offset:{2048*(t>>1)+1024}','xt2')
    pf1(2)
    pf_point(1,TT)
    k.wait(lg=['sw']); k('s_barrier')
    p1(4)
    R=A1
    for q in range(2): k.lds(f'ds_read_b128 {v(R+4*q,4)}, v{VSR} offset:{16*q}','sr')
    k.wait(lg=['sr'])
    for a_,b_ in ((0,2),(4,6),(0,4)):
        k(f'v_pk_add_f32 {v(R+a_,2)}, {v(R+a_,2)}, {v(R+b_,2)}')
    k(f'v_mul_f32 v{R+3}, {fl(1/1024)}, v{R}\nv_mul_f32 v{R+2}, v{R+3}, v{R+3}\nv_mul_f32 v{R+1}, {fl(1/1024)}, v{R+1}\nv_sub_f32 v{R+1}, v{R+1}, v{R+2}')
    k(f'v_max_f32 v{R+1}, 0, v{R+1}\nv_add_f32 v{R+1}, {fl(1e-5)}, v{R+1}\nv_rsq_f32 v{R+1}, v{R+1}')
    M=R+4; CI=G
    k(f'v_mov_b32 v{CI}, 0\nv_mul_f32 v{R}, -v{R+3}, v{R+1}')
    k(f'v_mov_b32 v{VSR}, v{R+3}')
    for i in range(8):
        ln=(i&3)+8*(i>>2)
        k(f'v_mul_f32_dpp v{M+i}, v{R+1}, v{PM+i} row_newbcast:{ln} row_mask:0xf bank_mask:0xf')
    for i in range(8):
        ln=(i&3)+8*(i>>2)
        k(f'v_fmac_f32_dpp v{CI}, v{R}, v{PM+i} row_newbcast:{ln} row_mask:0xf bank_mask:0xf')
    MH=SM; ML=T+8
    for i in range(4): k(f'v_cvt_pk_bf16_f32 v{MH+i}, v{M+2*i}, v{M+2*i+1}')
    if cfg.get('lo',0):
        k(f'v_mov_b32 v{CI+1}, v{CI}')
        for i in range(2):
            k(f'v_lshlrev_b32 v{R+12}, 16, v{MH+i}\nv_and_b32 v{R+13}, 0xffff0000, v{MH+i}\nv_pk_add_f32 {v(M+2*i,2)}, {v(M+2*i,2)}, {v(R+12,2)} neg_lo:[0,1] neg_hi:[0,1]')
        k(f'v_permlane16_swap_b32 v{CI}, v{CI+1}')
        for i in range(2,4):
            k(f'v_lshlrev_b32 v{R+12}, 16, v{MH+i}\nv_and_b32 v{R+13}, 0xffff0000, v{MH+i}\nv_pk_add_f32 {v(M+2*i,2)}, {v(M+2*i,2)}, {v(R+12,2)} neg_lo:[0,1] neg_hi:[0,1]')
            if i==2: k(f'v_add_f32 v{CI}, v{CI}, v{CI+1}\nv_mov_b32 v{CI+1}, v{CI}')
        k(f'v_permlane32_swap_b32 v{CI}, v{CI+1}')
        for i in range(4): k(f'v_cvt_pk_bf16_f32 v{ML+i}, v{M+2*i}, v{M+2*i+1}')
        k(f'v_add_f32 v{CI}, v{CI}, v{CI+1}\nv_mov_b32 v{CI+1}, v{CI}\nv_mov_b32 v{CI+2}, v{CI}\nv_mov_b32 v{CI+3}, v{CI}')
    else:
        k(f'v_mov_b32 v{CI+1}, v{CI}\ns_nop 1\nv_permlane16_swap_b32 v{CI}, v{CI+1}\nv_add_f32 v{CI}, v{CI}, v{CI+1}\nv_mov_b32 v{CI+1}, v{CI}\ns_nop 1\nv_permlane32_swap_b32 v{CI}, v{CI+1}')
        k(f'v_add_f32 v{CI}, v{CI}, v{CI+1}\nv_mov_b32 v{CI+1}, v{CI}\nv_mov_b32 v{CI+2}, v{CI}\nv_mov_b32 v{CI+3}, v{CI}')
    k.wait(lg=['xt2']); k('s_nop 0')
    p1(5)
    for t in range(8): k(f'v_mfma_f32_16x16x32_bf16 {v(ZD+4*t,4)}, {v(XT+4*t,4)}, {v(MH,4)}, {v(CI,4)}')
    if cfg.get('lo',0):
        for t in range(8): k(f'v_mfma_f32_16x16x32_bf16 {v(ZD+4*t,4)}, {v(XT+4*t,4)}, {v(ML,4)}, {v(ZD+4*t,4)}')
    k('s_nop 0')
    for t in range(8):
        k(f'v_cvt_pk_f16_f32 v{ZD+4*t}, v{ZD+4*t}, v{ZD+4*t+1}\nv_cvt_pk_f16_f32 v{ZD+4*t+1}, v{ZD+4*t+2}, v{ZD+4*t+3}')
        k.lds(f'ds_write_b64 v{VZW}, {v(ZD+4*t,2)} offset:{128*(t>>1)+32*(t&1)}','zw')
    k.wait_all(vm=False); k('s_barrier')
    p1(6)
    for q in range(2):
        for ks in range(2):
            for hf in range(2):
                k.lds(f'ds_read_b64_tr_b16 {v(A1+8*q+4*ks+2*hf,2)}, v{VZR} offset:{q*ZSTR+(16*ks+4*hf)*64}',('a1',q,ks))
    pf1(3)
    pf_point(2,TT)
    EP=240
    k.lds(f'ds_read_u16 v{EP+2}, v{VE}','ez')
    k.lds(f'ds_read_u16 v{EP+3}, v{VE} offset:{ZSTR}','ez')
    UR,UI,VR,VI=D1,D1+16,D1+32,D1+48
    for q,(dr,di) in enumerate(((UR,UI),(VR,VI))):
        for ks in range(2):
            k.wait(lg=[('a1',q,ks)])
            k(f'v_mfma_f32_32x32x16_f16 {v(dr,16)}, {v(A1+8*q+4*ks,4)}, {v(B1+4*ks,4)}, {"0" if ks==0 else v(dr,16)}')
            k(f'v_mfma_f32_32x32x16_f16 {v(di,16)}, {v(A1+8*q+4*ks,4)}, {v(B1+8+4*ks,4)}, {"0" if ks==0 else v(di,16)}')
    k.wait(lg=['ez'])
    k(f's_xor_b32 s30, s{sH1}, 1\ns_mov_b32 s31_, 0'.replace('s31_','s29'))
    k(f'v_lshl_or_b32 v{TT}, v{EP+3}, 16, v{EP+2}\nv_xor_b32 v{TT+1}, 0x80000000, v{TT}\ns_mov_b32 s16, s30\ns_mov_b32 s17, 0\ns_nop 0')
    k(f'v_cndmask_b32 v{EP+2}, v{TT}, v{EP+2}, s[16:17]\nv_cndmask_b32 v{EP+3}, v{TT+1}, v{EP+3}, s[16:17]\ns_nop 4')
    p1(7)
    k(f's_cmp_eq_u32 s{sWq}, 0\ns_cbranch_scc1 {name}_nocomb')
    for x in (UR,UI,VR,VI):
        for r in range(8): k(f'v_cvt_pk_f16_f32 v{x+r}, v{x+2*r}, v{x+2*r+1}')
    NG='neg_lo:[0,1] neg_hi:[0,1]'
    for r in range(8): k(f'v_pk_add_f16 v{A2+r}, v{UR+r}, v{VI+r} {NG}\nv_pk_add_f16 v{A2+8+r}, v{UI+r}, v{VR+r}')
    for r in range(8): k(f'v_pk_add_f16 v{A2+16+r}, v{UR+r}, v{VI+r}\nv_pk_add_f16 v{A2+24+r}, v{UI+r}, v{VR+r} {NG}')
    k(f's_branch {name}_comb')
    k.label(f'{name}_nocomb')
    for i,x in enumerate((UR,UI,VR,VI)):
        for r in range(8): k(f'v_cvt_pk_f16_f32 v{A2+8*i+r}, v{x+2*r}, v{x+2*r+1}')
    k.label(f'{name}_comb')
    p1(8)
    OUT=[(B1,A1),(UR,UI)]
    def final(o):
        d,dn=OUT[o]
        if o==0: k.vmem(f'buffer_store_dword v{VSR}, v{VMX}, s[{sWS}:{sWS+3}], s31 offen offset:64{SC}','st1')
        k(f'v_cndmask_b32 v{d}, v{d}, v{dn}, s[28:29]')
        for r in range(8): k(f'v_cvt_pk_f16_f32 v{d+r}, v{d+2*r}, v{d+2*r+1}')
        k('s_nop 1')
        for r in range(4): k(f'v_permlane16_swap_b32 v{d+r}, v{d+4+r}')
        for hf in range(2): k.vmem(f'buffer_store_dwordx4 {v(d+4*hf,4)}, v{VOUT2 if hf else VOUT}, s[{sWS}:{sWS+3}], s{58+o} offen{SC}','st1')
    for o in range(2):
        d,dn=OUT[o]; re=A2+16*o; im=re+8
        for ks in range(2):
            for r in range(4*ks,4*ks+4): k(f'v_pk_mul_f16 v{T+2*(r&3)}, v{im+r}, v{TWS+r}\nv_pk_mul_f16 v{T+2*(r&3)+1}, v{re+r}, v{TWS+r}')
            for r in range(4*ks,4*ks+4): k(f'v_pk_fma_f16 v{re+r}, v{re+r}, v{TWC+r}, v{T+2*(r&3)}')
            for r in range(4*ks,4*ks+4): k(f'v_pk_fma_f16 v{im+r}, v{im+r}, v{TWC+r}, v{T+2*(r&3)+1} neg_lo:[0,0,1] neg_hi:[0,0,1]')
            for part in range(2):
                for (dd,B) in ((dn,B2N),(d,B2)):
                    k(f'v_mfma_f32_32x32x16_f16 {v(dd,16)}, {v(A2+16*o+8*part+4*ks,4)}, {v(B+8*part+4*ks,4)}, {"0" if (ks==0 and part==0) else v(dd,16)}')
    p1(9)
    final(0); final(1)
    stamp(3); p1(10)
    pf_point(3,TT)
    CT=8; VFr=72; FM=104; FD=120; XD=136; XM=144; ACC2=160; MY=176; EF=184; MXV=200; T=220; VRD=1; VMA=3; VSA=5; VT0=6; VTM=244; VDV=7
    VWA=204; VWAr=208; VWAs=212; VWB=213; VWBr=216; VWBs=219
    k(f's_lshl_b32 s3, s{sWave}, 9\ns_add_u32 s52, s3, s{sRb}\nv_lshl_add_u32 v{VT0}, v{VN}, 4, s52')
    k.wait(vm=['non'])
    Lq=k.newlabel('nspin'); Lr=k.newlabel('nok')
    k(f's_mov_b32 s47, {1<<18}')
    k.label(Lq)
    k(f'v_readfirstlane_b32 s{sNon}, v{VNON}\nv_readfirstlane_b32 s{sNon+1}, v{VNON+1}\ns_sub_u32 s47, s47, 1\ns_cbranch_scc1 {Lr}\ns_cmp_lg_u32 s{sNon}, 0\ns_cbranch_scc1 {Lr}')
    k(f's_sleep 1\nbuffer_load_dwordx2 {v(VNON,2)}, v{VJ}, s[{sB}:{sB+3}], 0 offen sc1\ns_waitcnt vmcnt(0)\ns_branch {Lq}')
    k.label(Lr)
    k(f's_cmp_eq_u32 s{sCb}, 0\ns_cselect_b32 s16, 0xffff, 0\ns_mov_b32 s17, 0')
    for tt in range(2): k(f'v_sub_u32 v{VTM+tt}, {2048-256*tt}, v{VT0}\nv_and_b32 v{VTM+tt}, 2047, v{VTM+tt}')
    TF=T+12; BS=T+14
    k(f'v_cvt_f32_u32 v{TF}, v{VT0}\nv_cvt_f32_u32 v{T+16}, v{VG}\nv_mul_f32 v{TF}, {fl(1/2048)}, v{TF}\nv_add_f32 v{TF+1}, {fl(0.125)}, v{TF}\nv_mul_f32 v{T+16}, 4.0, v{T+16}')
    k(f'v_mul_f32 v{BS}, v{TF}, v{T+16}\nv_mul_f32 v{BS+1}, v{TF+1}, v{T+16}')
    def ctgen(u,tt):
        S=VFr+16*((u*2+tt)&1)
        for i in range(8): k(f'v_fmamk_f32 v{S+i}, v{TF+tt}, {fl(32*u+(i&3)+16*(i>>2))}, v{BS+tt}')
        for i in range(8): k(f'v_sin_f32 v{S+8+i}, v{S+i}')
        for i in range(8): k(f'v_cos_f32 v{S+i}, v{S+i}')
        for i in range(4): k(f'v_cvt_pk_f16_f32 v{CT+((u+4)*2+tt)*4+i}, v{S+8+2*i}, v{S+9+2*i}')
        for i in range(4): k(f'v_cvt_pk_f16_f32 v{CT+(u*2+tt)*4+i}, v{S+2*i}, v{S+1+2*i}')
    todo=[(u,tt) for u in range(4) for tt in range(2)]
    for _ in range(cfg.get('ctpre',5)): ctgen(*todo.pop(0))
    k.wait(vm=['st1'])
    signal(31,EP,keep=True)
    stamp(4)
    if cfg.get('x2pos',2)==2: x2_early(FM)
    SEN=cfg.get('sen',0)
    pf_point(4,T)
    W2P=cfg.get('w2p',11)
    while todo: ctgen(*todo.pop(0))
    k(f'v_lshrrev_b32 v{T}, 2, v{VL}\nv_and_b32 v{T+1}, 3, v{VL}\nv_and_b32 v{T+2}, 1, v{VG}\nv_lshlrev_b32 v{T+2}, 1, v{T+2}\nv_xor_b32 v{T+1}, v{T+1}, v{T+2}')
    k(f'v_lshlrev_b32 v{T}, 6, v{T}\nv_lshl_add_u32 v{VDV}, v{T+1}, 4, v{T}')
    k(f's_lshl_b32 s23, s{sRb}, 18\ns_lshl_b32 s3, s{sCb}, 14\ns_add_u32 s23, s23, s3\ns_lshl_b32 s3, s{sWave}, 12\ns_add_u32 s23, s23, s3\ns_add_u32 s28, s3, {L_V}')
    k(f's_sub_u32 s3, 16, s{sRb}\ns_min_u32 s3, s3, s{sRb}\ns_bfe_u32 s30, s3, 0x10002\ns_lshl_b32 s30, s30, 14\ns_add_u32 s30, s30, {WS_R1}\ns_and_b32 s3, s3, 3\ns_lshl_b32 s3, s3, 4\ns_add_u32 s29, s30, s3')
    k(f'v_lshlrev_b32 v{T+4}, 7, v{VL}\nv_add_u32 v{T+5}, 0x2000, v{T+4}')
    for i,src in enumerate((VT0,VTM,VTM+1)):
        k(f'v_and_b32 v{T+9+i}, 127, v{src}\nv_lshlrev_b32 v{T+9+i}, 7, v{T+9+i}\nv_lshrrev_b32 v{T+8}, 7, v{src}\nv_lshl_add_u32 v{T+9+i}, v{T+8}, 2, v{T+9+i}')
    k(f'v_and_b32 v{T+6}, 32, v{VL}\nv_lshlrev_b32 v{T+6}, 1, v{T+6}\nv_bfe_u32 v{T+7}, v{VL}, 2, 2\nv_lshl_add_u32 v{T+6}, v{T+7}, 4, v{T+6}\nv_bfe_u32 v{T+7}, v{VL}, 4, 1\nv_lshl_add_u32 v{T+6}, v{T+7}, 3, v{T+6}\nv_and_b32 v{T+7}, 3, v{VL}\nv_lshl_add_u32 v{T+6}, v{T+7}, 1, v{T+6}')
    k(f'v_add_u32 v{T+6}, {L_E}, v{T+6}\nv_lshlrev_b32 v{T+7}, 4, v{VG}\nv_add_u32 v{T+7}, {L_E}, v{T+7}')
    k(f's_cmp_ge_u32 s{sRb}, 8\ns_cselect_b64 s[18:19], -1, 0')
    sWlA,sWlB=56,44
    k(f's_mul_i32 s{sWlA}, s{sWave}, {4*1056}')
    sCA,sCB=84,85
    k(f's_bitcmp1_b32 s{sC8}, 0\ns_cselect_b32 s{sCA}, 192, 0\ns_cselect_b32 s{sCB}, 0, 256')
    NS=8; NSTG=32; sWoff,sToff=52,53
    state={'woff':None,'toff':None,'m0':None}
    NSB=cfg.get('nsb',5)
    def slot3(S): return S%NS if S<16 else S%NSB
    def prev3(S):
        return max([x for x in range(S) if slot3(x)==slot3(S)], default=-1)
    def dma(S,q):
        p_=S>>4; s_=S&15
        sp=(s_==8 and q==0)
        want = (p_, 0 if sp else (s_*64*7168 if s_<8 else (1536-64*s_-63)*7168-4096))
        if state['woff']!=want:
            k(f's_add_u32 s{sWoff}, s{sCB if p_ else sCA}, {want[1]}'); state['woff']=want
        if state['m0']!=('W',S):
            k(f's_add_u32 m0, s{sWlB if p_ else sWlA}, {slot3(S)*STG3}'); state['m0']=('W',S)
        vo=((VWBs if p_ else VWAs) if sp else ((VWBr if p_ else VWAr) if s_>=8 else (VWB if p_ else VWA))+q)
        return lambda: k.vmem(f'buffer_load_dwordx4 v{vo}, s[{sW}:{sW+3}], s{sWoff} offen offset:{(1024 if p_ else 1056)*q}{W1F} lds', ('W',S))
    def dma_now(S,q):
        f_=dma(S,q); k('s_nop 0'); f_()
    EWP=cfg.get('ewpos',2); EW=cfg.get('ew',2)
    PD=EF
    def e_stage():
        for i in range(2):
            k(f'v_cndmask_b32 v{PD+4*i+2}, v{PD+4*i+2}, v{PD+4*i+3}, s[18:19]')
            k(f'ds_write_b16 v{T+6}, v{PD+4*i+2} offset:{128*i}\nds_write_b16_d16_hi v{T+6}, v{PD+4*i+2} offset:{128*i+256}')
        k('s_waitcnt lgkmcnt(0)')
    if W2P//10: pf_w123(pW2,0,(W2P//10)*2*QW,T)
    poll0(T+4,29,PD,True,extra=e_stage)
    stamp(5)
    k(f's_mov_b32 m0, s28\ns_mul_i32 s{sWlB}, s{sWave}, 3072')
    for q in range(4): k.vmem(f'buffer_load_dwordx4 v{VDV}, s[{sWS}:{sWS+3}], s23 offen offset:{q*1024}{SC} lds','v')
    k.vmem(f'buffer_load_dword v{MXV}, v{T+9}, s[{sWS}:{sWS+3}], s30 offen offset:64{SC}','mx')
    k.vmem(f'buffer_load_dword v{MXV+2}, v{T+9}, s[{sWS}:{sWS+3}], s30 offen offset:72{SC}','mx')
    for tt in range(2): k.vmem(f'buffer_load_dword v{MXV+2*tt+1}, v{T+10+tt}, s[{sWS}:{sWS+3}], s30 offen offset:64{SC}','mx')
    def rdE(u): k.lds(f'ds_read_b128 {v(EF+4*(u%4),4)}, v{T+7} offset:{64*u}',('er',u))
    for u in range(3): rdE(u)
    for u in range(8):
        k.wait(lg=[('er',u)])
        for tt in range(2):
            d=MY+4*tt
            k(f'v_mfma_f32_16x16x32_f16 {v(d,4)}, {v(EF+4*(u%4),4)}, {v(CT+(u*2+tt)*4,4)}, {"0" if u==0 else v(d,4)}')
        if u+3<8: rdE(u+3)
    for tt in range(2):
        k(f'v_and_b32 v{T+8}, 15, v{VTM+tt}\nv_lshlrev_b32 v{T+8}, 2, v{T+8}\nv_lshrrev_b32 v{T+9}, 9, v{VTM+tt}\nv_add_u32 v{T+8}, v{T+8}, v{T+9}')
        k(f'v_bfe_u32 v{T+9}, v{VTM+tt}, 8, 1\nv_bfe_u32 v{T+10}, v{VTM+tt}, 4, 4\nv_lshl_add_u32 v{T+11}, v{VG}, 4, v{T+10}\nv_lshlrev_b32 v{T+11}, 4, v{T+11}')
        k(f'v_lshl_add_u32 v{T+11}, v{T+9}, 10, v{T+11}\nv_lshl_add_u32 v{VMA+tt}, v{T+8}, 16, v{T+11}')
        k(f'v_lshl_add_u32 v{T+10}, v{T+9}, 4, v{T+10}\nv_lshlrev_b32 v{T+10}, 2, v{T+10}\nv_lshl_add_u32 v{T+10}, v{VG}, 9, v{T+10}\nv_lshl_add_u32 v{VSM+tt}, v{T+8}, 12, v{T+10}')
    k(f'v_and_b32 v{T+2}, 31, v{VL}\nv_lshlrev_b32 v{T+2}, 2, v{T+2}\nv_lshrrev_b32 v{T+3}, 5, v{VL}\nv_lshl_add_u32 v{VSA}, v{T+3}, 11, v{T+2}')
    k(f's_lshl_b32 s20, s{sTb}, 16\ns_lshl_b32 s21, s{sCb}, 11\ns_add_u32 s21, s21, {WS_H1}\ns_add_u32 s20, s20, s21\ns_add_u32 s21, s21, {16*2048}')
    k(f's_lshl_b32 s22, s{sTb}, 12\ns_lshl_b32 s3, s{sCb}, 7\ns_add_u32 s22, s22, s3\ns_add_u32 s22, s22, {WS_ST}')
    k(f'v_lshrrev_b32 v{T+8}, 2, v{VL}\nv_lshlrev_b32 v{T+8}, 6, v{T+8}\nv_and_b32 v{T+9}, 3, v{VL}\nv_lshl_add_u32 v{T+8}, v{T+9}, 3, v{T+8}\nv_and_b32 v{T+9}, 16, v{VL}\nv_lshlrev_b32 v{T+9}, 1, v{T+9}\nv_add_u32 v{T+8}, {L_V}, v{T+8}')
    k(f'v_add_u32 v{VRD}, v{T+8}, v{T+9}\nv_sub_u32 v{VRD+1}, v{T+8}, v{T+9}\nv_add_u32 v{VRD+1}, 32, v{VRD+1}')
    t0=T+12
    k(f's_lshr_b32 s3, s{sWave}, 1\ns_lshl_b32 s3, s3, 5\ns_and_b32 s48, s{sWave}, 1\ns_lshl_b32 s48, s48, 2\ns_add_u32 s3, s3, s48\nv_lshl_add_u32 v{t0}, v{VG}, 3, s3\nv_lshlrev_b32 v{t0+1}, 4, v{VN}\nv_mul_u32_u24 v{t0+2}, 7168, v{t0}')
    for q in range(4):
        k(f's_mov_b32 s48, {q*(7168-1056)}\nv_add3_u32 v{VWA+q}, v{t0+2}, v{t0+1}, s48')
        k(f's_mov_b32 s48, {63*7168+4096-q*(7168+1056)}\nv_sub_u32 v{VWAr+q}, s48, v{t0+2}\nv_add_u32 v{VWAr+q}, v{VWAr+q}, v{t0+1}')
    k(f'v_add_u32 v{VWAs}, {961*7168-4096}, v{VWAr}\nv_add_u32 v{t0+2}, {512*7168}, v{t0+1}\nv_cmp_eq_u32 vcc, 0, v{t0}\ns_mul_i32 s3, s{sWave}, 192\nv_add_u32 v{t0}, s3, v{VL}\nv_cndmask_b32 v{VWAs}, v{VWAs}, v{t0+2}, vcc')
    for q in range(3):
        k(f'v_mul_u32_u24 v{t0+1}, 43691, v{t0}\nv_lshrrev_b32 v{t0+1}, 19, v{t0+1}\nv_mul_u32_u24 v{t0+2}, 12, v{t0+1}\nv_sub_u32 v{t0+2}, v{t0}, v{t0+2}')
        k(f'v_lshrrev_b32 v{t0+3}, 1, v{t0+1}\nv_and_b32 v{t0+3}, 2, v{t0+3}\nv_xor_b32 v{t0+2}, v{t0+2}, v{t0+3}\nv_lshlrev_b32 v{t0+2}, 4, v{t0+2}\nv_mul_u32_u24 v{t0+3}, 7168, v{t0+1}')
        k(f'v_add_u32 v{VWB+q}, v{t0+3}, v{t0+2}\nv_sub_u32 v{t0+3}, {63*7168+4096-1024*q}, v{t0+3}\nv_add_u32 v{VWBr+q}, v{t0+3}, v{t0+2}')
        if q: k(f'v_subrev_u32 v{VWB+q}, {1024*q}, v{VWB+q}')
        else: k(f'v_add_u32 v{VWBs}, {961*7168-4096}, v{VWBr}\nv_add_u32 v{t0+3}, {512*7168}, v{t0+2}\nv_cmp_eq_u32 vcc, 0, v{t0+1}\ns_nop 1\nv_cndmask_b32 v{VWBs}, v{VWBs}, v{t0+3}, vcc')
        if q<2: k(f'v_add_u32 v{t0}, 64, v{t0}')
    k.wait(vm=['x2'])
    for i in range(24):
        if i<8 or (i&3)!=3 or (i&7)==3: k(f'v_accvgpr_read_b32 v{XD+i}, a{i}')
    for tt in range(2):
        k(f'v_cndmask_b32 v{XM+tt*8+2}, v{XM+tt*8+2}, v{XM+tt*8+3}, s[16:17]')
    for tt in range(2):
        for j in range(2):
            m=XM+(tt*2+j)*4; f=FM+(tt*2+j)*4
            k(f'v_lshlrev_b32 v{f}, 16, v{m+2}\nv_and_b32 v{f+1}, 0xffff0000, v{m+1}\nv_lshlrev_b32 v{f+2}, 16, v{m+1}\nv_and_b32 v{f+3}, 0xffff0000, v{m}')
            m=XD+(tt*2+j)*2; f=FD+(tt*2+j)*4
            k(f'v_lshlrev_b32 v{f}, 16, v{m}\nv_and_b32 v{f+1}, 0xffff0000, v{m}\nv_lshlrev_b32 v{f+2}, 16, v{m+1}\nv_and_b32 v{f+3}, 0xffff0000, v{m+1}')
    k.wait(vm=['mx'])
    k('s_barrier')
    def rd2(u):
        for j in range(2):
            for q in range(2):
                k.lds(f'ds_read_b64_tr_b16 {v(VFr+((u&3)*2+j)*4+2*q,2)}, v{VRD+j} offset:{(32*u+16*q)*64}',('f',u))
    for u in range(3): rd2(u)
    pf_point(5,T)
    for tt in range(2):
        k(f'v_pk_add_f32 {v(MXV+2*tt,2)}, {v(MXV+2*tt,2)}, {v(MY+4*tt,2)}')
    for tt in range(2):
        for (F0,which) in ((FM,1),(FD,0)):
            sel=f'op_sel:[0,{which}] op_sel_hi:[1,{which}] neg_lo:[0,1] neg_hi:[0,1]'
            for j in range(2):
                f=F0+(tt*2+j)*4
                for hh in range(2): k(f'v_pk_add_f32 {v(f+2*hh,2)}, {v(f+2*hh,2)}, {v(MXV+2*tt,2)} {sel}')
    lst=[(S,q) for S in range(EW) for q in range(4)] if EWP==2 else []
    for u in range(8):
        k.wait(lg=[('f',u)])
        for j in range(2):
            for tt in range(2):
                d=ACC2+(j*2+tt)*4
                k(f'v_mfma_f32_16x16x32_f16 {v(d,4)}, {v(VFr+((u&3)*2+j)*4,4)}, {v(CT+(u*2+tt)*4,4)}, {"0" if u==0 else v(d,4)}')
        if u+3<8: rd2(u+3)
        for _ in range(-(-EW*4//8)):
            if lst: dma_now(*lst.pop(0))
    HD=CT; HM=CT+8; Q=CT+48
    k(f'v_mov_b32 v{VM}, v{MXV}\nv_mov_b32 v{VM+1}, v{MXV+2}\ns_nop 5')
    for tt in range(2):
        for (F0,H,which) in ((FM,HM,1),(FD,HD,0)):
            if which==0: k(f'v_cndmask_b32 v{ACC2+tt*4}, v{ACC2+tt*4}, 0, s[16:17]')
            for j in range(2):
                y=ACC2+(j*2+tt)*4; f=F0+(tt*2+j)*4
                for hh in range(2): k(f'v_pk_add_f32 {v(f+2*hh,2)}, {v(f+2*hh,2)}, {v(y+2*hh,2)}')
                for hh in range(2): k(f'v_cvt_pk_bf16_f32 v{H+4*tt+2*j+hh}, v{f+2*hh}, v{f+2*hh+1}')
            if which: k.vmem(f'buffer_store_dwordx4 {v(HM+4*tt,4)}, v{VMA+tt}, s[{sWS}:{sWS+3}], s21 offen{SC}','st2')
            else: k.vmem(f'buffer_store_dwordx4 {v(HD+4*tt,4)}, v{VTO}, s[{sWS}:{sWS+3}], s20 offen offset:{1024*tt}{SC}','st2')
    for tt in range(2):
        for (F0,which) in ((FM,1),(FD,0)):
            q=Q+(which*2+tt)*2
            for j in range(2):
                f=F0+(tt*2+j)*4
                for hh in range(2):
                    if j==0 and hh==0: k(f'v_pk_mul_f32 {v(q,2)}, {v(f,2)}, {v(f,2)}')
                    else: k(f'v_pk_fma_f32 {v(q,2)}, {v(f+2*hh,2)}, {v(f+2*hh,2)}, {v(q,2)}')
    for i in range(4): k(f'v_add_f32 v{Q+2*i}, v{Q+2*i}, v{Q+2*i+1}')
    k(f's_nop 0\nv_permlane32_swap_b32 v{Q}, v{Q+4}\nv_permlane32_swap_b32 v{Q+2}, v{Q+6}\nv_add_f32 v{Q}, v{Q}, v{Q+4}\nv_add_f32 v{Q+2}, v{Q+2}, v{Q+6}\ns_nop 1')
    k(f'v_permlane16_swap_b32 v{Q}, v{Q+2}\nv_add_f32 v{Q}, v{Q}, v{Q+2}')
    k.vmem(f'buffer_store_dword v{Q}, v{VSA}, s[{sWS}:{sWS+3}], s22 offen{SC}','st2')
    stamp(6)
    LAF=7; NB=8
    ACC=[0,64]; NT_=[8,6]; WF=112; OH=144; SQ=OH+40; AUGB=200; VRA=220; VRB=223; T0=230; BFS=[OH+32,16]
    VWo,VWg,VOA,VPA=240,241,244,239; AU4=234; VBA=238
    TK=256
    k(f'v_bfe_u32 v{T0}, v{VL}, 2, 3\nv_mul_u32_u24 v{T0}, 1056, v{T0}\nv_lshrrev_b32 v{T0+1}, 5, v{VL}\nv_lshl_add_u32 v{T0}, v{T0+1}, 8, v{T0}\nv_and_b32 v{T0+2}, 3, v{VL}\nv_lshl_add_u32 v{VRA}, v{T0+2}, 3, v{T0}')
    k(f'v_lshrrev_b32 v{T0}, 2, v{VL}\nv_mul_u32_u24 v{T0}, 192, v{T0}\nv_lshl_add_u32 v{T0}, v{T0+2}, 3, v{T0}\nv_and_b32 v{T0+1}, 16, v{VL}\nv_lshlrev_b32 v{T0+1}, 1, v{T0+1}\nv_add_u32 v{VRB}, v{T0}, v{T0+1}\nv_sub_u32 v{VRB+1}, v{T0}, v{T0+1}')
    for i in (1,2): k(f'v_add_u32 v{VRA+i}, {i*3*STG3}, v{VRA}\nv_add_u32 v{VRB+2*i}, {i*3*STG3}, v{VRB}\nv_add_u32 v{VRB+2*i+1}, {i*3*STG3}, v{VRB+1}')
    k(f's_lshl_b32 s3, s{sTb}, 16\ns_add_u32 s3, s3, {WS_H1}')
    srd(sT,pWS,65536,addreg=3)
    k(f's_lshl_b32 s55, s{sRb}, 4\ns_add_u32 s55, s55, s{sCb}\ns_lshl_b32 s55, s55, 6\ns_add_u32 s54, s55, {WS_F3}\ns_add_u32 s55, s55, {WS_F2}')
    k(f's_mul_i32 s3, s{sTb}, {224*1024}\ns_mul_i32 s48, s{sCb}, {14*1024}\ns_add_u32 s3, s3, s48\ns_add_u32 s3, s3, {WS_HH}')
    srd(sO,pWS,14*1024,addreg=3)
    srd(sB,pB1,3584*2)
    k(f's_mov_b32 s46, {WS_ST}\ns_lshl_b32 s58, s{sTb}, 12\ns_add_u32 s58, s58, {WS_ST}')
    k(f'v_lshrrev_b32 v{T0+1}, 3, v{VL}\nv_and_b32 v{T0+2}, 7, v{VL}\nv_and_b32 v{T0+3}, 6, v{T0+1}\nv_xor_b32 v{T0+2}, v{T0+2}, v{T0+3}\nv_lshlrev_b32 v{T0+2}, 4, v{T0+2}\nv_lshl_add_u32 v{T0+1}, v{T0+1}, 11, v{T0+2}')
    k(f's_lshl_b32 s48, s{sWave}, 14\nv_add_u32 v{VWg}, s48, v{T0+1}\ns_mul_i32 s3, s{sC8}, {224*2048}\nv_add_u32 v{VWo}, s3, v{VWg}')
    if EWP!=2: EW=0
    WPRE=max(EW,cfg.get('wpre',6)); WMID=min(WPRE,max(EW,cfg.get('wmid',0)))
    for S in range(EW,WMID):
        for q in range(4): dma_now(S,q)
    k.wait(vm=['st2'])
    signal(55,T0)
    if cfg.get('w3skip',0):
        Lw=k.newlabel('w3')
        k('s_barrier')
        k(f's_cmp_eq_u32 s{sWave}, 3\ns_cbranch_scc1 {Lw}')
        k(f's_lshr_b32 s3, s{sWave}, 1\ns_lshl_b32 s3, s3, 5\ns_and_b32 s48, s{sWave}, 1\ns_lshl_b32 s48, s48, 2\ns_add_u32 s3, s3, s48\ns_sub_u32 s3, 36, s3\ns_mul_i32 s45, s3, 7168\ns_add_u32 s45, s45, s{sCA}')
        for S in range(WMID,WPRE):
            for q in range(4): dma_now(S,q)
        ex=[(S,q) for S in range(WMID,WPRE) for q in range(4)]
        for w_ in range(3):
            Ln_=k.newlabel('w3x')
            k(f's_cmp_lg_u32 s{sWave}, {w_}\ns_cbranch_scc1 {Ln_}')
            for (S,q) in ex[w_::3]:
                k(f's_add_u32 s3, s45, {S*64*7168}\ns_mov_b32 m0, {slot3(S)*STG3+3*4224}\ns_nop 0\nbuffer_load_dwordx4 v{VWA+q}, s[{sW}:{sW+3}], s3 offen offset:{1056*q} lds')
            k.label(Ln_)
        k.label(Lw)
        state['m0']=None; state['woff']=None
    else:
        if cfg.get('sigbar',1): k('s_barrier')
        for S in range(WMID,WPRE):
            for q in range(4): dma_now(S,q)
    k(f's_sub_u32 s3, 16, s{sRb}\ns_and_b32 s3, s3, 15\ns_lshl_b32 s3, s3, 10\ns_lshl_b32 s48, s{sRb}, 10\nv_mov_b32 v{T0}, s3\nv_mov_b32 v{T0+1}, s48\nv_and_b32 v{T0+2}, 1, v{VG}\nv_cmp_eq_u32 vcc, 0, v{T0+2}\ns_mov_b32 s59, {WS_F2}\ns_nop 0\nv_cndmask_b32 v{T0}, v{T0}, v{T0+1}, vcc\nv_lshl_add_u32 v{T0}, v{VN}, 6, v{T0}')
    pf_point(6,SQ+4)
    if W2P%10: pf_w123(pW2,(W2P//10)*2*QW,(W2P%10)*2*QW,SQ+4)
    if W2P: pieces=pieces[:max(0,len(pieces)-2*(W2P//10+W2P%10))] if False else [p for p in pieces if p[0]==pW1]+[(pW2,o) for o in (0,QW,2*QW,3*QW) if o>=2*QW*(W2P//10+W2P%10)]
    if EW==0: k.wait(vm=[('W',0),('W',1)])
    poll0(T0,59,SQ,False)
    stamp(7)
    def tok(sg,_t=0):
        base=(sg//4)*4096
        if state['toff']!=base:
            k(f's_mov_b32 s{sToff}, {base}'); state['toff']=base
        return lambda: k.vmem(f'buffer_load_dwordx4 {reg(TK+4*sg,4)}, v{VTO}, s[{sT}:{sT+3}], s{sToff} offen offset:{(sg%4)*1024}{TKF}', ('T',sg))
    P0=cfg.get('P0',8)
    for sg in range(P0): tok(sg)()
    if cfg.get('pfh',0):
        k(f's_lshl_b32 s3, s{sC8}, 13\nv_lshlrev_b32 v{T0+2}, 7, v{VL}')
        k.vmem(f'buffer_load_dword v{T0+3}, v{T0+2}, s[{sT}:{sT+3}], s3 offen','pf')
    k(f'v_lshlrev_b32 v{T0}, 2, v{VN}\nv_lshl_add_u32 v{T0}, v{VG}, 9, v{T0}')
    for tt in range(2):
        for i in range(4):
            k.vmem(f'buffer_load_dword v{SQ+8*tt+i}, v{T0}, s[{sWS}:{sWS+3}], s58 offen offset:{128*i+64*tt}{SC}','sq')
            k.vmem(f'buffer_load_dword v{SQ+8*tt+4+i}, v{VSM+tt}, s[{sWS}:{sWS+3}], s46 offen offset:{2048+128*i}{SC}','sq')
    FR=[(S,u,j) for S in range(NSTG) for u in range(2) for j in range(NT_[S>>4])]
    NFR=len(FR); F0S={}
    for f,(S,u,j) in enumerate(FR): F0S.setdefault(S,f)
    F0S[NSTG]=NFR
    NDq=lambda S: 3 if S>>4 else 4
    pend=[('tok',sg,0) for sg in range(P0,64)]+[('dma',S,q) for S in range(WPRE,NS-1) for q in range(4)]
    def rd(f,q):
        if f>=NFR: return
        S,u,j=FR[f]; slot=slot3(S)
        if S<16: ar=VRA+slot//3; off=u*8*1056+q*512+32*j
        else: ar=VRB+2*(slot//3)+(j&1); off=(32*u+16*q)*192+32*j
        k.lds(f'ds_read_b64_tr_b16 {v(WF+(f%NB)*4+2*q,2)}, v{ar} offset:{off+(slot%3)*STG3}', ('R',f))
    events={}
    def at(f,item): events.setdefault(f|1 if item[0]!='valu' else f,[]).append(item)
    def run_events(f,post):
        for ev in events.get(f,[]):
            if ev[0]=='vm': post.append(ev[1])
            elif ev[0]=='valu': post.append(lambda s_=ev[1]: k(s_))
            elif ev[0]=='wait': post.append(lambda t_=ev[1]: k.wait(vm=[t_]))
    V=[('wait','sq')]
    for tt in range(2):
        b=SQ+8*tt
        for i in (1,2,3,4,5,6,7): V.append(f'v_add_f32 v{b}, v{b}, v{b+i}')
    a_=SQ; b_=SQ+8; c_=SQ+1; d_=SQ+2
    def hilo(dst,x): return [f'v_cvt_pk_bf16_f32 v{c_}, v{x}, v{x}', f'v_and_b32 v{c_}, 0xffff0000, v{c_}', f'v_sub_f32 v{c_}, v{x}, v{c_}', f'v_cvt_pk_bf16_f32 v{dst}, v{x}, v{c_}']
    V+= [f'v_permlane32_swap_b32 v{a_}, v{b_}', f'v_add_f32 v{a_}, v{a_}, v{b_}', f'v_mov_b32 v{b_}, v{a_}', f'v_permlane16_swap_b32 v{a_}, v{b_}', f'v_add_f32 v{a_}, v{a_}, v{b_}',
         f'v_mov_b32 v{b_}, {fl(1e-5)}', f'v_fmac_f32 v{b_}, {fl(1/1024)}, v{a_}', f'v_mov_b32 v{b_+1}, v{b_}', f'v_mov_b32 v{AUGB+1}, 0', f'v_permlane32_swap_b32 v{b_}, v{b_+1}', f'v_mov_b32 v{AUGB+3}, 0']
    for tt in range(2):
        V+= [f'v_sqrt_f32 v{a_}, v{b_+tt}', f'v_rcp_f32 v{VRS+tt}, v{b_+tt}']+hilo(AUGB+2*tt,a_)+hilo(AU4+2*tt,b_+tt)+[f'v_mul_f32 v{d_}, v{b_+tt}, v{VM+tt}']+hilo(AU4+2*tt+1,d_)
    V+= [f'v_lshlrev_b32 v{VBA}, 1, v{VN}', f'v_lshl_add_u32 v{VBA}, v{VG}, 28, v{VBA}']
    for j in range(8): V.append(f'v_mov_b32 v{BFS[0]+2*j+1}, 0')
    f1=F0S[cfg.get('sq_use',4)]
    for i,x in enumerate(V): at(f1+2*i, x if isinstance(x,tuple) else ('valu',x))
    assert f1+2*len(V)<F0S[14]
    for j in range(6): at(F0S[28]+2*j,('valu',f'v_mov_b32 v{BFS[1]+2*j+1}, 0'))
    for p_ in range(2):
        for j in range(NT_[p_]):
            if j==0: at(F0S[16*p_+14],('valu',f's_add_u32 s59, s57, s{sCB if p_ else sCA}'))
            at(F0S[16*p_+14]+2*j,('vm',lambda j=j,p_=p_: k.vmem(f'buffer_load_ushort v{BFS[p_]+2*j}, v{VBA}, s[{sB}:{sB+3}], s59 offen offset:{32*j}','bf')))
    if cfg.get('trk',0):
        LPW=cfg.get('lpw',4); NP=-(-56//LPW)
        def trk_setup():
            srd(sXC,pW2,1024*7168)
            k(f's_lshl_b32 s3, s2, 2\ns_add_u32 s3, s3, s{sWave}\ns_mul_i32 s58, s3, {LPW*128}\nv_lshlrev_b32 v{T0+2}, 7, v{VL}\nv_cmp_gt_u32 vcc, {LPW}, v{VL}\nv_mov_b32 v{T0+3}, 0x40000000\ns_nop 0\nv_cndmask_b32 v{T0+2}, v{T0+3}, v{T0+2}, vcc')
        trk_setup()
        f_a=F0S[cfg.get('trk0',1)]; f_b=F0S[cfg.get('trk1',24)]
        for i_ in range(NP):
            def one(i_=i_):
                k.vmem(f'buffer_load_dword v{T0+3}, v{T0+2}, s[{sXC}:{sXC+3}], s58 offen','pf')
                k(f's_add_u32 s58, s58, {LPW*128*1024}')
            at(f_a+(f_b-f_a)*i_//NP+3,('vm',one))
    elif cfg.get('qw',0):
        quiet=[]
        def big(first,nb,fpos):
            def go():
                for p in [p for p in pend if p[0]=='dma']: flush(p)
                pf_any(pW2,T0+2,first,nb,f'v{T0+3}')
                pace['quiet']=fpos+cfg.get('qlen',48)
            at(fpos,('vm',go))
        if cfg.get('qw',1)==1: big(0,4*QW,F0S[16]-cfg.get('qpre',2))
        else:
            big(0,2*QW,F0S[16]-cfg.get('qpre',2)); big(2*QW,2*QW,F0S[cfg.get('q2',22)])
    else:
        def pf_one(): pf_piece(T0+2,f'v{T0+3}')
        for i_ in range(8):
            S_=cfg.get('pf3',16)+i_*cfg.get('pf3s',2)
            if S_<NSTG: at(F0S[S_]+cfg.get('pf3o',6),('vm',pf_one))
    def cpf_again(vt):
        L=k.newlabel('cp')
        k(f's_getpc_b64 s[88:89]')
        k.label(L)
        k(f's_lshr_b32 s3, s2, 3\ns_lshl_b32 s3, s3, 10\nv_min_u32 v{vt}, 7, v{VL}\nv_lshl_add_u32 v{vt}, v{vt}, 7, s3\nv_min_u32 v{vt}, {name}_end-{L}-4, v{vt}')
        k.vmem(f'global_load_dword v{vt+1}, v{vt}, s[88:89]','pf')
    for S_ in str(cfg.get('cpa',7)).split('0'):
        if S_: at(F0S[int(S_)*3]+5,('vm',lambda: cpf_again(T0+2)))
    if SEN:
        def clr0():
            srd(sXC,pWS,4<<20,addlit=WS_X)
            k(f's_lshl_b32 s3, s2, 2\ns_add_u32 s3, s3, s{sWave}\ns_lshl_b32 s58, s3, 12')
            for i in range(4): k(f'v_mov_b32 v{CR+i}, -1')
        fc=F0S[cfg.get('clr_at',16)]+cfg.get('clr_o',0); CR=OH if cfg.get('clr_at',16)<16 else 8
        at(fc,('vm',clr0))
        for i in range(4): at(fc+cfg.get('clr_g',6)*(i+1),('vm',lambda i=i: k.vmem(f'buffer_store_dwordx4 {v(CR,4)}, v{VTO}, s[{sXC}:{sXC+3}], s58 offen offset:{1024*i} sc1','clr')))
    later=[]
    def epilogue3(p_):
        A=ACC[p_]; tm=ACC[1-p_]; n_=NT_[p_]; BF=BFS[p_]
        k.wait(vm=['bf'])
        for j in range(n_): k(f'v_lshl_or_b32 v{BF+2*j}, v{BF+2*j}, 16, v{BF+2*j}')
        def aug(j):
            for t in range(2): k(f'v_mfma_f32_16x16x16_bf16 {v(A+(2*j+t)*4,4)}, {v(BF+2*j,2)}, {v(AUGB+2*t,2)}, {v(A+(2*j+t)*4,4)}')
        for j in range(4): aug(j)
        k('s_nop 1')
        for j in range(n_//2):
            e=4*p_+j
            for x_ in (2*j+4,2*j+5):
                if x_<n_: aug(x_)
            for jj in range(2):
                R=[A+((2*j)*2+jj)*4+r for r in range(4)]+[A+((2*j+1)*2+jj)*4+r for r in range(4)]
                d=OH+8*e+4*jj; x=tm+8*jj
                for r in range(8): k(f'v_max_f32 v{x+r}, 0, v{R[r]}')
                for r in range(0,8,2): k(f'v_pk_mul_f32 {v(R[r],2)}, {v(R[r],2)}, {v(x+r,2)}')
                for r in range(4): k(f'v_cvt_pk_bf16_f32 v{d+r}, v{R[2*r]}, v{R[2*r+1]}')
                o=(2*e+jj)*1024
                def st_(o=o,d=d):
                    if state['toff']!=o//4096*4096: k(f's_mov_b32 s{sToff}, {o//4096*4096}'); state['toff']=o//4096*4096
                    k.room(1)
                    k.vmem(f'buffer_store_dwordx4 {v(d,4)}, v{VTO}, s[{sO}:{sO+3}], s{sToff} offen offset:{o%4096} sc1',('st3',p_))
                idx=2*j+jj
                if idx<cfg.get('st_now',2) or not cfg.get('st_gap',6): st_()
                else: later.append(st_)
    NS4=32; STG4=4096; NTS=32; C=32*2048; EB=35
    DL=cfg.get('DL',20)
    U=[]
    for e in range(EB): U+= [('G',e),('K',e)]
    for tau in range(EB,56+DL):
        if tau<56: U.append(('G',tau))
        if tau>=EB+DL: U.append(('K',tau-DL))
    NU=len(U); uidx={u_:i for i,u_ in enumerate(U)}
    def estep(e):
        if e<EB: return (e-7)//4, 7*((e-7)//4)+(e-7)%4
        return (e-EB)//3, 7*((e-EB)//3)+4+(e-EB)%3
    def bias_fix(e,sr,unit,two=False):
        i,st_=estep(e)
        if e in (7,EB):
            k(f's_mul_i32 s{sr}, s{sC8}, {7*unit}\ns_add_u32 s{sr}, s{sr}, {7*unit}')
            if two:
                d_=3*unit if e==7 else (-4*unit)&0xffffffff
                k(f's_bitcmp1_b32 s{sC8}, 0\ns_cselect_b32 s3, {d_}, 0\ns_add_u32 s{sr+1}, s{sr}, s3\ns_cselect_b32 s3, 0, {d_}'.replace('s_add_u32 s%d, s%d, s3\ns_cselect_b32 s3, 0, %d'%(sr+1,sr,d_),'s_cselect_b32 s48, 0, %d\ns_add_u32 s%d, s%d, s3'%(d_,sr+1,sr))+f'\ns_add_u32 s{sr}, s{sr}, s48')
        if st_-7*i in (0,4):
            k(f's_cmp_eq_u32 s{sC8}, {7-i}\ns_cselect_b32 s3, {56*unit}, 0\ns_sub_u32 s{sr}, s{sr}, s3')
            if two: k(f's_sub_u32 s{sr+1}, s{sr+1}, s3')
    sG=sT; sOA,sOB=90,91; ROT=0 if NSB==8 else -(-NSB*STG3//4096); sGoff=50; sWl4=49; sT4off=51; sBG,sBK,sBT=86,98,46
    st4={'T':None}
    def dma4(n,_q=0):
        part,e=U[n]; sr=sG if part=='G' else sK
        vo=VWo if e<7 else VWg
        if e<EB and st4.get('ge')==e: pass
        elif e<7: k(f's_add_u32 s{sGoff}, s{sOA if e<4 else sOB}, {e*C}')
        else:
            vo=VWg; sb_=sBG if part=='G' else sBK; bias_fix(e,sb_,C,True); i,st_=estep(e); k(f's_add_u32 s{sGoff}, s{sb_+(i&1)}, {st_*C}')
        st4['ge']=e
        k(f's_add_u32 m0, s{sWl4}, {((n+ROT)%NS4)*STG4}'); state['m0']=('W4',n)
        return lambda: k.vmem(f'buffer_load_dwordx4 v{vo}, s[{sr}:{sr+3}], s{sGoff} offen{W2F} lds', ('W4',n))
    def tokreg(e,t): return (OH+8*e if e<7 else 256+8*((e-7)%NTS))+4*t
    def tok4(e,t):
        i,st_=estep(e); a_=st_-7*i; key=(e>=EB,i,a_//2)
        if t==0: bias_fix(e,sBT,2048)
        if st4['T']!=key:
            k(f's_add_u32 s{sT4off}, s{sBT}, {(7*i+a_//2*2)*2048}'); st4['T']=key
        return lambda: k.vmem(f'buffer_load_dwordx4 {reg(tokreg(e,t),4)}, v{VTO}, s[{sXS}:{sXS+3}], s{sT4off} offen offset:{(a_%2)*2048+t*1024}{TKF}', ('T4',e,t))
    def issue(p,now):
        if p[0]=='fn':
            if now: p[2](); return None
            return p[2]
        if p[0] in ('tok','tok4'):
            f_=(tok if p[0]=='tok' else tok4)(p[1],p[2])
            if now: f_(); return None
            return f_
        f_=(dma if p[0]=='dma' else dma4)(p[1],p[2])
        if now: k('s_nop 0'); f_(); return None
        return f_
    def flush(item):
        while item in pend: k.room(1); issue(pend.pop(0),True)
    LAF4=7
    def BU3(S): return cfg.get('BU3B',1) if S>=16 else cfg.get('BU3',2)
    def prio(p):
        if p[0]=='fn': return p[1]
        if p[0]=='tok': return p[1]//2*8
        if p[0]=='dma': return F0S[p[1]//BU3(p[1])*BU3(p[1])]-LAF-cfg.get('wlead',14)
        if p[0]=='tok4': return NFR+uidx[('G',p[1])]*4
        return NFR+p[1]*4-LAF4
    pace={'last':0}
    def pick(now,gap,urg):
        if len(k.vm)>=cfg.get('vmmax',56) or now<pace.get('quiet',0): return None
        for i,p in enumerate(pend):
            d=prio(p)-now
            if d>((cfg.get('wwin',48) if now<F0S[cfg.get('wfree',16)] else 999) if p[0]=='dma' else cfg.get('win',400)): continue
            if now-pace['last']>=gap or d<=urg:
                pace['last']=now; return issue(pend.pop(i),False)
            return None
        return None
    flags={'A':False,'B':False}
    def sigA():
        k.wait(vm=[('st3',0)]); signal(54,0)
    def polA_issue():
        k(f's_mul_i32 s3, s{sTb}, {56*4096}\ns_mul_i32 s48, s{sHf}, {28*4096}\ns_add_u32 s3, s3, s48\ns_add_u32 s3, s3, {WS_HH}')
        srd(sXS,pWS,28*4096,addreg=3)
        k(f's_lshl_b32 s55, s{sRb}, 10\ns_add_u32 s55, s55, {WS_F3}\ns_lshl_b32 s48, s{sHf}, 3\nv_and_b32 v{VPA}, 7, v{VL}\nv_add_u32 v{VPA}, s48, v{VPA}\ns_xor_b32 s48, s{sCb}, 8\nv_mov_b32 v4, s48\nv_cmp_gt_u32 vcc, 8, v{VL}\ns_nop 1\nv_cndmask_b32 v{VPA}, v4, v{VPA}, vcc\nv_lshlrev_b32 v{VPA}, 6, v{VPA}')
        poll_issue(VPA,55,4,False)
    def polA_check():
        poll_check(VPA,55,4,False); flags['A']=True
    at(F0S[cfg.get('sigA',21)],('vm',sigA))
    at(F0S[cfg.get('polAi',23)],('vm',polA_issue))
    at(F0S[cfg.get('polAc',25)],('vm',polA_check))
    t4_next=7; dma_next=0; w_next=NS-1; built=False
    for f in range(LAF): rd(f,0); rd(f,1)
    held=None
    for f in range(NFR):
        S,u,j=FR[f]; p_=S>>4; sg=4*(S&15)+2*u
        if f==1: stamp(8)
        if cfg.get('p3st') is not None and f==F0S[S] and S%2==0 and 0<=S//2-cfg['p3st']<8: k(f's_memtime s[{64+2*(S//2-cfg["p3st"])}:{65+2*(S//2-cfg["p3st"])}]')
        if f==F0S[16]:
            stamp(9)
            for p in [p for p in pend if p[0]=='dma']: flush(p)
            epilogue3(0); stamp(10)
            for i_,f_ in enumerate(later): at(f+3+i_*cfg.get('st_gap',6),('vm',f_))
            later.clear()
        if j==0 and p_==1 and flags['A']:
            while t4_next<EB and 2*(t4_next-7)+1<sg:
                pend+= [('tok4',t4_next,0),('tok4',t4_next,1)]; t4_next+=1
        pend.sort(key=prio)
        tw=[]
        if f%2==0:
            for ff in (f,f+1):
                S2,u2,j2=FR[ff]
                if j2==0 and S2<16:
                    for t in range(2): flush(('tok',4*S2+2*u2+t,0)); tw.append(('T',4*S2+2*u2+t))
            k.wait(vm=tw, lg=[('R',f),('R',f+1)])
        post=[]
        run_events(f,post)
        D=ACC[p_]+8*j
        k(f'v_mfma_f32_16x16x32_bf16 {v(D,4)}, {v(WF+(f%NB)*4,4)}, {reg(TK+4*sg,4)}, {"0" if sg==0 else v(D,4)}')
        if True:
            if f+LAF<NFR and f+LAF==F0S[FR[f+LAF][0]] and FR[f+LAF][0]%BU3(FR[f+LAF][0])==0:
                S1=FR[f+LAF][0]
                assert S1+BU3(S1)-1<w_next
                flush(('dma',S1+BU3(S1)-1,NDq(S1+BU3(S1)-1)-1))
                k.wait(vm=[('W',x) for x in range(S1,S1+BU3(S1))]); k('s_barrier')
                while w_next<NSTG and prev3(w_next)<=S-1:
                    pend+= [('dma',w_next,q) for q in range(NDq(w_next))]; w_next+=1
                lastuse=lambda sl: max(x for x in range(NSTG) if slot3(x)==sl)
                while dma_next<NS4 and max(lastuse(((dma_next+ROT)%NS4)*4096//STG3),lastuse((((dma_next+ROT)%NS4)*4096+4095)//STG3))<=S-1 and S>=16:
                    if not built:
                        built=True
                        assert not any(p[0]=='tok' for p in pend)
                        k(f's_mul_i32 s3, s{sHf}, {1792*2048}\ns_lshl_b32 s48, s{sC8}, 8\ns_add_u32 s3, s3, s48\ns_lshl_b32 s48, s{sHf}, 7\ns_add_u32 s47, s3, s48\ns_sub_u32 s58, s3, s48\ns_add_u32 s58, s58, 128')
                        for (d,o) in ((sG,58),(sK,47)):
                            k(f's_add_u32 s{d}, s{pW2}, s{o}\ns_addc_u32 s{d+1}, s{pW2+1}, 0\ns_and_b32 s{d+1}, s{d+1}, 0xffff\ns_sub_u32 s{d+2}, {1024*7168}, s{o}\ns_mov_b32 s{d+3}, 0x20000')
                        k(f's_lshl_b32 s{sWl4}, s{sWave}, 10\ns_bitcmp1_b32 s{sC8}, 0\ns_cselect_b32 s{sOA}, {3*C}, 0\ns_cselect_b32 s{sOB}, {(-4*C)&0xffffffff}, 0')
                    if S<cfg.get('d4from',18): break
                    pend.append(('dma4',dma_next,0)); dma_next+=1
                pend.sort(key=prio)
        rd(f+LAF,0)
        k(f'v_mfma_f32_16x16x32_bf16 {v(D+4,4)}, {v(WF+(f%NB)*4,4)}, {reg(TK+4*sg+4,4)}, {"0" if sg==0 else v(D+4,4)}')
        if f%2==1 and held: held(); held=None
        rd(f+LAF,1)
        for p in post: p()
        if f%2==0:
            nb=f+1+LAF<NFR and f+1+LAF==F0S[FR[f+1+LAF][0]] and FR[f+1+LAF][0]%BU3(FR[f+1+LAF][0])==0
            isv=nb or any(ev[0]=='vm' for ev in events.get(f+1,[]))
            x_=pick(f,999,cfg.get('urg3',20))
            if x_: k('s_nop 0'); x_()
            held=None if isv else pick(f,0,-999)
        k.check_vm()
    stamp('a')
    epilogue3(1)
    stamp('b')
    LAF=LAF4; BU=cfg.get('BU',4)
    PRE=0; AG=32; AK=64; VFL=96; VZ=100; XR=200; VRD=224; T0=104; HX=200; VS=108
    k(f'v_lshrrev_b32 v{T0}, 2, v{VL}\nv_lshlrev_b32 v{T0+1}, 7, v{T0}\nv_and_b32 v{T0+2}, 3, v{VL}\nv_lshl_add_u32 v{T0+1}, v{T0+2}, 3, v{T0+1}')
    k(f'v_and_b32 v{T0+2}, 6, v{T0}\nv_lshlrev_b32 v{T0+2}, 4, v{T0+2}')
    for j in range(4):
        k(f'v_xor_b32 v{T0+3}, {32*j}, v{T0+2}\nv_add_u32 v{VRD+j}, v{T0+1}, v{T0+3}\nv_add_u32 v{VRD+4+j}, 0x10000, v{VRD+j}')
    def rd4(f,q):
        if f>=NU*4: return
        n=f//4; j=f%4; slot=(n+ROT)%NS4
        k.lds(f'ds_read_b64_tr_b16 {v(WF+(f%NB)*4+2*q,2)}, v{VRD+4*(slot//16)+j} offset:{16*q*128+(slot%16)*STG4}', ('R4',f))
    flush(('dma4',BU-1,0))
    k.wait(vm=[('W4',n) for n in range(BU)]); k('s_barrier')
    for f in range(LAF): rd4(f,0); rd4(f,1)
    while dma_next<NS4: pend.append(('dma4',dma_next,0)); dma_next+=1
    events={}
    for i_,f_ in enumerate(later): at(3+i_*cfg.get('st_gap',6),('vm',f_))
    NF4=NU*4
    def sigB():
        k.wait(vm=[('st3',1)]); k(f's_add_u32 s54, s54, 16384'); signal(54,VFL)
    def polB_issue():
        k(f's_add_u32 s55, s55, 16384'); poll_issue(VPA,55,VFL,False)
    def polB_check():
        poll_check(VPA,55,VFL,False); flags['B']=True
    if cfg.get('cpb',0): at(cfg['cpb'],('vm',lambda: cpf_again(T0+2)))
    at(cfg.get('sigB',64),('vm',sigB))
    at(cfg.get('polBi',110),('vm',polB_issue))
    at(cfg.get('polBc',134),('vm',polB_check))
    g_end=(uidx[('G',55)]+1)*4
    fs=uidx[('G',EB)]*4+cfg.get('pre_off',min(44,DL*4-24))
    def side():
        srd(sB,pB2,2048); srd(sO,pOUT,2048*2048); srd(sXC,pWS,8<<20,addlit=WS_X)
        k(f's_lshl_b32 s57, s{sC8}, 1\ns_add_u32 s57, s57, s{sHf}')
        k(f's_sub_u32 s3, 23, s57\ns_cmp_ge_u32 s57, 8\ns_cselect_b32 s3, s3, s57\ns_cselect_b32 s48, 3, 0\ns_lshl_b32 s3, s3, 12\ns_lshl_b32 s44, s{sTb}, 16\ns_add_u32 s44, s44, {WS_H1}\ns_add_u32 s44, s44, s3')
        k(f'v_xor_b32 v{VS}, s48, v{VG}\nv_lshlrev_b32 v{VS}, 8, v{VS}\nv_lshl_add_u32 v{VS}, v{VN}, 4, v{VS}')
        k(f'v_sub_u32 v{VS+1}, 0, v{VG}\nv_and_b32 v{VS+1}, 3, v{VS+1}\nv_lshlrev_b32 v{VS+1}, 8, v{VS+1}\nv_lshl_add_u32 v{VS+1}, v{VN}, 4, v{VS+1}\nv_cmp_eq_u32 vcc, 0, v{VG}')
        k(f'v_add_u32 v{VS+2}, 8, v{VS+1}\nv_add_u32 v{VS+3}, 2040, v{VS+1}\nv_cndmask_b32 v{VS+2}, v{VS+1}, v{VS+2}, vcc\nv_cndmask_b32 v{VS+1}, v{VS+1}, v{VS+3}, vcc')
        k(f's_cmp_eq_u32 s57, 8\ns_cselect_b32 s3, {hex((-16*2048)&0xffffffff)}, 0\nv_mov_b32 v{VS+3}, s3\nv_cndmask_b32 v{VS+3}, 0, v{VS+3}, vcc\nv_add_u32 v{VS+3}, v{VS+3}, v{VS+1}\nv_add_u32 v{VS+3}, {15*4096}, v{VS+3}\ns_sub_u32 s59, s44, {15*4096}')
        k(f's_lshl_b32 s45, s57, 7\nv_mov_b32 v{OH+1}, 0x3f803f80\nv_cndmask_b32 v{OH+1}, 0, v{OH+1}, vcc\nv_mov_b32 v{OH+3}, v{OH+1}\nv_mov_b32 v{OH+5}, v{OH+1}\nv_mov_b32 v{OH+7}, v{OH+1}')
        L_=[]
        for jj in range(4):
            for tt in range(2): L_.append(f'buffer_load_dwordx2 {v(HX+(jj*2+tt)*2,2)}, v{VS}, s[{sWS}:{sWS+3}], s44 offen offset:{(jj>>1)*2048+(jj&1)*8+1024*tt}')
        for jj in range(4):
            for tt in range(2):
                if jj==3: L_.append(f'buffer_load_dword v{HX+16+jj*2+tt}, v{VS+3}, s[{sWS}:{sWS+3}], s59 offen offset:{2048+8+1024*tt}')
                else: L_.append(f'buffer_load_dword v{HX+16+jj*2+tt}, v{VS+1+(1-(jj&1))}, s[{sWS}:{sWS+3}], s44 offen offset:{(jj>>1)*2048+(jj&1)*8+1024*tt}')
        for j in range(4): L_.append(f'buffer_load_ushort v{OH+2*j}, v{VBA}, s[{sB}:{sB+3}], s45 offen offset:{32*j}')
        for i_,t_ in enumerate(L_): pend.append(('fn',NFR+fs-60+i_,lambda t_=t_: k.vmem(t_,'hx')))
        k(f's_lshl_b32 s12, s{sWave}, 9\ns_add_u32 s12, s12, s{sRb}\ns_lshl_b32 s12, s12, 11\ns_add_u32 s12, s12, s45\ns_add_u32 s13, s12, {256*2048}')
        k(f'v_lshlrev_b32 v{VOA}, 15, v{VN}\nv_and_b32 v{VZ}, 1, v{VG}\nv_lshl_add_u32 v{VOA}, v{VZ}, 5, v{VOA}\nv_lshrrev_b32 v{VZ}, 1, v{VG}\nv_lshl_add_u32 v{VOA}, v{VZ}, 4, v{VOA}')
        k(f's_lshl_b32 s3, s2, 2\ns_add_u32 s3, s3, s{sWave}\ns_lshl_b32 s14, s3, 12\ns_xor_b32 s15, s14, {4<<12}\ns_lshl_b32 s52, s3, 6\ns_add_u32 s52, s52, {WS_FX}\ns_xor_b32 s58, s52, 256\nv_mov_b32 v{VZ}, 0')
    at(cfg.get('side_at',68),('vm',side))
    def hfix():
        assert not any(p[0]=='fn' for p in pend)
        k.wait(vm=['hx'])
        L=k.newlabel('hfix')
        k(f's_cmp_lt_u32 s57, 8\ns_cbranch_scc1 {L}\ns_mov_b32 s3, 0x07060100')
        for jj in range(8):
            h=HX+jj*2; s1=HX+16+jj
            k(f'v_perm_b32 v{s1}, v{h+1}, v{s1}, s3\nv_perm_b32 v{h+1}, v{h}, v{h+1}, s3\nv_mov_b32 v{h}, v{s1}')
        for jj in range(2):
            for x in range(4): k(f'v_swap_b32 v{HX+jj*4+x}, v{HX+(3-jj)*4+x}')
        k.label(L)
    V=[('vm',hfix)]
    for j in range(4): V.append(f'v_lshl_or_b32 v{OH+2*j}, v{OH+2*j}, 16, v{OH+2*j}')
    for j in range(4):
        V.append('\n'.join(f'v_mfma_f32_16x16x16_bf16 {v(AK+(2*j+t)*4,4)}, {v(OH+2*j,2)}, {v(AU4+2*t,2)}, {v(AK+(2*j+t)*4,4)}' for t in range(2)))
    assert all(U[n_][0]=='G' for n_ in range(fs//4-1,fs//4+4))
    for r in range(32):
        V.append(f'v_lshlrev_b32 v{PRE+r}, 16, v{HX+r//2}' if r%2==0 else f'v_and_b32 v{PRE+r}, 0xffff0000, v{HX+r//2}')
    per=cfg.get('pre_per',1)
    for i,x in enumerate(V): at(fs+i//per, x if isinstance(x,tuple) else ('valu',x))
    assert fs+len(V)//per<g_end+min(cfg.get('xc',62),cfg.get('xl',52))
    for i in range(4):
        def xs(i=i):
            for r in range(4): k(f'v_cvt_pk_bf16_f32 v{AG+8*i+r}, v{AG+8*i+2*r}, v{AG+8*i+2*r+1}')
            k.vmem(f'buffer_store_dwordx4 {v(AG+8*i,4)}, v{VTO}, s[{sXC}:{sXC+3}], s14 offen offset:{i*1024} sc1','xs')
        at(g_end+4+i*cfg.get('xs_gap',6),('vm',xs))
    fA=g_end+cfg.get('xa',36); fB=g_end+cfg.get('xb',48); fC=g_end+cfg.get('xc',62)
    assert SEN or fC<NF4
    xl=[f'buffer_load_dwordx4 {v(XR+4*i,4)}, v{VTO}, s[{sXC}:{sXC+3}], s15 offen offset:{i*1024} sc1' for i in range(4)]
    if SEN:
        for i in range(4): at(g_end+cfg.get('xl',52)+2*i,('vm',lambda i=i: k.vmem(xl[i],'xr')))
    else:
        at(fA,('wait','xs'))
        at(fA,('vm',lambda: signal(52,VFL,barrier=False)))
        at(fB,('vm',lambda: poll_issue(VZ,58,VS,False)))
        def chk():
            poll_check(VZ,58,VS,False)
            k.room(4)
            for i in range(4): k.vmem(f'buffer_load_dwordx4 {v(XR+4*i,4)}, v{VTO}, s[{sXC}:{sXC+3}], s15 offen offset:{i*1024} sc1','xr')
        at(fC,('vm',chk))
    kdone=6; held=None
    for f in range(NF4):
        n=f//4; j=f%4; part,e=U[n]
        if cfg.get('p4st') is not None:
            i_=(f-cfg['p4st'])//cfg.get('qs',16)
            if f>=cfg['p4st'] and (f-cfg['p4st'])%cfg.get('qs',16)==0 and i_<10: k(f's_memtime s[{62+2*i_}:{63+2*i_}]')
        else:
            if f==uidx[('G',7)]*4: stamp('c')
            if f==uidx[('G',EB)]*4: stamp('d')
            if f==g_end: stamp('e')
        if f%4==0:
            if n>0 and U[n-1][0]=='K': kdone=U[n-1][1]
            while t4_next<56 and (t4_next<EB or flags['B']) and (t4_next-NTS<7 or t4_next-NTS<=kdone):
                pend+= [('tok4',t4_next,0),('tok4',t4_next,1)]; t4_next+=1
        pend.sort(key=prio)
        if f%2==0:
            tw=[]
            if part=='G' and e>=7 and j==0:
                assert e<t4_next
                for t in range(2): flush(('tok4',e,t)); tw.append(('T4',e,t))
            k.wait(vm=tw, lg=[('R4',f),('R4',f+1)])
        post=[]
        run_events(f,post)
        D=(AG if part=='G' else AK)+8*j
        k(f'v_mfma_f32_16x16x32_bf16 {v(D,4)}, {v(WF+(f%NB)*4,4)}, {reg(tokreg(e,0),4)}, {"0" if e==0 else v(D,4)}')
        if True:
            nn=(f+LAF)//4
            if (f+LAF)%4==0 and nn<NU and nn%BU==0:
                if held: held(); held=None
                last=min(nn+BU,NU)-1
                flush(('dma4',last,0))
                k.wait(vm=[('W4',m) for m in range(nn,last+1)]); k('s_barrier')
                while dma_next<NU and dma_next-NS4<=n-1:
                    pend.append(('dma4',dma_next,0)); dma_next+=1
                pend.sort(key=prio)
        rd4(f+LAF,0)
        k(f'v_mfma_f32_16x16x32_bf16 {v(D+4,4)}, {v(WF+(f%NB)*4,4)}, {reg(tokreg(e,1),4)}, {"0" if e==0 else v(D+4,4)}')
        if f%2==1 and held: held(); held=None
        rd4(f+LAF,1)
        for p in post: p()
        if f%2==0:
            nb=(f+1+LAF)%4==0 and ((f+1+LAF)//4)%BU==0 and cfg.get('skipbar',0)
            isv=nb or any(ev[0]=='vm' for ev in events.get(f+1,[]))
            x_=pick(NFR+f,999,cfg.get('urg4',40))
            if x_: k('s_nop 0'); x_()
            held=None if isv else pick(NFR+f,0,-999)
        k.check_vm()
    stamp('f')
    k.wait(vm=['xr'])
    if SEN:
        L=k.newlabel('xchk'); Lo=k.newlabel('xok')
        k(f's_mov_b32 s47, {1<<18}')
        k.label(L)
        for i in range(5): k(f'v_max3_u32 v{T0+(i&1)}, v{XR+3*i}, v{XR+3*i+1}, v{XR+3*i+2}' if i<2 else f'v_max3_u32 v{T0+(i&1)}, v{T0+(i&1)}, v{XR+2*i+2}, v{XR+2*i+3}')
        k(f'v_max3_u32 v{T0+1}, v{T0+1}, v{XR+12}, v{XR+13}\nv_max3_u32 v{T0}, v{T0}, v{XR+14}, v{XR+15}\nv_max_u32 v{T0}, v{T0}, v{T0+1}\nv_cmp_eq_u32 vcc, -1, v{T0}')
        k(f's_sub_u32 s47, s47, 1\ns_cbranch_scc1 {Lo}\ns_cmp_eq_u64 vcc, 0\ns_cbranch_scc1 {Lo}')
        for t_ in xl: k(t_)
        k(f's_waitcnt vmcnt(0)\ns_branch {L}')
        k.label(Lo)
    else: k('s_nop 5')
    for p in range(2):
        for tt in range(2):
            d=WF+4*(2*p+tt)
            for jj in range(2):
                j=2*p+jj; a_=AK+(j*2+tt)*4; pr=PRE+(j*2+tt)*4; x_=AG+(j*2+tt)*4; xr=XR+(j*2+tt)*2
                for hh in range(2): k(f'v_lshlrev_b32 v{x_+2*hh}, 16, v{xr+hh}\nv_and_b32 v{x_+2*hh+1}, 0xffff0000, v{xr+hh}')
                for hh in range(2): k(f'v_pk_add_f32 {v(a_+2*hh,2)}, {v(a_+2*hh,2)}, {v(x_+2*hh,2)}')
                for hh in range(2):
                    k(f'v_pk_fma_f32 {v(a_+2*hh,2)}, {v(a_+2*hh,2)}, {v(VRS,2)}, {v(pr+2*hh,2)} op_sel:[0,{tt},0] op_sel_hi:[1,{tt},1]')
                for hh in range(2): k(f'v_cvt_pk_bf16_f32 v{d+2*jj+hh}, v{a_+2*hh}, v{a_+2*hh+1}')
            k(f's_nop 1\nv_permlane16_swap_b32 v{d}, v{d+2}\nv_permlane16_swap_b32 v{d+1}, v{d+3}')
            k.vmem(f'buffer_store_dwordx4 {v(d,4)}, v{VOA}, s[{sO}:{sO+3}], s{12+tt} offen offset:{64*p}{OF}')
    if ST:
        k(f's_waitcnt vmcnt(0)\n{TM} s[56:57]\ns_memrealtime s[84:85]\ns_waitcnt lgkmcnt(0)')
        k(f's_lshl_b32 s3, s2, 2\ns_add_u32 s3, s3, s{sWave}\ns_lshl_b32 s3, s3, 7\ns_add_u32 s3, s3, {WS_STAMP}\ns_add_u32 s50, s{pWS}, s3\ns_addc_u32 s51, s{pWS+1}, 0')
        for i in range(26): k(f'v_mov_b32 v{i}, s{60+i}')
        k(f'v_mov_b32 v26, s56\nv_mov_b32 v27, s57\nv_mov_b32 v28, 0\nv_mov_b32 v29, 0\nv_mov_b32 v30, 0\nv_mov_b32 v31, 0\nv_mov_b32 v32, 0\ns_mov_b64 exec, 1')
        for i in range(8): k(f'global_store_dwordx4 v32, v[{4*i}:{4*i+3}], s[50:51] offset:{16*i}')
    if DG:
        k('s_waitcnt vmcnt(0)\ns_memrealtime s[84:85]\ns_waitcnt lgkmcnt(0)')
        k(f's_load_dwordx2 s[{pDBG}:{pDBG+1}], s[0:1], 88\ns_waitcnt lgkmcnt(0)')
        srd(sB,pDBG,256)
        k('s_not_b32 s3, s82\ns_mov_b64 exec, 1\nv_mov_b32 v0, 0')
        for i,r in enumerate((3,82,60,62,64,66,84)):
            k(f'v_mov_b32 v1, s{r}\nbuffer_atomic_umax v1, v0, s[{sB}:{sB+3}], 0 offen offset:{16+4*i}\ns_waitcnt vmcnt(0)')
    k.label(f'{name}_end')
    k('s_endpgm')

    return (k,512,102,256), LDS_TOTAL

NAME='sequential_preLN__spectral_fnet__dense_activation_squared_relu__prompt_kernel'
def build(path,stamps=False,over={},listform=False):
    cfg=dict(stamps=stamps); cfg.update(over)
    kk,l=gen(NAME,cfg)
    hdr=[f'; @launch {"kernel="+NAME+" " if listform else ""}grid=(256,1,1) block=(256,1,1) lds={l}']
    open(path,'w').write(assemble_file(hdr,[kk]))
if __name__=='__main__':
    over={}
    for a in sys.argv[3:]:
        kk,vv=a.split('='); over[kk]=int(vv)
    build(sys.argv[1], sys.argv[2]=='1', over, listform=True)
```

```python
import sys, fz16
over={}
for a in sys.argv[2:]:
    kk,vv=a.split('='); over[kk]=int(vv)
fz16.build('final_body.s', False, over, listform=False)
body=open('final_body.s').read()
ref=open('sequential_preLN__spectral_fnet__dense_activation_squared_relu__prompt.s.ref').read().split('\n')
hdr=[l for l in ref[:14]]
doc='''; One persistent launch, 256 workgroups of 4 waves (one per CU), four phases chained by flag records in d_ws:
;  1. LayerNorm of 16 rows (stride 128) + their 16-point DFT (MFMA, x kept exact) + 1024-point DFT along the hidden axis
;     as 32 x 32 (two MFMA steps, f16 twiddle); only columns 1..512 are kept (real input, column 0 is zero after LayerNorm).
;  2. remaining 128-point DFT along the sequence axis (real part only); each result is written twice (y[t,e] = y[S-t,D-e]);
;     h = x + y is stored centred (its row mean is the DFT of column 0 of LN(x) plus the row mean of x), sum of squares apart.
;  3. GEMM 1 (128 x 224 tiles, two column passes), bias * sigma through one extra small MFMA, relu^2; 1/sigma^2 applied in phase 4.
;  4. GEMM 2 with a 2-way K split (128 x 128 tiles); pairs of workgroups swap half tiles; + b2 + h.
; Flags carry a per-launch value that workgroup 0 publishes in d_debug; every hand-off store is write-through and acknowledged
; before its flag; all spins are bounded.  Generated by a script of my own (no compiler output).'''.split('\n')
open(sys.argv[1],'w').write('\n'.join(hdr+doc)+'\n'+body)
```

```python
from asmlib import *
from layout import *
import struct, sys
def f2u(x): return struct.unpack('<I', struct.pack('<f', x))[0]
def fl(x): return hex(f2u(x))
GRP=[[0,8,1,15],[2,14,3,13],[4,12,5,11],[6,10,7,9]]
def grp_word():
    w=0
    for p in range(4):
        for i in range(4): w|=GRP[p][i]<<(4*(p*4+i))
    return w
ZSTR=2056
STG3=16896
L_X=6*STG3
L_V=8*STG3
L_Z=L_V; L_ST=L_Z+8*ZSTR; L_DUM=L_ST+512; L_E=L_DUM+512
LDS_TOTAL=L_E+512
assert LDS_TOTAL<=163840

def gen(name,cfg):
    k=K(name)
    ST=cfg.get('stamps')
    SB=cfg.get('sb',0)
    TM='s_memrealtime' if cfg.get('rt') else 's_memtime'
    MAPB={8:1,9:2,10:3,'a':4,'b':5,'c':6,'d':7,'e':8,'f':9}
    def p1(i):
        if cfg.get('p1st') and ST: k(f's_memtime s[{60+2*i}:{61+2*i}]')
    def stamp(i):
        if cfg.get('p1st') and i not in (1,2): return
        if cfg.get('diag'):
            m={2:0,5:1,7:2,'b':3}
            if i in m: k(f's_memrealtime s[{60+2*m[i]}:{61+2*m[i]}]')
            return
        if not ST: return
        if cfg.get('p3st') is not None and i!=8: return
        if cfg.get('p4st') is not None: return
        if SB:
            if i not in MAPB: return
            i=MAPB[i]
        elif isinstance(i,str): return
        k(f'{TM} s[{60+2*i}:{61+2*i}]')
    SC=' sc1'
    OF=['',' nt',' sc1',' sc1 nt'][cfg.get('of',0)]
    PFF=['',' nt',' sc1',' sc0 sc1',' sc1 nt'][cfg.get('pff',0)]
    XF=['',' nt'][cfg.get('xnt',0)]
    W1F=' nt' if cfg.get('wnt',0)&1 else ''
    W2F=' nt' if cfg.get('wnt',0)&2 else ''
    TKF=' sc1' if cfg.get('toksc1',1) else ''
    SM1='' if cfg.get('small_plain') else ' sc1'
    pX,pW1,pB1,pW2,pB2,pOUT,pDBG,pWS=86,88,90,92,94,96,98,100
    sXS,sWS,sW,sT,sO,sB,sK=4,8,12,16,20,24,28
    sXC=32
    sWave,sRb,sHf,sC8,sTb,sCb=36,37,38,39,40,41
    sNon=42
    sFlg=44
    VL,VN,VG,VTO,VM,VRS=248,249,250,251,252,254
    VSM=242
    def srd(d,lo,nbytes,addreg=None,addlit=None):
        if addreg is not None: k(f's_add_u32 s{d}, s{lo}, s{addreg}\ns_addc_u32 s{d+1}, s{lo+1}, 0\ns_and_b32 s{d+1}, s{d+1}, 0xffff')
        elif addlit is not None: k(f's_add_u32 s{d}, s{lo}, {addlit}\ns_addc_u32 s{d+1}, s{lo+1}, 0\ns_and_b32 s{d+1}, s{d+1}, 0xffff')
        else: k(f's_mov_b32 s{d}, s{lo}\ns_and_b32 s{d+1}, s{lo+1}, 0xffff')
        k(f's_mov_b32 s{d+2}, {nbytes}\ns_mov_b32 s{d+3}, 0x20000')
    def signal(off_sreg, vf, keep=False, barrier=True):
        L=k.newlabel('sig')
        if barrier: k(f's_barrier\ns_cmp_lg_u32 s{sWave}, 3\ns_cbranch_scc1 {L}')
        k(f'v_mov_b32 v{vf}, s{sNon}\nv_mov_b32 v{vf+1}, s{sNon+1}')
        if not keep: k(f'v_mov_b32 v{vf+2}, 0\nv_mov_b32 v{vf+3}, 0')
        k(f's_mov_b64 exec, 15')
        t=f'buffer_store_dwordx4 {v(vf,4)}, v{VTO}, s[{sWS}:{sWS+3}], s{off_sreg} offen sc1'
        if barrier: k(t)
        else: k.vmem(t,'flag')
        k('s_mov_b64 exec, -1')
        if barrier: k.label(L)
    def poll_loads(vaddr, soff, vd, wide):
        if wide: return [f'buffer_load_dwordx4 {v(vd+4*i,4)}, v{vaddr+i}, s[{sWS}:{sWS+3}], s{soff} offen sc1' for i in range(2)]
        return [f'buffer_load_dwordx2 {v(vd,2)}, v{vaddr}, s[{sWS}:{sWS+3}], s{soff} offen sc1']
    def poll_issue(vaddr, soff, vd, wide):
        k.room(2)
        for t in poll_loads(vaddr,soff,vd,wide): k.vmem(t,'poll')
    def poll_check(vaddr, soff, vd, wide):
        L=k.newlabel('poll'); Lo=k.newlabel('pok')
        k.wait(vm=['poll'])
        k(f's_mov_b32 s47, {1<<18}')
        k.label(L)
        ld=poll_loads(vaddr,soff,vd,wide)
        k(f'v_cmp_ne_u64 vcc, s[{sNon}:{sNon+1}], {v(vd,2)}')
        if wide: k(f'v_cmp_ne_u64 s[48:49], s[{sNon}:{sNon+1}], {v(vd+4,2)}\ns_nop 1\ns_or_b64 s[44:45], vcc, s[48:49]\ns_cbranch_scc0 {Lo}\ns_sub_u32 s47, s47, 1\ns_cbranch_scc1 {Lo}')
        else: k(f's_sub_u32 s47, s47, 1\ns_cbranch_scc1 {Lo}\ns_cmp_eq_u64 vcc, 0\ns_cbranch_scc1 {Lo}')
        if cfg.get('slp',1): k(f's_sleep {cfg.get("slp",1)}')
        k(f's_mov_b64 exec, vcc\n{ld[0]}')
        if wide: k(f's_mov_b64 exec, s[48:49]\n{ld[1]}')
        k(f's_mov_b64 exec, -1\ns_waitcnt vmcnt(0)\ns_branch {L}')
        k.label(Lo)
    def poll0(vaddr, soff, vd, wide, extra=None):
        Ls=k.newlabel('pskip')
        k(f's_cmp_lg_u32 s{sWave}, 3\ns_cbranch_scc1 {Ls}')
        vm0=list(k.vm)
        poll_issue(vaddr,soff,vd,wide); poll_check(vaddr,soff,vd,wide)
        if extra: extra()
        k.vm=vm0
        k.label(Ls)
        k('s_barrier')
    if ST:
        k(f'{TM} s[60:61]\ns_memrealtime s[82:83]')
        for i in range(62,82): k(f's_mov_b32 s{i}, 0')
    DG=cfg.get('diag')
    if DG: k('s_memrealtime s[82:83]')
    k(f's_cmp_ge_u32 s2, 256\ns_cbranch_scc1 {name}_end')
    k(f's_load_dwordx2 s[{pX}:{pX+1}], s[0:1], 0\ns_load_dwordx8 s[{pW1}:{pW1+7}], s[0:1], 48\ns_load_dwordx4 s[{pOUT}:{pOUT+3}], s[0:1], 80\ns_load_dwordx2 s[{pWS}:{pWS+1}], s[0:1], 96\ns_memrealtime s[{sNon}:{sNon+1}]')
    XG=8; XT=40; PM=72; B1=80; B2=96; B2N=112; TWC=128; TWS=144; ONES=160; T=164; A1=184; D1=8; A2=200; ZD=200; TT=232
    VGR=1; VXR=3; VZW=5; VZR=6; VST=7; VSR=236; VOUT=237; VF=238; VE=239; VMX=238; VJ=247; VNON=244; VOUT2=246
    k(f'v_lshrrev_b32 v{T}, 6, v0\nv_and_b32 v{VL}, 63, v0\nv_and_b32 v{VN}, 15, v0\nv_readfirstlane_b32 s{sWave}, v{T}')
    sSlo,sWq=50,51
    sH1=46
    if cfg.get('xdup',0): k(f's_lshl_b32 s{sSlo}, s{sC8}, 4\ns_add_u32 s{sSlo}, s{sSlo}, s{sRb}\ns_mov_b32 s{sH1}, s{sHf}')
    else: k(f's_and_b32 s3, s2, 7\ns_lshl_b32 s3, s3, 4\ns_lshr_b32 s{sSlo}, s2, 4\ns_add_u32 s{sSlo}, s{sSlo}, s3\ns_bfe_u32 s{sH1}, s2, 0x10003')
    k(f'v_lshrrev_b32 v{T}, 3, v{VL}\nv_and_b32 v{T+1}, 6, v{T}\nv_and_b32 v{T+2}, 7, v{VL}\nv_xor_b32 v{T+1}, v{T+1}, v{T+2}\nv_lshlrev_b32 v{T}, 18, v{T}\nv_lshl_add_u32 v{T}, v{T+1}, 4, v{T}')
    k(f's_lshl_b32 s52, s{sSlo}, 11\ns_lshl_b32 s53, s{sWave}, 9\ns_add_u32 s52, s52, s53\ns_add_u32 s54, s52, {8<<18}\ns_lshl_b32 s55, s{sWave}, 13\ns_add_u32 s55, s55, {L_X}')
    def emit_cpf():
        if cfg.get('cpf',1):
            NL=cfg.get('cpfl',16)
            k(f's_getpc_b64 s[48:49]\ns_lshr_b32 s3, s2, 3\ns_mul_i32 s3, s3, {NL*128}\nv_lshlrev_b32 v242, 7, v0\nv_add_u32 v242, s3, v242\nv_min_u32 v242, {name}_end-{name}-512, v242\nv_cmp_gt_u32 vcc, {NL}, v0\ns_and_saveexec_b64 s[16:17], vcc\ns_cbranch_execz {name}_nocpf')
            k(f'global_load_dword a255, v242, s[48:49]'+[ '',' nt',' sc1'][cfg.get('cnt',0)])
            k.label(f'{name}_nocpf')
            k('s_mov_b64 exec, s[16:17]')
    if cfg.get('cpfpos',0)==0: emit_cpf()
    PT=T+6; E1=PT+7; H4=PT+8; S=A2; CPRE=cfg.get('cpre',0)
    def c_e1():
        k(f'v_and_b32 v{PT+4}, 4, v0\nv_lshlrev_b32 v{PT+4}, 2, v{PT+4}\nv_and_b32 v{PT+5}, 3, v0\nv_bfe_u32 v{PT+6}, v0, 3, 2\nv_lshl_add_u32 v{PT+5}, v{PT+6}, 2, v{PT+5}\nv_add_u32 v{PT+4}, v{PT+4}, v{PT+5}')
        k(f'v_lshlrev_b32 v{PT+9}, 31, v{PT+4}\nv_lshrrev_b32 v{PT+10}, 16, v{PT+9}\nv_or_b32 v{PT+9}, v{PT+9}, v{PT+10}')
        k(f'v_cvt_f32_u32 v{E1}, v{PT+4}\nv_lshrrev_b32 v{H4}, 5, v{VL}\nv_cvt_f32_u32 v{H4}, v{H4}')
    def c_b1():
        k(f'v_mul_f32 v{PT+4}, {fl(1/32)}, v{E1}\nv_mul_f32 v{PT+5}, {fl(8.0)}, v{H4}\nv_mul_f32 v{PT+5}, v{PT+5}, v{PT+4}')
        for i in range(8): k(f'v_fmamk_f32 v{S+i}, v{PT+4}, {fl(i)}, v{PT+5}')
        for i in range(8): k(f'v_sin_f32 v{S+8+i}, v{S+i}')
        for i in range(8): k(f'v_cos_f32 v{S+i}, v{S+i}')
        for i in range(4): k(f'v_cvt_pk_f16_f32 v{B1+8+i}, -v{S+8+2*i}, -v{S+9+2*i}')
        for i in range(4): k(f'v_cvt_pk_f16_f32 v{B1+i}, v{S+2*i}, v{S+1+2*i}')
        for i in range(4): k(f'v_xor_b32 v{B1+4+i}, v{B1+i}, v{PT+9}\nv_xor_b32 v{B1+12+i}, v{B1+8+i}, v{PT+9}')
    def c_tw():
        k(f'v_mul_f32 v{PT+4}, {fl(1/1024)}, v{E1}\nv_mul_f32 v{PT+5}, 4.0, v{H4}\nv_mul_f32 v{PT+5}, v{PT+5}, v{PT+4}')
        for r in range(16): k(f'v_fmamk_f32 v{TWC+r}, v{PT+4}, {fl((r&3)+8*(r>>2))}, v{PT+5}')
        for r in range(16): k(f'v_sin_f32 v{TWS+r}, v{TWC+r}')
        for r in range(16): k(f'v_cos_f32 v{TWC+r}, v{TWC+r}')
        for r in range(8): k(f'v_cvt_pk_f16_f32 v{TWS+r}, v{TWS+2*r}, v{TWS+2*r+1}')
        for r in range(8): k(f'v_cvt_pk_f16_f32 v{TWC+r}, v{TWC+2*r}, v{TWC+2*r+1}')
    if CPRE>=1: c_e1(); c_tw()
    if CPRE>=2: c_b1()
    k('s_waitcnt lgkmcnt(0)')
    stamp(1)
    srd(sXS,pX,2048*2048)
    for p in range(4):
        for rh in range(2):
            k(f's_add_u32 m0, s55, {p*2048+rh*1024-128*p}\ns_nop 0')
            k.vmem(f'buffer_load_dwordx4 v{T}, s[{sXS}:{sXS+3}], s{54 if rh else 52} offen offset:{128*p}{XF} lds',('x',p))
    if cfg.get('cpfpos',0)==1: emit_cpf()
    k(f'v_bfe_u32 v{VG}, v0, 4, 2\nv_lshlrev_b32 v{VTO}, 4, v{VL}\ns_lshl_b32 s{sWq}, s{sH1}, 2\ns_add_u32 s{sWq}, s{sWq}, s{sWave}')
    w=grp_word()
    k(f's_bfe_u32 s{sRb}, s2, 0x20001\ns_lshl_b32 s{sRb}, s{sRb}, 2\ns_bfe_u32 s3, s2, 0x20003\ns_add_u32 s3, s3, s{sRb}\ns_lshl_b32 s3, s3, 2')
    k(f's_mov_b32 s48, {hex(w&0xffffffff)}\ns_mov_b32 s49, {hex(w>>32)}\ns_lshr_b64 s[48:49], s[48:49], s3\ns_and_b32 s{sRb}, s48, 15')
    k(f's_and_b32 s{sHf}, s2, 1\ns_lshr_b32 s{sC8}, s2, 5\ns_lshl_b32 s{sCb}, s{sHf}, 3\ns_add_u32 s{sCb}, s{sCb}, s{sC8}\ns_lshl_b32 s{sTb}, s{sRb}, 2\ns_add_u32 s{sTb}, s{sTb}, s{sWave}')
    sWl=56
    k(f's_mul_i32 s57, s{sCb}, 448')
    srd(sWS,pWS,WS_HH)
    def pf_any(ptr,junk,first,nbytes,dst='a255'):
        per=nbytes//128//1024
        srd(sXC,ptr,first+nbytes)
        k(f's_lshl_b32 s3, s2, 2\ns_add_u32 s3, s3, s{sWave}\ns_mul_i32 s3, s3, {per*128}\ns_add_u32 s3, s3, {first}\nv_lshlrev_b32 v{junk}, 7, v{VL}\nv_cmp_gt_u32 vcc, {per}, v{VL}\nv_mov_b32 v{junk+1}, 0x40000000\ns_nop 0\nv_cndmask_b32 v{junk}, v{junk+1}, v{junk}, vcc')
        k.vmem(f'buffer_load_dword {dst}, v{junk}, s[{sXC}:{sXC+3}], s3 offen{PFF}','pf')
    QW=256*7168
    XT_=cfg.get('xt',0)
    def pf_xcd(ptr,i,junk,dst):
        srd(sXC,ptr,1024*7168)
        k(f's_lshr_b32 s3, s2, 3\ns_lshl_b32 s3, s3, 2\ns_add_u32 s3, s3, s{sWave}\ns_bfe_u32 s48, s2, 0x20001\ns_add_u32 s48, s48, {i}\ns_and_b32 s48, s48, 3')
        if ptr==pW1:
            k(f's_lshl_b32 s48, s48, 7\ns_add_u32 s3, s3, s48\ns_mul_i32 s3, s3, {2*7168}\ns_mul_i32 s48, s{sHf}, 3584\ns_add_u32 s3, s3, s48')
            k(f'v_lshlrev_b32 v{junk}, 7, v{VL}\nv_add_u32 v{junk+1}, {7168-28*128}, v{junk}\nv_cmp_gt_u32 vcc, 28, v{VL}\ns_nop 1\nv_cndmask_b32 v{junk}, v{junk+1}, v{junk}, vcc')
        else:
            k(f's_lshl_b32 s48, s48, 7\ns_add_u32 s3, s3, s48\ns_mul_i32 s3, s3, {56*128}\ns_mul_i32 s48, s{sHf}, {1792*2048}\ns_add_u32 s3, s3, s48\nv_lshlrev_b32 v{junk}, 7, v{VL}')
        k(f'v_cmp_gt_u32 vcc, 56, v{VL}\nv_mov_b32 v{junk+1}, 0x40000000\ns_nop 0\nv_cndmask_b32 v{junk}, v{junk+1}, v{junk}, vcc')
        k.vmem(f'buffer_load_dword {dst}, v{junk}, s[{sXC}:{sXC+3}], s3 offen{PFF}','pf')
    pieces=[(pW1,0),(pW1,QW),(pW1,3*QW),(pW1,2*QW),(pW2,0),(pW2,2*QW),(pW2,QW),(pW2,3*QW)]
    def pf_piece(junk,dst='a255'):
        nonlocal pieces
        if not pieces: return
        n_=8-len(pieces); p_,o_=pieces.pop(0)
        if XT_&(1 if p_==pW1 else 2): pf_xcd(p_,n_&3,junk,dst)
        else: pf_any(p_,junk,o_,QW,dst)
    def pf_w123(ptr,first,nbytes,junk):
        per=-(-nbytes//128//768)
        L=k.newlabel('pf3w')
        k(f's_cmp_eq_u32 s{sWave}, 3\ns_cbranch_scc1 {L}')
        srd(sXC,ptr,first+nbytes)
        k(f's_mul_i32 s3, s2, 3\ns_add_u32 s3, s3, s{sWave}\ns_mul_i32 s3, s3, {per*128}\ns_add_u32 s3, s3, {first}\nv_lshlrev_b32 v{junk}, 7, v{VL}\nv_cmp_gt_u32 vcc, {per}, v{VL}\nv_mov_b32 v{junk+1}, 0x40000000\ns_nop 0\nv_cndmask_b32 v{junk}, v{junk+1}, v{junk}, vcc')
        k(f'buffer_load_dword a255, v{junk}, s[{sXC}:{sXC+3}], s3 offen{PFF}')
        k.label(L)
    plan=str(cfg.get('plan',0)).zfill(8)
    def pf_point(i,junk,dst='a255'):
        for _ in range(int(plan[i])): pf_piece(junk,dst)
    if cfg.get('pf0',0):
        for _ in range(cfg['pf0']): pf_piece(242)
    if cfg.get('tlb',0):
        PG=cfg.get('pg',21)
        for (ptr,nb) in ((pWS,34<<20),(pW1,1024*7168),(pW2,1024*7168),(pOUT,4<<20)):
            srd(sXC,ptr,nb)
            for rnd in range(-(-nb>>PG)//256+1 if PG<19 else 1):
                k(f'v_lshlrev_b32 v242, {PG}, v0\ns_mov_b32 s3, {rnd*256<<PG}')
                k.vmem(f'buffer_load_dword a255, v242, s[{sXC}:{sXC+3}], s3 offen sc1','pf')
    srd(sB,pDBG,256)
    Ln=k.newlabel('non')
    k(f's_or_b32 s3, s2, s{sWave}\ns_cmp_lg_u32 s3, 0\ns_cbranch_scc1 {Ln}\ns_and_b32 s48, s{sNon}, -8\ns_or_b32 s48, s48, 8\nv_mov_b32 v{VNON}, s48\nv_mov_b32 v{VNON+1}, s{sNon+1}\nv_mov_b32 v{VJ}, 0\ns_mov_b64 exec, 1')
    k(f'buffer_store_dwordx2 {v(VNON,2)}, v{VJ}, s[{sB}:{sB+3}], 0 offen sc1\ns_mov_b64 exec, -1')
    k.label(Ln)
    k(f's_sub_u32 s3, {1024*7168}, s57')
    k(f's_add_u32 s{sW}, s{pW1}, s57\ns_addc_u32 s{sW+1}, s{pW1+1}, 0\ns_and_b32 s{sW+1}, s{sW+1}, 0xffff\ns_mov_b32 s{sW+2}, s3\ns_mov_b32 s{sW+3}, 0x20000')
    k(f'v_and_b32 v{T+1}, 6, v{VN}\nv_xor_b32 v{T+1}, v{T+1}, v{VG}\nv_lshlrev_b32 v{T+2}, 7, v{VN}\nv_add_u32 v{T+2}, s55, v{T+2}\nv_lshl_add_u32 v{VGR}, v{T+1}, 4, v{T+2}\nv_xor_b32 v{VGR+1}, 64, v{VGR}')
    k(f'v_bfe_u32 v{T+1}, v0, 2, 3\nv_lshlrev_b32 v{T+2}, 7, v{T+1}\nv_and_b32 v{T+1}, 6, v{T+1}\nv_lshlrev_b32 v{T+1}, 4, v{T+1}\nv_and_b32 v{T+3}, 32, v{VL}\nv_lshlrev_b32 v{T+3}, 1, v{T+3}\nv_xor_b32 v{T+1}, v{T+1}, v{T+3}')
    k(f'v_and_b32 v{T+3}, 3, v0\nv_lshlrev_b32 v{T+3}, 3, v{T+3}\nv_add3_u32 v{T+2}, v{T+2}, v{T+3}, s55\nv_add_u32 v{VXR}, v{T+2}, v{T+1}\nv_xor_b32 v{VXR+1}, 32, v{VXR}')
    k(f'v_and_b32 v{T+1}, 7, v0\nv_mul_u32_u24 v{VZW}, {ZSTR}, v{T+1}\nv_and_b32 v{T+2}, 8, v0\nv_lshlrev_b32 v{T+2}, 3, v{T+2}\nv_lshl_add_u32 v{T+2}, v{VG}, 3, v{T+2}\ns_add_u32 s3, s53, {L_Z}\nv_add3_u32 v{VZW}, v{VZW}, v{T+2}, s3')
    k(f'v_lshrrev_b32 v{T+4}, 5, v{VL}\nv_lshlrev_b32 v{T+4}, 9, v{T+4}\nv_bfe_u32 v{T+5}, v0, 2, 2\nv_lshl_add_u32 v{T+4}, v{T+5}, 6, v{T+4}')
    k(f'v_and_b32 v{T+5}, 16, v0\nv_lshlrev_b32 v{T+5}, 1, v{T+5}\nv_add3_u32 v{T+4}, v{T+4}, v{T+5}, v{T+3}\ns_mul_i32 s3, s{sWave}, {2*ZSTR}\ns_add_u32 s3, s3, {L_Z}\nv_add_u32 v{VZR}, s3, v{T+4}')
    k(f'v_lshrrev_b32 v{T+4}, 2, v{VN}\nv_cmp_eq_u32 vcc, v{T+4}, v{VG}\ns_lshl_b32 s3, s{sWave}, 3\ns_add_u32 s3, s3, {L_ST}\nv_lshl_add_u32 v{T+5}, v{VN}, 5, s3')
    k(f'v_lshlrev_b32 v{T+6}, 3, v{VL}\nv_add_u32 v{T+6}, {L_DUM}, v{T+6}\nv_cndmask_b32 v{VST}, v{T+6}, v{T+5}, vcc')
    k(f'v_and_b32 v{T+4}, 1, v{VG}\nv_lshlrev_b32 v{T+4}, 2, v{T+4}\nv_xor_b32 v{T+5}, v{VN}, v{T+4}\nv_lshlrev_b32 v{T+6}, 5, v{T+5}\nv_add_u32 v{VSR}, {L_ST}, v{T+6}')
    k(f's_lshl_b32 s31, s{sH1}, 7\ns_add_u32 s31, s31, s{sSlo}\ns_lshl_b32 s31, s31, 7\ns_add_u32 s31, s31, {WS_R1}\nv_lshlrev_b32 v{VMX}, 2, v{T+5}\nv_cmp_gt_u32 vcc, 16, v0\nv_mov_b32 v{VE}, 0x40000000\ns_nop 0\nv_cndmask_b32 v{VMX}, v{VE}, v{VMX}, vcc')
    mA,mB,mC,mE=16,18,20,22
    k(f'v_and_b32 v{T+5}, 3, v0\nv_cmp_eq_u32 s[{mA}:{mA+1}], 1, v{T+5}\nv_cmp_eq_u32 s[{mB}:{mB+1}], 2, v{T+5}\nv_cmp_eq_u32 s[{mC}:{mC+1}], 3, v{T+5}')
    k(f's_mov_b32 s28, 0x10001\ns_mov_b32 s29, 0')
    k(f's_lshl_b32 s3, s{sH1}, 3\nv_add_u32 v{T+7}, s3, v{T+1}\nv_lshrrev_b32 v{T+5}, 1, v{T+7}\nv_cmp_eq_u32 vcc, 1, v{T+7}\nv_and_b32 v{T+6}, 1, v{T+7}\ns_nop 0\nv_cndmask_b32 v{T+5}, v{T+5}, 8, vcc\nv_cndmask_b32 v{T+6}, v{T+6}, 0, vcc')
    k(f'v_and_b32 v{VE}, 3, v0\nv_mul_u32_u24 v{VE}, {2*ZSTR}, v{VE}\nv_add_u32 v{VE}, {L_Z}, v{VE}')
    k(f'v_cvt_f32_u32 v{T+5}, v{T+5}\nv_cvt_f32_u32 v{T+6}, v{T+6}\nv_cvt_f32_u32 v{T+4}, v{T+4}\nv_mul_f32 v{T+5}, {fl(1/16)}, v{T+5}\nv_mul_f32 v{T+6}, {fl(0.25)}, v{T+6}')
    k(f'v_fmac_f32 v{T+6}, v{T+5}, v{T+4}')
    for i in range(8): k(f'v_fmamk_f32 v{PM+i}, v{T+5}, {fl((i&3)+8*(i>>2))}, v{T+6}')
    for i in range(8): k(f'v_cos_f32 v{PM+i}, v{PM+i}')
    k(f'v_lshrrev_b32 v{T+4}, 3, v{VN}\nv_lshrrev_b32 v{T+5}, 1, v{VG}\nv_cmp_eq_u32 vcc, v{T+4}, v{T+5}')
    for i in range(4): k(f'v_mov_b32 v{ONES+i}, 0x3f803f80')
    for i in range(8): k(f'v_cndmask_b32 v{PM+i}, 0, v{PM+i}, vcc')
    if CPRE<1: c_e1(); c_tw()
    if CPRE<2: c_b1()
    k(f'v_cvt_f32_u32 v{T+4}, v{VN}\nv_mul_f32 v{T+4}, {fl(1/32)}, v{T+4}\nv_mul_f32 v{T+5}, 4.0, v{H4}\nv_mul_f32 v{T+5}, v{T+5}, v{T+4}')
    k(f'v_and_b32 v{T+6}, 1, v{VG}\nv_cvt_f32_u32 v{T+6}, v{T+6}\nv_fmac_f32 v{T+5}, {fl(0.25)}, v{T+6}')
    k(f'v_lshlrev_b32 v{T+9}, 31, v{VN}\nv_lshrrev_b32 v{T+10}, 16, v{T+9}\nv_or_b32 v{T+9}, v{T+9}, v{T+10}')
    for i in range(8): k(f'v_fmamk_f32 v{S+i}, v{T+4}, {fl((i&3)+8*(i>>2))}, v{T+5}')
    for i in range(8): k(f'v_sin_f32 v{S+8+i}, v{S+i}')
    for i in range(8): k(f'v_cos_f32 v{S+i}, v{S+i}')
    for i in range(4): k(f'v_cvt_pk_f16_f32 v{B2+8+i}, v{S+8+2*i}, v{S+9+2*i}')
    for i in range(4): k(f'v_cvt_pk_f16_f32 v{B2+i}, v{S+2*i}, v{S+1+2*i}')
    for i in range(4): k(f'v_xor_b32 v{B2+4+i}, v{B2+i}, v{T+9}\nv_xor_b32 v{B2+12+i}, v{B2+8+i}, v{T+9}')
    for i in range(16): k(f'v_xor_b32 v{B2N+i}, 0x80000000, v{B2+i}')
    VB=cfg.get('vblk',1)
    if VB:
        k(f'v_lshlrev_b32 v{T+5}, 4, v{VG}\nv_lshl_add_u32 v{T+5}, v{VN}, 14, v{T+5}\ns_lshl_b32 s3, s{sSlo}, 6\nv_add_u32 v{VOUT}, s3, v{T+5}\nv_add_u32 v{VOUT2}, 0x2000, v{VOUT}')
    else:
        k(f'v_lshlrev_b32 v{T+5}, 4, v{VG}\nv_lshl_add_u32 v{T+5}, v{VN}, 6, v{T+5}\ns_lshl_b32 s3, s{sSlo}, 10\nv_add_u32 v{VOUT}, s3, v{T+5}\nv_add_u32 v{VOUT2}, 0x20000, v{VOUT}')
    k(f's_lshl_b32 s58, s{sWq}, 18\ns_sub_u32 s59, 16, s{sWq}\ns_cmp_eq_u32 s{sWq}, 0\ns_cselect_b32 s59, 8, s59\ns_lshl_b32 s59, s59, 18\nv_mov_b32 v{VJ}, 0')
    def x2_early(q=None):
        q=q or A2
        k(f's_lshl_b32 s3, s{sWave}, 9\ns_add_u32 s3, s3, s{sRb}\nv_lshl_add_u32 v{q}, v{VN}, 4, s3')
        k(f'v_lshlrev_b32 v{q+2}, 3, v{VG}\ns_lshl_b32 s3, s{sCb}, 6\nv_add_u32 v{q+2}, s3, v{q+2}\nv_lshl_add_u32 v{q+3}, v{q}, 11, v{q+2}\nv_cmp_eq_u32 vcc, 0, v{q+2}\nv_mov_b32 v{q+8}, 0x40000000\ns_mov_b32 s3, {256*2048}')
        for tt in range(2):
            k(f'v_sub_u32 v{q+1}, {2048-256*tt}, v{q}\nv_and_b32 v{q+1}, 2047, v{q+1}\nv_lshlrev_b32 v{q+6+tt}, 11, v{q+1}\nv_sub_u32 v{q+4+tt}, v{q+6+tt}, v{q+2}\nv_add_u32 v{q+4+tt}, {2048-8-32}, v{q+4+tt}\nv_cndmask_b32 v{q+6+tt}, v{q+8}, v{q+6+tt}, vcc')
        for tt in range(2):
            for j in range(2): k.vmem(f'buffer_load_dwordx2 a[{(tt*2+j)*2}:{(tt*2+j)*2+1}], v{q+3}, s[{sXS}:{sXS+3}], {"s3" if tt else "0"} offen offset:{32*j}','x2')
        for tt in range(2):
            for j in range(2): k.vmem(f'buffer_load_dwordx3 a[{8+(tt*2+j)*4}:{10+(tt*2+j)*4}], v{q+4+tt}, s[{sXS}:{sXS+3}], 0 offen offset:{32*(1-j)}','x2')
            k.vmem(f'buffer_load_dword a{8+tt*8+3}, v{q+6+tt}, s[{sXS}:{sXS+3}], 0 offen offset:1024','x2')
    if cfg.get('x2pos',2)==0: x2_early()
    PF1=cfg.get('pf1',1); NQ=cfg.get('nq',4)
    if PF1:
        srd(sXC,pW1,1024*7168)
        k(f's_lshl_b32 s3, s2, 2\ns_add_u32 s3, s3, s{sWave}\ns_mul_i32 s45, s3, {14*NQ*128}\nv_lshlrev_b32 v{TT+2}, 7, v{VL}\nv_cmp_gt_u32 vcc, {14*NQ}, v{VL}\nv_mov_b32 v{TT+3}, 0x40000000\ns_nop 0\nv_cndmask_b32 v{TT+2}, v{TT+3}, v{TT+2}, vcc')
        pieces=[(pW1,o*QW) for o in range(3,NQ-1,-1)]+[p for p in pieces if p[0]!=pW1]
    def pf1(pos):
        if PF1==pos: k.vmem(f'buffer_load_dword a255, v{TT+2}, s[{sXC}:{sXC+3}], s45 offen','pf')
    pf1(4)
    G=T; SM=T+4
    for p in range(4):
        k.wait(vm=[('x',p)])
        for sub in range(2): k.lds(f'ds_read_b128 {v(XG+8*p+4*sub,4)}, v{VGR+sub} offset:{2048*p}',('g',2*p+sub))
    stamp(2)
    if cfg.get('x2pos',2)==1: x2_early()
    k.vmem(f'buffer_load_dwordx2 {v(VNON,2)}, v{VJ}, s[{sB}:{sB+3}], 0 offen sc1','non')
    pf1(1)
    pf_point(0,TT)
    for q in range(8):
        k.wait(lg=[('g',q)])
        k(f'v_mfma_f32_16x16x32_bf16 {v(G,4)}, {v(XG+4*q,4)}, {v(XG+4*q,4)}, {"0" if q==0 else v(G,4)}')
        k(f'v_mfma_f32_16x16x32_bf16 {v(SM,4)}, {v(ONES,4)}, {v(XG+4*q,4)}, {"0" if q==0 else v(SM,4)}')
    p1(3)
    for t in range(4):
        k.lds(f'ds_read_b64_tr_b16 {v(XT+4*t,2)}, v{VXR+(t&1)} offset:{2048*(t>>1)}','xt')
        k.lds(f'ds_read_b64_tr_b16 {v(XT+4*t+2,2)}, v{VXR+(t&1)} offset:{2048*(t>>1)+1024}','xt')
    k(f'v_cndmask_b32 v{SM+1}, v{G}, v{G+1}, s[{mA}:{mA+1}]\nv_cndmask_b32 v{SM+1}, v{SM+1}, v{G+2}, s[{mB}:{mB+1}]\nv_cndmask_b32 v{SM+1}, v{SM+1}, v{G+3}, s[{mC}:{mC+1}]')
    k.lds(f'ds_write_b64 v{VST}, {v(SM,2)}','sw')
    for t in range(4,8):
        k.lds(f'ds_read_b64_tr_b16 {v(XT+4*t,2)}, v{VXR+(t&1)} offset:{2048*(t>>1)}','xt2')
        k.lds(f'ds_read_b64_tr_b16 {v(XT+4*t+2,2)}, v{VXR+(t&1)} offset:{2048*(t>>1)+1024}','xt2')
    pf1(2)
    pf_point(1,TT)
    k.wait(lg=['sw']); k('s_barrier')
    p1(4)
    R=A1
    for q in range(2): k.lds(f'ds_read_b128 {v(R+4*q,4)}, v{VSR} offset:{16*q}','sr')
    k.wait(lg=['sr'])
    for a_,b_ in ((0,2),(4,6),(0,4)):
        k(f'v_pk_add_f32 {v(R+a_,2)}, {v(R+a_,2)}, {v(R+b_,2)}')
    k(f'v_mul_f32 v{R+3}, {fl(1/1024)}, v{R}\nv_mul_f32 v{R+2}, v{R+3}, v{R+3}\nv_mul_f32 v{R+1}, {fl(1/1024)}, v{R+1}\nv_sub_f32 v{R+1}, v{R+1}, v{R+2}')
    k(f'v_max_f32 v{R+1}, 0, v{R+1}\nv_add_f32 v{R+1}, {fl(1e-5)}, v{R+1}\nv_rsq_f32 v{R+1}, v{R+1}')
    M=R+4; CI=G
    k(f'v_mov_b32 v{CI}, 0\nv_mul_f32 v{R}, -v{R+3}, v{R+1}')
    k(f'v_mov_b32 v{VSR}, v{R+3}')
    for i in range(8):
        ln=(i&3)+8*(i>>2)
        k(f'v_mul_f32_dpp v{M+i}, v{R+1}, v{PM+i} row_newbcast:{ln} row_mask:0xf bank_mask:0xf')
    for i in range(8):
        ln=(i&3)+8*(i>>2)
        k(f'v_fmac_f32_dpp v{CI}, v{R}, v{PM+i} row_newbcast:{ln} row_mask:0xf bank_mask:0xf')
    MH=SM; ML=T+8
    for i in range(4): k(f'v_cvt_pk_bf16_f32 v{MH+i}, v{M+2*i}, v{M+2*i+1}')
    if cfg.get('lo',0):
        k(f'v_mov_b32 v{CI+1}, v{CI}')
        for i in range(2):
            k(f'v_lshlrev_b32 v{R+12}, 16, v{MH+i}\nv_and_b32 v{R+13}, 0xffff0000, v{MH+i}\nv_pk_add_f32 {v(M+2*i,2)}, {v(M+2*i,2)}, {v(R+12,2)} neg_lo:[0,1] neg_hi:[0,1]')
        k(f'v_permlane16_swap_b32 v{CI}, v{CI+1}')
        for i in range(2,4):
            k(f'v_lshlrev_b32 v{R+12}, 16, v{MH+i}\nv_and_b32 v{R+13}, 0xffff0000, v{MH+i}\nv_pk_add_f32 {v(M+2*i,2)}, {v(M+2*i,2)}, {v(R+12,2)} neg_lo:[0,1] neg_hi:[0,1]')
            if i==2: k(f'v_add_f32 v{CI}, v{CI}, v{CI+1}\nv_mov_b32 v{CI+1}, v{CI}')
        k(f'v_permlane32_swap_b32 v{CI}, v{CI+1}')
        for i in range(4): k(f'v_cvt_pk_bf16_f32 v{ML+i}, v{M+2*i}, v{M+2*i+1}')
        k(f'v_add_f32 v{CI}, v{CI}, v{CI+1}\nv_mov_b32 v{CI+1}, v{CI}\nv_mov_b32 v{CI+2}, v{CI}\nv_mov_b32 v{CI+3}, v{CI}')
    else:
        k(f'v_mov_b32 v{CI+1}, v{CI}\ns_nop 1\nv_permlane16_swap_b32 v{CI}, v{CI+1}\nv_add_f32 v{CI}, v{CI}, v{CI+1}\nv_mov_b32 v{CI+1}, v{CI}\ns_nop 1\nv_permlane32_swap_b32 v{CI}, v{CI+1}')
        k(f'v_add_f32 v{CI}, v{CI}, v{CI+1}\nv_mov_b32 v{CI+1}, v{CI}\nv_mov_b32 v{CI+2}, v{CI}\nv_mov_b32 v{CI+3}, v{CI}')
    k.wait(lg=['xt2']); k('s_nop 0')
    p1(5)
    for t in range(8): k(f'v_mfma_f32_16x16x32_bf16 {v(ZD+4*t,4)}, {v(XT+4*t,4)}, {v(MH,4)}, {v(CI,4)}')
    if cfg.get('lo',0):
        for t in range(8): k(f'v_mfma_f32_16x16x32_bf16 {v(ZD+4*t,4)}, {v(XT+4*t,4)}, {v(ML,4)}, {v(ZD+4*t,4)}')
    k('s_nop 0')
    for t in range(8):
        k(f'v_cvt_pk_f16_f32 v{ZD+4*t}, v{ZD+4*t}, v{ZD+4*t+1}\nv_cvt_pk_f16_f32 v{ZD+4*t+1}, v{ZD+4*t+2}, v{ZD+4*t+3}')
        k.lds(f'ds_write_b64 v{VZW}, {v(ZD+4*t,2)} offset:{128*(t>>1)+32*(t&1)}','zw')
    k.wait_all(vm=False); k('s_barrier')
    p1(6)
    for q in range(2):
        for ks in range(2):
            for hf in range(2):
                k.lds(f'ds_read_b64_tr_b16 {v(A1+8*q+4*ks+2*hf,2)}, v{VZR} offset:{q*ZSTR+(16*ks+4*hf)*64}',('a1',q,ks))
    pf1(3)
    pf_point(2,TT)
    EP=240
    k.lds(f'ds_read_u16 v{EP+2}, v{VE}','ez')
    k.lds(f'ds_read_u16 v{EP+3}, v{VE} offset:{ZSTR}','ez')
    UR,UI,VR,VI=D1,D1+16,D1+32,D1+48
    for q,(dr,di) in enumerate(((UR,UI),(VR,VI))):
        for ks in range(2):
            k.wait(lg=[('a1',q,ks)])
            k(f'v_mfma_f32_32x32x16_f16 {v(dr,16)}, {v(A1+8*q+4*ks,4)}, {v(B1+4*ks,4)}, {"0" if ks==0 else v(dr,16)}')
            k(f'v_mfma_f32_32x32x16_f16 {v(di,16)}, {v(A1+8*q+4*ks,4)}, {v(B1+8+4*ks,4)}, {"0" if ks==0 else v(di,16)}')
    k.wait(lg=['ez'])
    k(f's_xor_b32 s30, s{sH1}, 1\ns_mov_b32 s31_, 0'.replace('s31_','s29'))
    k(f'v_lshl_or_b32 v{TT}, v{EP+3}, 16, v{EP+2}\nv_xor_b32 v{TT+1}, 0x80000000, v{TT}\ns_mov_b32 s16, s30\ns_mov_b32 s17, 0\ns_nop 0')
    k(f'v_cndmask_b32 v{EP+2}, v{TT}, v{EP+2}, s[16:17]\nv_cndmask_b32 v{EP+3}, v{TT+1}, v{EP+3}, s[16:17]\ns_nop 4')
    p1(7)
    k(f's_cmp_eq_u32 s{sWq}, 0\ns_cbranch_scc1 {name}_nocomb')
    for x in (UR,UI,VR,VI):
        for r in range(8): k(f'v_cvt_pk_f16_f32 v{x+r}, v{x+2*r}, v{x+2*r+1}')
    NG='neg_lo:[0,1] neg_hi:[0,1]'
    for r in range(8): k(f'v_pk_add_f16 v{A2+r}, v{UR+r}, v{VI+r} {NG}\nv_pk_add_f16 v{A2+8+r}, v{UI+r}, v{VR+r}')
    for r in range(8): k(f'v_pk_add_f16 v{A2+16+r}, v{UR+r}, v{VI+r}\nv_pk_add_f16 v{A2+24+r}, v{UI+r}, v{VR+r} {NG}')
    k(f's_branch {name}_comb')
    k.label(f'{name}_nocomb')
    for i,x in enumerate((UR,UI,VR,VI)):
        for r in range(8): k(f'v_cvt_pk_f16_f32 v{A2+8*i+r}, v{x+2*r}, v{x+2*r+1}')
    k.label(f'{name}_comb')
    p1(8)
    OUT=[(B1,A1),(UR,UI)]
    def final(o):
        d,dn=OUT[o]
        if o==0: k.vmem(f'buffer_store_dword v{VSR}, v{VMX}, s[{sWS}:{sWS+3}], s31 offen offset:64{SC}','st1')
        k(f'v_cndmask_b32 v{d}, v{d}, v{dn}, s[28:29]')
        for r in range(8): k(f'v_cvt_pk_f16_f32 v{d+r}, v{d+2*r}, v{d+2*r+1}')
        k('s_nop 1')
        for r in range(4): k(f'v_permlane16_swap_b32 v{d+r}, v{d+4+r}')
        for hf in range(2): k.vmem(f'buffer_store_dwordx4 {v(d+4*hf,4)}, v{VOUT2 if hf else VOUT}, s[{sWS}:{sWS+3}], s{58+o} offen{SC}','st1')
    for o in range(2):
        d,dn=OUT[o]; re=A2+16*o; im=re+8
        for ks in range(2):
            for r in range(4*ks,4*ks+4): k(f'v_pk_mul_f16 v{T+2*(r&3)}, v{im+r}, v{TWS+r}\nv_pk_mul_f16 v{T+2*(r&3)+1}, v{re+r}, v{TWS+r}')
            for r in range(4*ks,4*ks+4): k(f'v_pk_fma_f16 v{re+r}, v{re+r}, v{TWC+r}, v{T+2*(r&3)}')
            for r in range(4*ks,4*ks+4): k(f'v_pk_fma_f16 v{im+r}, v{im+r}, v{TWC+r}, v{T+2*(r&3)+1} neg_lo:[0,0,1] neg_hi:[0,0,1]')
            for part in range(2):
                for (dd,B) in ((dn,B2N),(d,B2)):
                    k(f'v_mfma_f32_32x32x16_f16 {v(dd,16)}, {v(A2+16*o+8*part+4*ks,4)}, {v(B+8*part+4*ks,4)}, {"0" if (ks==0 and part==0) else v(dd,16)}')
            if o==1 and ks==0 and cfg.get('f0early',1): final(0)
    p1(9)
    if cfg.get('f0early',1): k('s_nop 11')
    else: final(0)
    final(1)
    stamp(3); p1(10)
    pf_point(3,TT)
    CT=8; VFr=72; FM=104; FD=120; XD=136; XM=144; ACC2=160; MY=176; EF=184; MXV=200; T=220; VRD=1; VMA=3; VSA=5; VT0=6; VTM=244; VDV=7
    VWA=204; VWAr=208; VWAs=212; VWB=213; VWBr=216; VWBs=219
    k(f's_lshl_b32 s3, s{sWave}, 9\ns_add_u32 s52, s3, s{sRb}\nv_lshl_add_u32 v{VT0}, v{VN}, 4, s52')
    k.wait(vm=['non'])
    Lq=k.newlabel('nspin'); Lr=k.newlabel('nok')
    k(f's_mov_b32 s47, {1<<18}')
    k.label(Lq)
    k(f'v_readfirstlane_b32 s{sNon}, v{VNON}\nv_readfirstlane_b32 s{sNon+1}, v{VNON+1}\ns_sub_u32 s47, s47, 1\ns_cbranch_scc1 {Lr}\ns_cmp_lg_u32 s{sNon}, 0\ns_cbranch_scc1 {Lr}')
    k(f's_sleep 1\nbuffer_load_dwordx2 {v(VNON,2)}, v{VJ}, s[{sB}:{sB+3}], 0 offen sc1\ns_waitcnt vmcnt(0)\ns_branch {Lq}')
    k.label(Lr)
    k(f's_cmp_eq_u32 s{sCb}, 0\ns_cselect_b32 s16, 0xffff, 0\ns_mov_b32 s17, 0')
    for tt in range(2): k(f'v_sub_u32 v{VTM+tt}, {2048-256*tt}, v{VT0}\nv_and_b32 v{VTM+tt}, 2047, v{VTM+tt}')
    TF=T+12; BS=T+14
    k(f'v_cvt_f32_u32 v{TF}, v{VT0}\nv_cvt_f32_u32 v{T+16}, v{VG}\nv_mul_f32 v{TF}, {fl(1/2048)}, v{TF}\nv_add_f32 v{TF+1}, {fl(0.125)}, v{TF}\nv_mul_f32 v{T+16}, 4.0, v{T+16}')
    k(f'v_mul_f32 v{BS}, v{TF}, v{T+16}\nv_mul_f32 v{BS+1}, v{TF+1}, v{T+16}')
    def ctgen(u,tt):
        S=VFr+16*((u*2+tt)&1)
        for i in range(8): k(f'v_fmamk_f32 v{S+i}, v{TF+tt}, {fl(32*u+(i&3)+16*(i>>2))}, v{BS+tt}')
        for i in range(8): k(f'v_sin_f32 v{S+8+i}, v{S+i}')
        for i in range(8): k(f'v_cos_f32 v{S+i}, v{S+i}')
        for i in range(4): k(f'v_cvt_pk_f16_f32 v{CT+((u+4)*2+tt)*4+i}, v{S+8+2*i}, v{S+9+2*i}')
        for i in range(4): k(f'v_cvt_pk_f16_f32 v{CT+(u*2+tt)*4+i}, v{S+2*i}, v{S+1+2*i}')
    todo=[(u,tt) for u in range(4) for tt in range(2)]
    for _ in range(cfg.get('ctpre',5)): ctgen(*todo.pop(0))
    k.wait(vm=['st1'])
    signal(31,EP,keep=True)
    stamp(4)
    if cfg.get('x2pos',2)==2: x2_early(FM)
    SEN=cfg.get('sen',0)
    pf_point(4,T)
    W2P=cfg.get('w2p',11)
    while todo: ctgen(*todo.pop(0))
    k(f'v_lshrrev_b32 v{T}, 2, v{VL}\nv_and_b32 v{T+1}, 3, v{VL}\nv_and_b32 v{T+2}, 1, v{VG}\nv_lshlrev_b32 v{T+2}, 1, v{T+2}\nv_xor_b32 v{T+1}, v{T+1}, v{T+2}')
    k(f'v_lshlrev_b32 v{T}, 6, v{T}\nv_lshl_add_u32 v{VDV}, v{T+1}, 4, v{T}')
    k(f's_lshl_b32 s23, s{sRb}, 18\ns_lshl_b32 s3, s{sCb}, 14\ns_add_u32 s23, s23, s3\ns_lshl_b32 s3, s{sWave}, 12\ns_add_u32 s23, s23, s3\ns_add_u32 s28, s3, {L_V}')
    k(f's_sub_u32 s3, 16, s{sRb}\ns_min_u32 s3, s3, s{sRb}\ns_bfe_u32 s30, s3, 0x10002\ns_lshl_b32 s30, s30, 14\ns_add_u32 s30, s30, {WS_R1}\ns_and_b32 s3, s3, 3\ns_lshl_b32 s3, s3, 4\ns_add_u32 s29, s30, s3')
    k(f'v_lshlrev_b32 v{T+4}, 7, v{VL}\nv_add_u32 v{T+5}, 0x2000, v{T+4}')
    for i,src in enumerate((VT0,VTM,VTM+1)):
        k(f'v_and_b32 v{T+9+i}, 127, v{src}\nv_lshlrev_b32 v{T+9+i}, 7, v{T+9+i}\nv_lshrrev_b32 v{T+8}, 7, v{src}\nv_lshl_add_u32 v{T+9+i}, v{T+8}, 2, v{T+9+i}')
    k(f'v_and_b32 v{T+6}, 32, v{VL}\nv_lshlrev_b32 v{T+6}, 1, v{T+6}\nv_bfe_u32 v{T+7}, v{VL}, 2, 2\nv_lshl_add_u32 v{T+6}, v{T+7}, 4, v{T+6}\nv_bfe_u32 v{T+7}, v{VL}, 4, 1\nv_lshl_add_u32 v{T+6}, v{T+7}, 3, v{T+6}\nv_and_b32 v{T+7}, 3, v{VL}\nv_lshl_add_u32 v{T+6}, v{T+7}, 1, v{T+6}')
    k(f'v_add_u32 v{T+6}, {L_E}, v{T+6}\nv_lshlrev_b32 v{T+7}, 4, v{VG}\nv_add_u32 v{T+7}, {L_E}, v{T+7}')
    k(f's_cmp_ge_u32 s{sRb}, 8\ns_cselect_b64 s[18:19], -1, 0')
    sWlA,sWlB=56,44
    k(f's_mul_i32 s{sWlA}, s{sWave}, {4*1056}')
    sCA,sCB=84,85
    k(f's_bitcmp1_b32 s{sC8}, 0\ns_cselect_b32 s{sCA}, 192, 0\ns_cselect_b32 s{sCB}, 0, 256')
    NS=8; NSTG=32; sWoff,sToff=52,53
    state={'woff':None,'toff':None,'m0':None}
    NSB=cfg.get('nsb',5)
    def slot3(S): return S%NS if S<16 else S%NSB
    def prev3(S):
        return max([x for x in range(S) if slot3(x)==slot3(S)], default=-1)
    def dma(S,q):
        p_=S>>4; s_=S&15
        sp=(s_==8 and q==0)
        want = (p_, 0 if sp else (s_*64*7168 if s_<8 else (1536-64*s_-63)*7168-4096))
        if state['woff']!=want:
            k(f's_add_u32 s{sWoff}, s{sCB if p_ else sCA}, {want[1]}'); state['woff']=want
        if state['m0']!=('W',S):
            k(f's_add_u32 m0, s{sWlB if p_ else sWlA}, {slot3(S)*STG3}'); state['m0']=('W',S)
        vo=((VWBs if p_ else VWAs) if sp else ((VWBr if p_ else VWAr) if s_>=8 else (VWB if p_ else VWA))+q)
        return lambda: k.vmem(f'buffer_load_dwordx4 v{vo}, s[{sW}:{sW+3}], s{sWoff} offen offset:{(1024 if p_ else 1056)*q}{W1F} lds', ('W',S))
    def dma_now(S,q):
        f_=dma(S,q); k('s_nop 0'); f_()
    EWP=cfg.get('ewpos',2); EW=cfg.get('ew',2)
    PD=EF
    def e_stage():
        for i in range(2):
            k(f'v_cndmask_b32 v{PD+4*i+2}, v{PD+4*i+2}, v{PD+4*i+3}, s[18:19]')
            k(f'ds_write_b16 v{T+6}, v{PD+4*i+2} offset:{128*i}\nds_write_b16_d16_hi v{T+6}, v{PD+4*i+2} offset:{128*i+256}')
        k('s_waitcnt lgkmcnt(0)')
    if W2P//10: pf_w123(pW2,0,(W2P//10)*2*QW,T)
    poll0(T+4,29,PD,True,extra=e_stage)
    stamp(5)
    k(f's_mov_b32 m0, s28\ns_mul_i32 s{sWlB}, s{sWave}, 3072')
    for q in range(4): k.vmem(f'buffer_load_dwordx4 v{VDV}, s[{sWS}:{sWS+3}], s23 offen offset:{q*1024}{SC} lds','v')
    k.vmem(f'buffer_load_dword v{MXV}, v{T+9}, s[{sWS}:{sWS+3}], s30 offen offset:64{SC}','mx')
    k.vmem(f'buffer_load_dword v{MXV+2}, v{T+9}, s[{sWS}:{sWS+3}], s30 offen offset:72{SC}','mx')
    for tt in range(2): k.vmem(f'buffer_load_dword v{MXV+2*tt+1}, v{T+10+tt}, s[{sWS}:{sWS+3}], s30 offen offset:64{SC}','mx')
    def rdE(u): k.lds(f'ds_read_b128 {v(EF+4*(u%4),4)}, v{T+7} offset:{64*u}',('er',u))
    for u in range(3): rdE(u)
    for u in range(8):
        k.wait(lg=[('er',u)])
        for tt in range(2):
            d=MY+4*tt
            k(f'v_mfma_f32_16x16x32_f16 {v(d,4)}, {v(EF+4*(u%4),4)}, {v(CT+(u*2+tt)*4,4)}, {"0" if u==0 else v(d,4)}')
        if u+3<8: rdE(u+3)
    for tt in range(2):
        k(f'v_and_b32 v{T+8}, 15, v{VTM+tt}\nv_lshlrev_b32 v{T+8}, 2, v{T+8}\nv_lshrrev_b32 v{T+9}, 9, v{VTM+tt}\nv_add_u32 v{T+8}, v{T+8}, v{T+9}')
        k(f'v_bfe_u32 v{T+9}, v{VTM+tt}, 8, 1\nv_bfe_u32 v{T+10}, v{VTM+tt}, 4, 4\nv_lshl_add_u32 v{T+11}, v{VG}, 4, v{T+10}\nv_lshlrev_b32 v{T+11}, 4, v{T+11}')
        k(f'v_lshl_add_u32 v{T+11}, v{T+9}, 10, v{T+11}\nv_lshl_add_u32 v{VMA+tt}, v{T+8}, 16, v{T+11}')
        k(f'v_lshl_add_u32 v{T+10}, v{T+9}, 4, v{T+10}\nv_lshlrev_b32 v{T+10}, 2, v{T+10}\nv_lshl_add_u32 v{T+10}, v{VG}, 9, v{T+10}\nv_lshl_add_u32 v{VSM+tt}, v{T+8}, 12, v{T+10}')
    k(f'v_and_b32 v{T+2}, 31, v{VL}\nv_lshlrev_b32 v{T+2}, 2, v{T+2}\nv_lshrrev_b32 v{T+3}, 5, v{VL}\nv_lshl_add_u32 v{VSA}, v{T+3}, 11, v{T+2}')
    k(f's_lshl_b32 s20, s{sTb}, 16\ns_lshl_b32 s21, s{sCb}, 11\ns_add_u32 s21, s21, {WS_H1}\ns_add_u32 s20, s20, s21\ns_add_u32 s21, s21, {16*2048}')
    k(f's_lshl_b32 s22, s{sTb}, 12\ns_lshl_b32 s3, s{sCb}, 7\ns_add_u32 s22, s22, s3\ns_add_u32 s22, s22, {WS_ST}')
    k(f'v_lshrrev_b32 v{T+8}, 2, v{VL}\nv_lshlrev_b32 v{T+8}, 6, v{T+8}\nv_and_b32 v{T+9}, 3, v{VL}\nv_lshl_add_u32 v{T+8}, v{T+9}, 3, v{T+8}\nv_and_b32 v{T+9}, 16, v{VL}\nv_lshlrev_b32 v{T+9}, 1, v{T+9}\nv_add_u32 v{T+8}, {L_V}, v{T+8}')
    k(f'v_add_u32 v{VRD}, v{T+8}, v{T+9}\nv_sub_u32 v{VRD+1}, v{T+8}, v{T+9}\nv_add_u32 v{VRD+1}, 32, v{VRD+1}')
    t0=T+12
    k(f's_lshr_b32 s3, s{sWave}, 1\ns_lshl_b32 s3, s3, 5\ns_and_b32 s48, s{sWave}, 1\ns_lshl_b32 s48, s48, 2\ns_add_u32 s3, s3, s48\nv_lshl_add_u32 v{t0}, v{VG}, 3, s3\nv_lshlrev_b32 v{t0+1}, 4, v{VN}\nv_mul_u32_u24 v{t0+2}, 7168, v{t0}')
    for q in range(4):
        k(f's_mov_b32 s48, {q*(7168-1056)}\nv_add3_u32 v{VWA+q}, v{t0+2}, v{t0+1}, s48')
        k(f's_mov_b32 s48, {63*7168+4096-q*(7168+1056)}\nv_sub_u32 v{VWAr+q}, s48, v{t0+2}\nv_add_u32 v{VWAr+q}, v{VWAr+q}, v{t0+1}')
    k(f'v_add_u32 v{VWAs}, {961*7168-4096}, v{VWAr}\nv_add_u32 v{t0+2}, {512*7168}, v{t0+1}\nv_cmp_eq_u32 vcc, 0, v{t0}\ns_mul_i32 s3, s{sWave}, 192\nv_add_u32 v{t0}, s3, v{VL}\nv_cndmask_b32 v{VWAs}, v{VWAs}, v{t0+2}, vcc')
    for q in range(3):
        k(f'v_mul_u32_u24 v{t0+1}, 43691, v{t0}\nv_lshrrev_b32 v{t0+1}, 19, v{t0+1}\nv_mul_u32_u24 v{t0+2}, 12, v{t0+1}\nv_sub_u32 v{t0+2}, v{t0}, v{t0+2}')
        k(f'v_lshrrev_b32 v{t0+3}, 1, v{t0+1}\nv_and_b32 v{t0+3}, 2, v{t0+3}\nv_xor_b32 v{t0+2}, v{t0+2}, v{t0+3}\nv_lshlrev_b32 v{t0+2}, 4, v{t0+2}\nv_mul_u32_u24 v{t0+3}, 7168, v{t0+1}')
        k(f'v_add_u32 v{VWB+q}, v{t0+3}, v{t0+2}\nv_sub_u32 v{t0+3}, {63*7168+4096-1024*q}, v{t0+3}\nv_add_u32 v{VWBr+q}, v{t0+3}, v{t0+2}')
        if q: k(f'v_subrev_u32 v{VWB+q}, {1024*q}, v{VWB+q}')
        else: k(f'v_add_u32 v{VWBs}, {961*7168-4096}, v{VWBr}\nv_add_u32 v{t0+3}, {512*7168}, v{t0+2}\nv_cmp_eq_u32 vcc, 0, v{t0+1}\ns_nop 1\nv_cndmask_b32 v{VWBs}, v{VWBs}, v{t0+3}, vcc')
        if q<2: k(f'v_add_u32 v{t0}, 64, v{t0}')
    k.wait(vm=['x2'])
    for i in range(24):
        if i<8 or (i&3)!=3 or (i&7)==3: k(f'v_accvgpr_read_b32 v{XD+i}, a{i}')
    for tt in range(2):
        k(f'v_cndmask_b32 v{XM+tt*8+2}, v{XM+tt*8+2}, v{XM+tt*8+3}, s[16:17]')
    for tt in range(2):
        for j in range(2):
            m=XM+(tt*2+j)*4; f=FM+(tt*2+j)*4
            k(f'v_lshlrev_b32 v{f}, 16, v{m+2}\nv_and_b32 v{f+1}, 0xffff0000, v{m+1}\nv_lshlrev_b32 v{f+2}, 16, v{m+1}\nv_and_b32 v{f+3}, 0xffff0000, v{m}')
            m=XD+(tt*2+j)*2; f=FD+(tt*2+j)*4
            k(f'v_lshlrev_b32 v{f}, 16, v{m}\nv_and_b32 v{f+1}, 0xffff0000, v{m}\nv_lshlrev_b32 v{f+2}, 16, v{m+1}\nv_and_b32 v{f+3}, 0xffff0000, v{m+1}')
    k.wait(vm=['mx'])
    k('s_barrier')
    def rd2(u):
        for j in range(2):
            for q in range(2):
                k.lds(f'ds_read_b64_tr_b16 {v(VFr+((u&3)*2+j)*4+2*q,2)}, v{VRD+j} offset:{(32*u+16*q)*64}',('f',u))
    for u in range(3): rd2(u)
    pf_point(5,T)
    for tt in range(2):
        k(f'v_pk_add_f32 {v(MXV+2*tt,2)}, {v(MXV+2*tt,2)}, {v(MY+4*tt,2)}')
    for tt in range(2):
        for (F0,which) in ((FM,1),(FD,0)):
            sel=f'op_sel:[0,{which}] op_sel_hi:[1,{which}] neg_lo:[0,1] neg_hi:[0,1]'
            for j in range(2):
                f=F0+(tt*2+j)*4
                for hh in range(2): k(f'v_pk_add_f32 {v(f+2*hh,2)}, {v(f+2*hh,2)}, {v(MXV+2*tt,2)} {sel}')
    lst=[(S,q) for S in range(EW) for q in range(4)] if EWP==2 else []
    for u in range(8):
        k.wait(lg=[('f',u)])
        for j in range(2):
            for tt in range(2):
                d=ACC2+(j*2+tt)*4
                k(f'v_mfma_f32_16x16x32_f16 {v(d,4)}, {v(VFr+((u&3)*2+j)*4,4)}, {v(CT+(u*2+tt)*4,4)}, {"0" if u==0 else v(d,4)}')
        if u+3<8: rd2(u+3)
        for _ in range(-(-EW*4//8)):
            if lst: dma_now(*lst.pop(0))
    HD=CT; HM=CT+8; Q=CT+48
    k(f'v_mov_b32 v{VM}, v{MXV}\nv_mov_b32 v{VM+1}, v{MXV+2}\ns_nop 5')
    for tt in range(2):
        for (F0,H,which) in ((FM,HM,1),(FD,HD,0)):
            if which==0: k(f'v_cndmask_b32 v{ACC2+tt*4}, v{ACC2+tt*4}, 0, s[16:17]')
            for j in range(2):
                y=ACC2+(j*2+tt)*4; f=F0+(tt*2+j)*4
                for hh in range(2): k(f'v_pk_add_f32 {v(f+2*hh,2)}, {v(f+2*hh,2)}, {v(y+2*hh,2)}')
                for hh in range(2): k(f'v_cvt_pk_bf16_f32 v{H+4*tt+2*j+hh}, v{f+2*hh}, v{f+2*hh+1}')
            if which: k.vmem(f'buffer_store_dwordx4 {v(HM+4*tt,4)}, v{VMA+tt}, s[{sWS}:{sWS+3}], s21 offen{SC}','st2')
            else: k.vmem(f'buffer_store_dwordx4 {v(HD+4*tt,4)}, v{VTO}, s[{sWS}:{sWS+3}], s20 offen offset:{1024*tt}{SC}','st2')
    for tt in range(2):
        for (F0,which) in ((FM,1),(FD,0)):
            q=Q+(which*2+tt)*2
            for j in range(2):
                f=F0+(tt*2+j)*4
                for hh in range(2):
                    if j==0 and hh==0: k(f'v_pk_mul_f32 {v(q,2)}, {v(f,2)}, {v(f,2)}')
                    else: k(f'v_pk_fma_f32 {v(q,2)}, {v(f+2*hh,2)}, {v(f+2*hh,2)}, {v(q,2)}')
    for i in range(4): k(f'v_add_f32 v{Q+2*i}, v{Q+2*i}, v{Q+2*i+1}')
    k(f's_nop 0\nv_permlane32_swap_b32 v{Q}, v{Q+4}\nv_permlane32_swap_b32 v{Q+2}, v{Q+6}\nv_add_f32 v{Q}, v{Q}, v{Q+4}\nv_add_f32 v{Q+2}, v{Q+2}, v{Q+6}\ns_nop 1')
    k(f'v_permlane16_swap_b32 v{Q}, v{Q+2}\nv_add_f32 v{Q}, v{Q}, v{Q+2}')
    k.vmem(f'buffer_store_dword v{Q}, v{VSA}, s[{sWS}:{sWS+3}], s22 offen{SC}','st2')
    stamp(6)
    LAF=7; NB=8
    ACC=[0,64]; NT_=[8,6]; WF=112; OH=144; SQ=OH+40; AUGB=200; VRA=220; VRB=223; T0=230; BFS=[OH+32,16]
    VWo,VWg,VOA,VPA=240,241,244,239; AU4=234; VBA=238
    TK=256
    k(f'v_bfe_u32 v{T0}, v{VL}, 2, 3\nv_mul_u32_u24 v{T0}, 1056, v{T0}\nv_lshrrev_b32 v{T0+1}, 5, v{VL}\nv_lshl_add_u32 v{T0}, v{T0+1}, 8, v{T0}\nv_and_b32 v{T0+2}, 3, v{VL}\nv_lshl_add_u32 v{VRA}, v{T0+2}, 3, v{T0}')
    k(f'v_lshrrev_b32 v{T0}, 2, v{VL}\nv_mul_u32_u24 v{T0}, 192, v{T0}\nv_lshl_add_u32 v{T0}, v{T0+2}, 3, v{T0}\nv_and_b32 v{T0+1}, 16, v{VL}\nv_lshlrev_b32 v{T0+1}, 1, v{T0+1}\nv_add_u32 v{VRB}, v{T0}, v{T0+1}\nv_sub_u32 v{VRB+1}, v{T0}, v{T0+1}')
    for i in (1,2): k(f'v_add_u32 v{VRA+i}, {i*3*STG3}, v{VRA}\nv_add_u32 v{VRB+2*i}, {i*3*STG3}, v{VRB}\nv_add_u32 v{VRB+2*i+1}, {i*3*STG3}, v{VRB+1}')
    k(f's_lshl_b32 s3, s{sTb}, 16\ns_add_u32 s3, s3, {WS_H1}')
    srd(sT,pWS,65536,addreg=3)
    k(f's_lshl_b32 s55, s{sRb}, 4\ns_add_u32 s55, s55, s{sCb}\ns_lshl_b32 s55, s55, 6\ns_add_u32 s54, s55, {WS_F3}\ns_add_u32 s55, s55, {WS_F2}')
    k(f's_mul_i32 s3, s{sTb}, {224*1024}\ns_mul_i32 s48, s{sCb}, {14*1024}\ns_add_u32 s3, s3, s48\ns_add_u32 s3, s3, {WS_HH}')
    srd(sO,pWS,14*1024,addreg=3)
    srd(sB,pB1,3584*2)
    k(f's_mov_b32 s46, {WS_ST}\ns_lshl_b32 s58, s{sTb}, 12\ns_add_u32 s58, s58, {WS_ST}')
    k(f'v_lshrrev_b32 v{T0+1}, 3, v{VL}\nv_and_b32 v{T0+2}, 7, v{VL}\nv_and_b32 v{T0+3}, 6, v{T0+1}\nv_xor_b32 v{T0+2}, v{T0+2}, v{T0+3}\nv_lshlrev_b32 v{T0+2}, 4, v{T0+2}\nv_lshl_add_u32 v{T0+1}, v{T0+1}, 11, v{T0+2}')
    k(f's_lshl_b32 s48, s{sWave}, 14\nv_add_u32 v{VWg}, s48, v{T0+1}\ns_mul_i32 s3, s{sC8}, {224*2048}\nv_add_u32 v{VWo}, s3, v{VWg}')
    if EWP!=2: EW=0
    WPRE=max(EW,cfg.get('wpre',6)); WMID=min(WPRE,max(EW,cfg.get('wmid',0)))
    for S in range(EW,WMID):
        for q in range(4): dma_now(S,q)
    k.wait(vm=['st2'])
    signal(55,T0)
    if cfg.get('w3skip',0):
        Lw=k.newlabel('w3')
        k('s_barrier')
        k(f's_cmp_eq_u32 s{sWave}, 3\ns_cbranch_scc1 {Lw}')
        k(f's_lshr_b32 s3, s{sWave}, 1\ns_lshl_b32 s3, s3, 5\ns_and_b32 s48, s{sWave}, 1\ns_lshl_b32 s48, s48, 2\ns_add_u32 s3, s3, s48\ns_sub_u32 s3, 36, s3\ns_mul_i32 s45, s3, 7168\ns_add_u32 s45, s45, s{sCA}')
        for S in range(WMID,WPRE):
            for q in range(4): dma_now(S,q)
        ex=[(S,q) for S in range(WMID,WPRE) for q in range(4)]
        for w_ in range(3):
            Ln_=k.newlabel('w3x')
            k(f's_cmp_lg_u32 s{sWave}, {w_}\ns_cbranch_scc1 {Ln_}')
            for (S,q) in ex[w_::3]:
                k(f's_add_u32 s3, s45, {S*64*7168}\ns_mov_b32 m0, {slot3(S)*STG3+3*4224}\ns_nop 0\nbuffer_load_dwordx4 v{VWA+q}, s[{sW}:{sW+3}], s3 offen offset:{1056*q} lds')
            k.label(Ln_)
        k.label(Lw)
        state['m0']=None; state['woff']=None
    else:
        if cfg.get('sigbar',1): k('s_barrier')
        for S in range(WMID,WPRE):
            for q in range(4): dma_now(S,q)
    k(f's_sub_u32 s3, 16, s{sRb}\ns_and_b32 s3, s3, 15\ns_lshl_b32 s3, s3, 10\ns_lshl_b32 s48, s{sRb}, 10\nv_mov_b32 v{T0}, s3\nv_mov_b32 v{T0+1}, s48\nv_and_b32 v{T0+2}, 1, v{VG}\nv_cmp_eq_u32 vcc, 0, v{T0+2}\ns_mov_b32 s59, {WS_F2}\ns_nop 0\nv_cndmask_b32 v{T0}, v{T0}, v{T0+1}, vcc\nv_lshl_add_u32 v{T0}, v{VN}, 6, v{T0}')
    pf_point(6,SQ+4)
    if W2P%10: pf_w123(pW2,(W2P//10)*2*QW,(W2P%10)*2*QW,SQ+4)
    if W2P: pieces=pieces[:max(0,len(pieces)-2*(W2P//10+W2P%10))] if False else [p for p in pieces if p[0]==pW1]+[(pW2,o) for o in (0,QW,2*QW,3*QW) if o>=2*QW*(W2P//10+W2P%10)]
    if EW==0: k.wait(vm=[('W',0),('W',1)])
    poll0(T0,59,SQ,False)
    stamp(7)
    def tok(sg,_t=0):
        base=(sg//4)*4096
        if state['toff']!=base:
            k(f's_mov_b32 s{sToff}, {base}'); state['toff']=base
        return lambda: k.vmem(f'buffer_load_dwordx4 {reg(TK+4*sg,4)}, v{VTO}, s[{sT}:{sT+3}], s{sToff} offen offset:{(sg%4)*1024}{TKF}', ('T',sg))
    P0=cfg.get('P0',8)
    for sg in range(P0): tok(sg)()
    if cfg.get('pfh',0):
        k(f's_lshl_b32 s3, s{sC8}, 13\nv_lshlrev_b32 v{T0+2}, 7, v{VL}')
        k.vmem(f'buffer_load_dword v{T0+3}, v{T0+2}, s[{sT}:{sT+3}], s3 offen','pf')
    k(f'v_lshlrev_b32 v{T0}, 2, v{VN}\nv_lshl_add_u32 v{T0}, v{VG}, 9, v{T0}')
    for tt in range(2):
        for i in range(4):
            k.vmem(f'buffer_load_dword v{SQ+8*tt+i}, v{T0}, s[{sWS}:{sWS+3}], s58 offen offset:{128*i+64*tt}{SC}','sq')
            k.vmem(f'buffer_load_dword v{SQ+8*tt+4+i}, v{VSM+tt}, s[{sWS}:{sWS+3}], s46 offen offset:{2048+128*i}{SC}','sq')
    FR=[(S,u,j) for S in range(NSTG) for u in range(2) for j in range(NT_[S>>4])]
    NFR=len(FR); F0S={}
    for f,(S,u,j) in enumerate(FR): F0S.setdefault(S,f)
    F0S[NSTG]=NFR
    NDq=lambda S: 3 if S>>4 else 4
    pend=[('tok',sg,0) for sg in range(P0,64)]+[('dma',S,q) for S in range(WPRE,NS-1) for q in range(4)]
    def rd(f,q):
        if f>=NFR: return
        S,u,j=FR[f]; slot=slot3(S)
        if S<16: ar=VRA+slot//3; off=u*8*1056+q*512+32*j
        else: ar=VRB+2*(slot//3)+(j&1); off=(32*u+16*q)*192+32*j
        k.lds(f'ds_read_b64_tr_b16 {v(WF+(f%NB)*4+2*q,2)}, v{ar} offset:{off+(slot%3)*STG3}', ('R',f))
    events={}
    def at(f,item): events.setdefault(f|1 if item[0]!='valu' else f,[]).append(item)
    def run_events(f,post):
        for ev in events.get(f,[]):
            if ev[0]=='vm': post.append(ev[1])
            elif ev[0]=='valu': post.append(lambda s_=ev[1]: k(s_))
            elif ev[0]=='wait': post.append(lambda t_=ev[1]: k.wait(vm=[t_]))
    V=[('wait','sq')]
    for tt in range(2):
        b=SQ+8*tt
        for i in (1,2,3,4,5,6,7): V.append(f'v_add_f32 v{b}, v{b}, v{b+i}')
    a_=SQ; b_=SQ+8; c_=SQ+1; d_=SQ+2
    def hilo(dst,x): return [f'v_cvt_pk_bf16_f32 v{c_}, v{x}, v{x}', f'v_and_b32 v{c_}, 0xffff0000, v{c_}', f'v_sub_f32 v{c_}, v{x}, v{c_}', f'v_cvt_pk_bf16_f32 v{dst}, v{x}, v{c_}']
    V+= [f'v_permlane32_swap_b32 v{a_}, v{b_}', f'v_add_f32 v{a_}, v{a_}, v{b_}', f'v_mov_b32 v{b_}, v{a_}', f'v_permlane16_swap_b32 v{a_}, v{b_}', f'v_add_f32 v{a_}, v{a_}, v{b_}',
         f'v_mov_b32 v{b_}, {fl(1e-5)}', f'v_fmac_f32 v{b_}, {fl(1/1024)}, v{a_}', f'v_mov_b32 v{b_+1}, v{b_}', f'v_mov_b32 v{AUGB+1}, 0', f'v_permlane32_swap_b32 v{b_}, v{b_+1}', f'v_mov_b32 v{AUGB+3}, 0']
    for tt in range(2):
        V+= [f'v_sqrt_f32 v{a_}, v{b_+tt}', f'v_rcp_f32 v{VRS+tt}, v{b_+tt}']+hilo(AUGB+2*tt,a_)+hilo(AU4+2*tt,b_+tt)+[f'v_mul_f32 v{d_}, v{b_+tt}, v{VM+tt}']+hilo(AU4+2*tt+1,d_)
    V+= [f'v_lshlrev_b32 v{VBA}, 1, v{VN}', f'v_lshl_add_u32 v{VBA}, v{VG}, 28, v{VBA}']
    for j in range(8): V.append(f'v_mov_b32 v{BFS[0]+2*j+1}, 0')
    f1=F0S[cfg.get('sq_use',4)]
    for i,x in enumerate(V): at(f1+2*i, x if isinstance(x,tuple) else ('valu',x))
    assert f1+2*len(V)<F0S[14]
    for j in range(6): at(F0S[28]+2*j,('valu',f'v_mov_b32 v{BFS[1]+2*j+1}, 0'))
    for p_ in range(2):
        for j in range(NT_[p_]):
            if j==0: at(F0S[16*p_+14],('valu',f's_add_u32 s59, s57, s{sCB if p_ else sCA}'))
            at(F0S[16*p_+14]+2*j,('vm',lambda j=j,p_=p_: k.vmem(f'buffer_load_ushort v{BFS[p_]+2*j}, v{VBA}, s[{sB}:{sB+3}], s59 offen offset:{32*j}','bf')))
    if cfg.get('trk',0):
        LPW=cfg.get('lpw',4); NP=-(-56//LPW)
        def trk_setup():
            srd(sXC,pW2,1024*7168)
            k(f's_lshl_b32 s3, s2, 2\ns_add_u32 s3, s3, s{sWave}\ns_mul_i32 s58, s3, {LPW*128}\nv_lshlrev_b32 v{T0+2}, 7, v{VL}\nv_cmp_gt_u32 vcc, {LPW}, v{VL}\nv_mov_b32 v{T0+3}, 0x40000000\ns_nop 0\nv_cndmask_b32 v{T0+2}, v{T0+3}, v{T0+2}, vcc')
        trk_setup()
        f_a=F0S[cfg.get('trk0',1)]; f_b=F0S[cfg.get('trk1',24)]
        for i_ in range(NP):
            def one(i_=i_):
                k.vmem(f'buffer_load_dword v{T0+3}, v{T0+2}, s[{sXC}:{sXC+3}], s58 offen','pf')
                k(f's_add_u32 s58, s58, {LPW*128*1024}')
            at(f_a+(f_b-f_a)*i_//NP+3,('vm',one))
    elif cfg.get('qw',0):
        quiet=[]
        def big(first,nb,fpos):
            def go():
                for p in [p for p in pend if p[0]=='dma']: flush(p)
                pf_any(pW2,T0+2,first,nb,f'v{T0+3}')
                pace['quiet']=fpos+cfg.get('qlen',48)
            at(fpos,('vm',go))
        if cfg.get('qw',1)==1: big(0,4*QW,F0S[16]-cfg.get('qpre',2))
        else:
            big(0,2*QW,F0S[16]-cfg.get('qpre',2)); big(2*QW,2*QW,F0S[cfg.get('q2',22)])
    else:
        def pf_one(): pf_piece(T0+2,f'v{T0+3}')
        for i_ in range(8):
            S_=cfg.get('pf3',16)+i_*cfg.get('pf3s',2)
            if S_<NSTG: at(F0S[S_]+cfg.get('pf3o',6),('vm',pf_one))
    def cpf_again(vt):
        L=k.newlabel('cp')
        k(f's_getpc_b64 s[88:89]')
        k.label(L)
        k(f's_lshr_b32 s3, s2, 3\ns_lshl_b32 s3, s3, 10\nv_min_u32 v{vt}, 7, v{VL}\nv_lshl_add_u32 v{vt}, v{vt}, 7, s3\nv_min_u32 v{vt}, {name}_end-{L}-4, v{vt}')
        k.vmem(f'global_load_dword v{vt+1}, v{vt}, s[88:89]','pf')
    for S_ in str(cfg.get('cpa',7)).split('0'):
        if S_: at(F0S[int(S_)*3]+5,('vm',lambda: cpf_again(T0+2)))
    if SEN:
        def clr0():
            srd(sXC,pWS,4<<20,addlit=WS_X)
            k(f's_lshl_b32 s3, s2, 2\ns_add_u32 s3, s3, s{sWave}\ns_lshl_b32 s58, s3, 12')
            for i in range(4): k(f'v_mov_b32 v{CR+i}, -1')
        fc=F0S[cfg.get('clr_at',16)]+cfg.get('clr_o',0); CR=OH if cfg.get('clr_at',16)<16 else 8
        at(fc,('vm',clr0))
        for i in range(4): at(fc+cfg.get('clr_g',6)*(i+1),('vm',lambda i=i: k.vmem(f'buffer_store_dwordx4 {v(CR,4)}, v{VTO}, s[{sXC}:{sXC+3}], s58 offen offset:{1024*i} sc1','clr')))
    later=[]
    def epilogue3(p_):
        A=ACC[p_]; tm=ACC[1-p_]; n_=NT_[p_]; BF=BFS[p_]
        k.wait(vm=['bf'])
        for j in range(n_): k(f'v_lshl_or_b32 v{BF+2*j}, v{BF+2*j}, 16, v{BF+2*j}')
        def aug(j):
            for t in range(2): k(f'v_mfma_f32_16x16x16_bf16 {v(A+(2*j+t)*4,4)}, {v(BF+2*j,2)}, {v(AUGB+2*t,2)}, {v(A+(2*j+t)*4,4)}')
        for j in range(4): aug(j)
        k('s_nop 1')
        for j in range(n_//2):
            e=4*p_+j
            for x_ in (2*j+4,2*j+5):
                if x_<n_: aug(x_)
            for jj in range(2):
                R=[A+((2*j)*2+jj)*4+r for r in range(4)]+[A+((2*j+1)*2+jj)*4+r for r in range(4)]
                d=OH+8*e+4*jj; x=tm+8*jj
                for r in range(8): k(f'v_max_f32 v{x+r}, 0, v{R[r]}')
                for r in range(0,8,2): k(f'v_pk_mul_f32 {v(R[r],2)}, {v(R[r],2)}, {v(x+r,2)}')
                for r in range(4): k(f'v_cvt_pk_bf16_f32 v{d+r}, v{R[2*r]}, v{R[2*r+1]}')
                o=(2*e+jj)*1024
                def st_(o=o,d=d):
                    if state['toff']!=o//4096*4096: k(f's_mov_b32 s{sToff}, {o//4096*4096}'); state['toff']=o//4096*4096
                    k.room(1)
                    k.vmem(f'buffer_store_dwordx4 {v(d,4)}, v{VTO}, s[{sO}:{sO+3}], s{sToff} offen offset:{o%4096} sc1',('st3',p_))
                idx=2*j+jj
                if idx<cfg.get('st_now',2) or not cfg.get('st_gap',6): st_()
                else: later.append(st_)
    NS4=32; STG4=4096; NTS=32; C=32*2048; EB=35
    DL=cfg.get('DL',20)
    U=[]
    for e in range(EB): U+= [('G',e),('K',e)]
    for tau in range(EB,56+DL):
        if tau<56: U.append(('G',tau))
        if tau>=EB+DL: U.append(('K',tau-DL))
    NU=len(U); uidx={u_:i for i,u_ in enumerate(U)}
    def estep(e):
        if e<EB: return (e-7)//4, 7*((e-7)//4)+(e-7)%4
        return (e-EB)//3, 7*((e-EB)//3)+4+(e-EB)%3
    def bias_fix(e,sr,unit,two=False):
        i,st_=estep(e)
        if e in (7,EB):
            k(f's_mul_i32 s{sr}, s{sC8}, {7*unit}\ns_add_u32 s{sr}, s{sr}, {7*unit}')
            if two:
                d_=3*unit if e==7 else (-4*unit)&0xffffffff
                k(f's_bitcmp1_b32 s{sC8}, 0\ns_cselect_b32 s3, {d_}, 0\ns_add_u32 s{sr+1}, s{sr}, s3\ns_cselect_b32 s3, 0, {d_}'.replace('s_add_u32 s%d, s%d, s3\ns_cselect_b32 s3, 0, %d'%(sr+1,sr,d_),'s_cselect_b32 s48, 0, %d\ns_add_u32 s%d, s%d, s3'%(d_,sr+1,sr))+f'\ns_add_u32 s{sr}, s{sr}, s48')
        if st_-7*i in (0,4):
            k(f's_cmp_eq_u32 s{sC8}, {7-i}\ns_cselect_b32 s3, {56*unit}, 0\ns_sub_u32 s{sr}, s{sr}, s3')
            if two: k(f's_sub_u32 s{sr+1}, s{sr+1}, s3')
    sG=sT; sOA,sOB=90,91; ROT=0 if NSB==8 else -(-NSB*STG3//4096); sGoff=50; sWl4=49; sT4off=51; sBG,sBK,sBT=86,98,46
    st4={'T':None}
    def dma4(n,_q=0):
        part,e=U[n]; sr=sG if part=='G' else sK
        vo=VWo if e<7 else VWg
        if e<EB and st4.get('ge')==e: pass
        elif e<7: k(f's_add_u32 s{sGoff}, s{sOA if e<4 else sOB}, {e*C}')
        else:
            vo=VWg; sb_=sBG if part=='G' else sBK; bias_fix(e,sb_,C,True); i,st_=estep(e); k(f's_add_u32 s{sGoff}, s{sb_+(i&1)}, {st_*C}')
        st4['ge']=e
        k(f's_add_u32 m0, s{sWl4}, {((n+ROT)%NS4)*STG4}'); state['m0']=('W4',n)
        return lambda: k.vmem(f'buffer_load_dwordx4 v{vo}, s[{sr}:{sr+3}], s{sGoff} offen{W2F} lds', ('W4',n))
    def tokreg(e,t): return (OH+8*e if e<7 else 256+8*((e-7)%NTS))+4*t
    def tok4(e,t):
        i,st_=estep(e); a_=st_-7*i; key=(e>=EB,i,a_//2)
        if t==0: bias_fix(e,sBT,2048)
        if st4['T']!=key:
            k(f's_add_u32 s{sT4off}, s{sBT}, {(7*i+a_//2*2)*2048}'); st4['T']=key
        return lambda: k.vmem(f'buffer_load_dwordx4 {reg(tokreg(e,t),4)}, v{VTO}, s[{sXS}:{sXS+3}], s{sT4off} offen offset:{(a_%2)*2048+t*1024}{TKF}', ('T4',e,t))
    def issue(p,now):
        if p[0]=='fn':
            if now: p[2](); return None
            return p[2]
        if p[0] in ('tok','tok4'):
            f_=(tok if p[0]=='tok' else tok4)(p[1],p[2])
            if now: f_(); return None
            return f_
        f_=(dma if p[0]=='dma' else dma4)(p[1],p[2])
        if now: k('s_nop 0'); f_(); return None
        return f_
    def flush(item):
        while item in pend: k.room(1); issue(pend.pop(0),True)
    LAF4=7
    def BU3(S): return cfg.get('BU3B',1) if S>=16 else cfg.get('BU3',2)
    def prio(p):
        if p[0]=='fn': return p[1]
        if p[0]=='tok': return p[1]//2*8
        if p[0]=='dma': return F0S[p[1]//BU3(p[1])*BU3(p[1])]-LAF-cfg.get('wlead',14)
        if p[0]=='tok4': return NFR+uidx[('G',p[1])]*4
        return NFR+p[1]*4-LAF4
    pace={'last':0}
    def pick(now,gap,urg):
        if len(k.vm)>=cfg.get('vmmax',56) or now<pace.get('quiet',0): return None
        for i,p in enumerate(pend):
            d=prio(p)-now
            if d>((cfg.get('wwin',48) if now<F0S[cfg.get('wfree',16)] else 999) if p[0]=='dma' else cfg.get('win',400)): continue
            if now-pace['last']>=gap or d<=urg:
                pace['last']=now; return issue(pend.pop(i),False)
            return None
        return None
    flags={'A':False,'B':False}
    def sigA():
        k.wait(vm=[('st3',0)]); signal(54,0)
    def polA_issue():
        k(f's_mul_i32 s3, s{sTb}, {56*4096}\ns_mul_i32 s48, s{sHf}, {28*4096}\ns_add_u32 s3, s3, s48\ns_add_u32 s3, s3, {WS_HH}')
        srd(sXS,pWS,28*4096,addreg=3)
        k(f's_lshl_b32 s55, s{sRb}, 10\ns_add_u32 s55, s55, {WS_F3}\ns_lshl_b32 s48, s{sHf}, 3\nv_and_b32 v{VPA}, 7, v{VL}\nv_add_u32 v{VPA}, s48, v{VPA}\ns_xor_b32 s48, s{sCb}, 8\nv_mov_b32 v4, s48\nv_cmp_gt_u32 vcc, 8, v{VL}\ns_nop 1\nv_cndmask_b32 v{VPA}, v4, v{VPA}, vcc\nv_lshlrev_b32 v{VPA}, 6, v{VPA}')
        poll_issue(VPA,55,4,False)
    def polA_check():
        poll_check(VPA,55,4,False); flags['A']=True
    at(F0S[cfg.get('sigA',21)],('vm',sigA))
    at(F0S[cfg.get('polAi',23)],('vm',polA_issue))
    at(F0S[cfg.get('polAc',25)],('vm',polA_check))
    t4_next=7; dma_next=0; w_next=NS-1; built=False
    for f in range(LAF): rd(f,0); rd(f,1)
    held=None
    for f in range(NFR):
        S,u,j=FR[f]; p_=S>>4; sg=4*(S&15)+2*u
        if f==1: stamp(8)
        if cfg.get('p3st') is not None and f==F0S[S] and S%2==0 and 0<=S//2-cfg['p3st']<8: k(f's_memtime s[{64+2*(S//2-cfg["p3st"])}:{65+2*(S//2-cfg["p3st"])}]')
        if f==F0S[16]:
            stamp(9)
            for p in [p for p in pend if p[0]=='dma']: flush(p)
            epilogue3(0); stamp(10)
            for i_,f_ in enumerate(later): at(f+3+i_*cfg.get('st_gap',6),('vm',f_))
            later.clear()
        if j==0 and p_==1 and flags['A']:
            while t4_next<EB and 2*(t4_next-7)+1<sg:
                pend+= [('tok4',t4_next,0),('tok4',t4_next,1)]; t4_next+=1
        pend.sort(key=prio)
        tw=[]
        if f%2==0:
            for ff in (f,f+1):
                S2,u2,j2=FR[ff]
                if j2==0 and S2<16:
                    for t in range(2): flush(('tok',4*S2+2*u2+t,0)); tw.append(('T',4*S2+2*u2+t))
            k.wait(vm=tw, lg=[('R',f),('R',f+1)])
        post=[]
        run_events(f,post)
        D=ACC[p_]+8*j
        k(f'v_mfma_f32_16x16x32_bf16 {v(D,4)}, {v(WF+(f%NB)*4,4)}, {reg(TK+4*sg,4)}, {"0" if sg==0 else v(D,4)}')
        if True:
            if f+LAF<NFR and f+LAF==F0S[FR[f+LAF][0]] and FR[f+LAF][0]%BU3(FR[f+LAF][0])==0:
                S1=FR[f+LAF][0]
                assert S1+BU3(S1)-1<w_next
                flush(('dma',S1+BU3(S1)-1,NDq(S1+BU3(S1)-1)-1))
                k.wait(vm=[('W',x) for x in range(S1,S1+BU3(S1))]); k('s_barrier')
                while w_next<NSTG and prev3(w_next)<=S-1:
                    pend+= [('dma',w_next,q) for q in range(NDq(w_next))]; w_next+=1
                lastuse=lambda sl: max(x for x in range(NSTG) if slot3(x)==sl)
                while dma_next<NS4 and max(lastuse(((dma_next+ROT)%NS4)*4096//STG3),lastuse((((dma_next+ROT)%NS4)*4096+4095)//STG3))<=S-1 and S>=16:
                    if not built:
                        built=True
                        assert not any(p[0]=='tok' for p in pend)
                        k(f's_mul_i32 s3, s{sHf}, {1792*2048}\ns_lshl_b32 s48, s{sC8}, 8\ns_add_u32 s3, s3, s48\ns_lshl_b32 s48, s{sHf}, 7\ns_add_u32 s47, s3, s48\ns_sub_u32 s58, s3, s48\ns_add_u32 s58, s58, 128')
                        for (d,o) in ((sG,58),(sK,47)):
                            k(f's_add_u32 s{d}, s{pW2}, s{o}\ns_addc_u32 s{d+1}, s{pW2+1}, 0\ns_and_b32 s{d+1}, s{d+1}, 0xffff\ns_sub_u32 s{d+2}, {1024*7168}, s{o}\ns_mov_b32 s{d+3}, 0x20000')
                        k(f's_lshl_b32 s{sWl4}, s{sWave}, 10\ns_bitcmp1_b32 s{sC8}, 0\ns_cselect_b32 s{sOA}, {3*C}, 0\ns_cselect_b32 s{sOB}, {(-4*C)&0xffffffff}, 0')
                    if S<cfg.get('d4from',18): break
                    pend.append(('dma4',dma_next,0)); dma_next+=1
                pend.sort(key=prio)
        rd(f+LAF,0)
        k(f'v_mfma_f32_16x16x32_bf16 {v(D+4,4)}, {v(WF+(f%NB)*4,4)}, {reg(TK+4*sg+4,4)}, {"0" if sg==0 else v(D+4,4)}')
        if f%2==1 and held: held(); held=None
        rd(f+LAF,1)
        for p in post: p()
        if f%2==0:
            nb=f+1+LAF<NFR and f+1+LAF==F0S[FR[f+1+LAF][0]] and FR[f+1+LAF][0]%BU3(FR[f+1+LAF][0])==0
            isv=nb or any(ev[0]=='vm' for ev in events.get(f+1,[]))
            x_=pick(f,999,cfg.get('urg3',20))
            if x_: k('s_nop 0'); x_()
            held=None if isv else pick(f,0,-999)
        k.check_vm()
    stamp('a')
    epilogue3(1)
    stamp('b')
    LAF=LAF4; BU=cfg.get('BU',4)
    PRE=0; AG=32; AK=64; VFL=96; VZ=100; XR=200; VRD=224; T0=104; HX=200; VS=108
    k(f'v_lshrrev_b32 v{T0}, 2, v{VL}\nv_lshlrev_b32 v{T0+1}, 7, v{T0}\nv_and_b32 v{T0+2}, 3, v{VL}\nv_lshl_add_u32 v{T0+1}, v{T0+2}, 3, v{T0+1}')
    k(f'v_and_b32 v{T0+2}, 6, v{T0}\nv_lshlrev_b32 v{T0+2}, 4, v{T0+2}')
    for j in range(4):
        k(f'v_xor_b32 v{T0+3}, {32*j}, v{T0+2}\nv_add_u32 v{VRD+j}, v{T0+1}, v{T0+3}\nv_add_u32 v{VRD+4+j}, 0x10000, v{VRD+j}')
    def rd4(f,q):
        if f>=NU*4: return
        n=f//4; j=f%4; slot=(n+ROT)%NS4
        k.lds(f'ds_read_b64_tr_b16 {v(WF+(f%NB)*4+2*q,2)}, v{VRD+4*(slot//16)+j} offset:{16*q*128+(slot%16)*STG4}', ('R4',f))
    flush(('dma4',BU-1,0))
    k.wait(vm=[('W4',n) for n in range(BU)]); k('s_barrier')
    for f in range(LAF): rd4(f,0); rd4(f,1)
    while dma_next<NS4: pend.append(('dma4',dma_next,0)); dma_next+=1
    events={}
    for i_,f_ in enumerate(later): at(3+i_*cfg.get('st_gap',6),('vm',f_))
    NF4=NU*4
    def sigB():
        k.wait(vm=[('st3',1)]); k(f's_add_u32 s54, s54, 16384'); signal(54,VFL)
    def polB_issue():
        k(f's_add_u32 s55, s55, 16384'); poll_issue(VPA,55,VFL,False)
    def polB_check():
        poll_check(VPA,55,VFL,False); flags['B']=True
    if cfg.get('cpb',0): at(cfg['cpb'],('vm',lambda: cpf_again(T0+2)))
    at(cfg.get('sigB',64),('vm',sigB))
    at(cfg.get('polBi',110),('vm',polB_issue))
    at(cfg.get('polBc',134),('vm',polB_check))
    g_end=(uidx[('G',55)]+1)*4
    fs=uidx[('G',EB)]*4+cfg.get('pre_off',min(44,DL*4-24))
    def side():
        srd(sB,pB2,2048); srd(sO,pOUT,2048*2048); srd(sXC,pWS,8<<20,addlit=WS_X)
        k(f's_lshl_b32 s57, s{sC8}, 1\ns_add_u32 s57, s57, s{sHf}')
        k(f's_sub_u32 s3, 23, s57\ns_cmp_ge_u32 s57, 8\ns_cselect_b32 s3, s3, s57\ns_cselect_b32 s48, 3, 0\ns_lshl_b32 s3, s3, 12\ns_lshl_b32 s44, s{sTb}, 16\ns_add_u32 s44, s44, {WS_H1}\ns_add_u32 s44, s44, s3')
        k(f'v_xor_b32 v{VS}, s48, v{VG}\nv_lshlrev_b32 v{VS}, 8, v{VS}\nv_lshl_add_u32 v{VS}, v{VN}, 4, v{VS}')
        k(f'v_sub_u32 v{VS+1}, 0, v{VG}\nv_and_b32 v{VS+1}, 3, v{VS+1}\nv_lshlrev_b32 v{VS+1}, 8, v{VS+1}\nv_lshl_add_u32 v{VS+1}, v{VN}, 4, v{VS+1}\nv_cmp_eq_u32 vcc, 0, v{VG}')
        k(f'v_add_u32 v{VS+2}, 8, v{VS+1}\nv_add_u32 v{VS+3}, 2040, v{VS+1}\nv_cndmask_b32 v{VS+2}, v{VS+1}, v{VS+2}, vcc\nv_cndmask_b32 v{VS+1}, v{VS+1}, v{VS+3}, vcc')
        k(f's_cmp_eq_u32 s57, 8\ns_cselect_b32 s3, {hex((-16*2048)&0xffffffff)}, 0\nv_mov_b32 v{VS+3}, s3\nv_cndmask_b32 v{VS+3}, 0, v{VS+3}, vcc\nv_add_u32 v{VS+3}, v{VS+3}, v{VS+1}\nv_add_u32 v{VS+3}, {15*4096}, v{VS+3}\ns_sub_u32 s59, s44, {15*4096}')
        k(f's_lshl_b32 s45, s57, 7\nv_mov_b32 v{OH+1}, 0x3f803f80\nv_cndmask_b32 v{OH+1}, 0, v{OH+1}, vcc\nv_mov_b32 v{OH+3}, v{OH+1}\nv_mov_b32 v{OH+5}, v{OH+1}\nv_mov_b32 v{OH+7}, v{OH+1}')
        L_=[]
        for jj in range(4):
            for tt in range(2): L_.append(f'buffer_load_dwordx2 {v(HX+(jj*2+tt)*2,2)}, v{VS}, s[{sWS}:{sWS+3}], s44 offen offset:{(jj>>1)*2048+(jj&1)*8+1024*tt}')
        for jj in range(4):
            for tt in range(2):
                if jj==3: L_.append(f'buffer_load_dword v{HX+16+jj*2+tt}, v{VS+3}, s[{sWS}:{sWS+3}], s59 offen offset:{2048+8+1024*tt}')
                else: L_.append(f'buffer_load_dword v{HX+16+jj*2+tt}, v{VS+1+(1-(jj&1))}, s[{sWS}:{sWS+3}], s44 offen offset:{(jj>>1)*2048+(jj&1)*8+1024*tt}')
        for j in range(4): L_.append(f'buffer_load_ushort v{OH+2*j}, v{VBA}, s[{sB}:{sB+3}], s45 offen offset:{32*j}')
        for i_,t_ in enumerate(L_): pend.append(('fn',NFR+fs-60+i_,lambda t_=t_: k.vmem(t_+(TKF if 'ushort' not in t_ else ''),'hx')))
        k(f's_lshl_b32 s12, s{sWave}, 9\ns_add_u32 s12, s12, s{sRb}\ns_lshl_b32 s12, s12, 11\ns_add_u32 s12, s12, s45\ns_add_u32 s13, s12, {256*2048}')
        k(f'v_lshlrev_b32 v{VOA}, 15, v{VN}\nv_and_b32 v{VZ}, 1, v{VG}\nv_lshl_add_u32 v{VOA}, v{VZ}, 5, v{VOA}\nv_lshrrev_b32 v{VZ}, 1, v{VG}\nv_lshl_add_u32 v{VOA}, v{VZ}, 4, v{VOA}')
        k(f's_lshl_b32 s3, s2, 2\ns_add_u32 s3, s3, s{sWave}\ns_lshl_b32 s14, s3, 12\ns_xor_b32 s15, s14, {4<<12}\ns_lshl_b32 s52, s3, 6\ns_add_u32 s52, s52, {WS_FX}\ns_xor_b32 s58, s52, 256\nv_mov_b32 v{VZ}, 0')
    at(cfg.get('side_at',68),('vm',side))
    def hfix():
        assert not any(p[0]=='fn' for p in pend)
        k.wait(vm=['hx'])
        L=k.newlabel('hfix')
        k(f's_cmp_lt_u32 s57, 8\ns_cbranch_scc1 {L}\ns_mov_b32 s3, 0x07060100')
        for jj in range(8):
            h=HX+jj*2; s1=HX+16+jj
            k(f'v_perm_b32 v{s1}, v{h+1}, v{s1}, s3\nv_perm_b32 v{h+1}, v{h}, v{h+1}, s3\nv_mov_b32 v{h}, v{s1}')
        for jj in range(2):
            for x in range(4): k(f'v_swap_b32 v{HX+jj*4+x}, v{HX+(3-jj)*4+x}')
        k.label(L)
    V=[('vm',hfix)]
    for j in range(4): V.append(f'v_lshl_or_b32 v{OH+2*j}, v{OH+2*j}, 16, v{OH+2*j}')
    for j in range(4):
        V.append('\n'.join(f'v_mfma_f32_16x16x16_bf16 {v(AK+(2*j+t)*4,4)}, {v(OH+2*j,2)}, {v(AU4+2*t,2)}, {v(AK+(2*j+t)*4,4)}' for t in range(2)))
    assert all(U[n_][0]=='G' for n_ in range(fs//4-1,fs//4+4))
    for r in range(32):
        V.append(f'v_lshlrev_b32 v{PRE+r}, 16, v{HX+r//2}' if r%2==0 else f'v_and_b32 v{PRE+r}, 0xffff0000, v{HX+r//2}')
    per=cfg.get('pre_per',1)
    for i,x in enumerate(V): at(fs+i//per, x if isinstance(x,tuple) else ('valu',x))
    assert fs+len(V)//per<g_end+min(cfg.get('xc',62),cfg.get('xl',52))
    for i in range(4):
        def xs(i=i):
            for r in range(4): k(f'v_cvt_pk_bf16_f32 v{AG+8*i+r}, v{AG+8*i+2*r}, v{AG+8*i+2*r+1}')
            k.vmem(f'buffer_store_dwordx4 {v(AG+8*i,4)}, v{VTO}, s[{sXC}:{sXC+3}], s14 offen offset:{i*1024} sc1','xs')
        at(g_end+4+i*cfg.get('xs_gap',6),('vm',xs))
    fA=g_end+cfg.get('xa',36); fB=g_end+cfg.get('xb',48); fC=g_end+cfg.get('xc',62)
    assert SEN or fC<NF4
    xl=[f'buffer_load_dwordx4 {v(XR+4*i,4)}, v{VTO}, s[{sXC}:{sXC+3}], s15 offen offset:{i*1024} sc1' for i in range(4)]
    if SEN:
        for i in range(4): at(g_end+cfg.get('xl',52)+2*i,('vm',lambda i=i: k.vmem(xl[i],'xr')))
    else:
        at(fA,('wait','xs'))
        at(fA,('vm',lambda: signal(52,VFL,barrier=False)))
        at(fB,('vm',lambda: poll_issue(VZ,58,VS,False)))
        def chk():
            poll_check(VZ,58,VS,False)
            k.room(4)
            for i in range(4): k.vmem(f'buffer_load_dwordx4 {v(XR+4*i,4)}, v{VTO}, s[{sXC}:{sXC+3}], s15 offen offset:{i*1024} sc1','xr')
        at(fC,('vm',chk))
    kdone=6; held=None
    for f in range(NF4):
        n=f//4; j=f%4; part,e=U[n]
        if cfg.get('p4st') is not None:
            i_=(f-cfg['p4st'])//cfg.get('qs',16)
            if f>=cfg['p4st'] and (f-cfg['p4st'])%cfg.get('qs',16)==0 and i_<10: k(f's_memtime s[{62+2*i_}:{63+2*i_}]')
        else:
            if f==uidx[('G',7)]*4: stamp('c')
            if f==uidx[('G',EB)]*4: stamp('d')
            if f==g_end: stamp('e')
        if f%4==0:
            if n>0 and U[n-1][0]=='K': kdone=U[n-1][1]
            while t4_next<56 and (t4_next<EB or flags['B']) and (t4_next-NTS<7 or t4_next-NTS<=kdone):
                pend+= [('tok4',t4_next,0),('tok4',t4_next,1)]; t4_next+=1
        pend.sort(key=prio)
        if f%2==0:
            tw=[]
            if part=='G' and e>=7 and j==0:
                assert e<t4_next
                for t in range(2): flush(('tok4',e,t)); tw.append(('T4',e,t))
            k.wait(vm=tw, lg=[('R4',f),('R4',f+1)])
        post=[]
        run_events(f,post)
        D=(AG if part=='G' else AK)+8*j
        k(f'v_mfma_f32_16x16x32_bf16 {v(D,4)}, {v(WF+(f%NB)*4,4)}, {reg(tokreg(e,0),4)}, {"0" if e==0 else v(D,4)}')
        if True:
            nn=(f+LAF)//4
            if (f+LAF)%4==0 and nn<NU and nn%BU==0:
                if held: held(); held=None
                last=min(nn+BU,NU)-1
                flush(('dma4',last,0))
                k.wait(vm=[('W4',m) for m in range(nn,last+1)]); k('s_barrier')
                while dma_next<NU and dma_next-NS4<=n-1:
                    pend.append(('dma4',dma_next,0)); dma_next+=1
                pend.sort(key=prio)
        rd4(f+LAF,0)
        k(f'v_mfma_f32_16x16x32_bf16 {v(D+4,4)}, {v(WF+(f%NB)*4,4)}, {reg(tokreg(e,1),4)}, {"0" if e==0 else v(D+4,4)}')
        if f%2==1 and held: held(); held=None
        rd4(f+LAF,1)
        for p in post: p()
        if f%2==0:
            nb=(f+1+LAF)%4==0 and ((f+1+LAF)//4)%BU==0 and cfg.get('skipbar',0)
            isv=nb or any(ev[0]=='vm' for ev in events.get(f+1,[]))
            x_=pick(NFR+f,999,cfg.get('urg4',40))
            if x_: k('s_nop 0'); x_()
            held=None if isv else pick(NFR+f,0,-999)
        k.check_vm()
    stamp('f')
    k.wait(vm=['xr'])
    if SEN:
        L=k.newlabel('xchk'); Lo=k.newlabel('xok')
        k(f's_mov_b32 s47, {1<<18}')
        k.label(L)
        for i in range(5): k(f'v_max3_u32 v{T0+(i&1)}, v{XR+3*i}, v{XR+3*i+1}, v{XR+3*i+2}' if i<2 else f'v_max3_u32 v{T0+(i&1)}, v{T0+(i&1)}, v{XR+2*i+2}, v{XR+2*i+3}')
        k(f'v_max3_u32 v{T0+1}, v{T0+1}, v{XR+12}, v{XR+13}\nv_max3_u32 v{T0}, v{T0}, v{XR+14}, v{XR+15}\nv_max_u32 v{T0}, v{T0}, v{T0+1}\nv_cmp_eq_u32 vcc, -1, v{T0}')
        k(f's_sub_u32 s47, s47, 1\ns_cbranch_scc1 {Lo}\ns_cmp_eq_u64 vcc, 0\ns_cbranch_scc1 {Lo}')
        for t_ in xl: k(t_)
        k(f's_waitcnt vmcnt(0)\ns_branch {L}')
        k.label(Lo)
    else: k('s_nop 5')
    for p in range(2):
        for tt in range(2):
            d=WF+4*(2*p+tt)
            for jj in range(2):
                j=2*p+jj; a_=AK+(j*2+tt)*4; pr=PRE+(j*2+tt)*4; x_=AG+(j*2+tt)*4; xr=XR+(j*2+tt)*2
                for hh in range(2): k(f'v_lshlrev_b32 v{x_+2*hh}, 16, v{xr+hh}\nv_and_b32 v{x_+2*hh+1}, 0xffff0000, v{xr+hh}')
                for hh in range(2): k(f'v_pk_add_f32 {v(a_+2*hh,2)}, {v(a_+2*hh,2)}, {v(x_+2*hh,2)}')
                for hh in range(2):
                    k(f'v_pk_fma_f32 {v(a_+2*hh,2)}, {v(a_+2*hh,2)}, {v(VRS,2)}, {v(pr+2*hh,2)} op_sel:[0,{tt},0] op_sel_hi:[1,{tt},1]')
                for hh in range(2): k(f'v_cvt_pk_bf16_f32 v{d+2*jj+hh}, v{a_+2*hh}, v{a_+2*hh+1}')
            k(f's_nop 1\nv_permlane16_swap_b32 v{d}, v{d+2}\nv_permlane16_swap_b32 v{d+1}, v{d+3}')
            k.vmem(f'buffer_store_dwordx4 {v(d,4)}, v{VOA}, s[{sO}:{sO+3}], s{12+tt} offen offset:{64*p}{OF}')
    if ST:
        k(f's_waitcnt vmcnt(0)\n{TM} s[56:57]\ns_memrealtime s[84:85]\ns_waitcnt lgkmcnt(0)')
        k(f's_lshl_b32 s3, s2, 2\ns_add_u32 s3, s3, s{sWave}\ns_lshl_b32 s3, s3, 7\ns_add_u32 s3, s3, {WS_STAMP}\ns_add_u32 s50, s{pWS}, s3\ns_addc_u32 s51, s{pWS+1}, 0')
        for i in range(26): k(f'v_mov_b32 v{i}, s{60+i}')
        k(f'v_mov_b32 v26, s56\nv_mov_b32 v27, s57\nv_mov_b32 v28, 0\nv_mov_b32 v29, 0\nv_mov_b32 v30, 0\nv_mov_b32 v31, 0\nv_mov_b32 v32, 0\ns_mov_b64 exec, 1')
        for i in range(8): k(f'global_store_dwordx4 v32, v[{4*i}:{4*i+3}], s[50:51] offset:{16*i}')
    if DG:
        k('s_waitcnt vmcnt(0)\ns_memrealtime s[84:85]\ns_waitcnt lgkmcnt(0)')
        k(f's_load_dwordx2 s[{pDBG}:{pDBG+1}], s[0:1], 88\ns_waitcnt lgkmcnt(0)')
        srd(sB,pDBG,256)
        k('s_not_b32 s3, s82\ns_mov_b64 exec, 1\nv_mov_b32 v0, 0')
        for i,r in enumerate((3,82,60,62,64,66,84)):
            k(f'v_mov_b32 v1, s{r}\nbuffer_atomic_umax v1, v0, s[{sB}:{sB+3}], 0 offen offset:{16+4*i}\ns_waitcnt vmcnt(0)')
    k.label(f'{name}_end')
    k('s_endpgm')

    return (k,512,102,256), LDS_TOTAL

NAME='sequential_preLN__spectral_fnet__dense_activation_squared_relu__prompt_kernel'
def build(path,stamps=False,over={},listform=False):
    cfg=dict(stamps=stamps); cfg.update(over)
    kk,l=gen(NAME,cfg)
    hdr=[f'; @launch {"kernel="+NAME+" " if listform else ""}grid=(256,1,1) block=(256,1,1) lds={l}']
    open(path,'w').write(assemble_file(hdr,[kk]))
if __name__=='__main__':
    over={}
    for a in sys.argv[3:]:
        kk,vv=a.split('='); over[kk]=int(vv)
    build(sys.argv[1], sys.argv[2]=='1', over, listform=True)
```

```python
from asmlib import *
from layout import *
import struct, sys
def f2u(x): return struct.unpack('<I', struct.pack('<f', x))[0]
def fl(x): return hex(f2u(x))
GRP=[[0,8,1,15],[2,14,3,13],[4,12,5,11],[6,10,7,9]]
def grp_word():
    w=0
    for p in range(4):
        for i in range(4): w|=GRP[p][i]<<(4*(p*4+i))
    return w
ZSTR=2056
STG3=16896
L_X=6*STG3
L_V=8*STG3
L_Z=L_V; L_ST=L_Z+8*ZSTR; L_DUM=L_ST+512; L_E=L_DUM+512
LDS_TOTAL=L_E+512
assert LDS_TOTAL<=163840

def gen(name,cfg):
    k=K(name)
    ST=cfg.get('stamps')
    SB=cfg.get('sb',0)
    TM='s_memrealtime' if cfg.get('rt') else 's_memtime'
    MAPB={8:1,9:2,10:3,'a':4,'b':5,'c':6,'d':7,'e':8,'f':9}
    def p1(i):
        if cfg.get('p1st') and ST: k(f's_memtime s[{60+2*i}:{61+2*i}]')
    def stamp(i):
        if cfg.get('p1st') and i not in (1,2): return
        if cfg.get('diag'):
            m={2:0,5:1,7:2,'b':3}
            if i in m: k(f's_memrealtime s[{60+2*m[i]}:{61+2*m[i]}]')
            return
        if not ST: return
        if cfg.get('p3st') is not None and i!=8: return
        if cfg.get('p4st') is not None: return
        if SB:
            if i not in MAPB: return
            i=MAPB[i]
        elif isinstance(i,str): return
        k(f'{TM} s[{60+2*i}:{61+2*i}]')
    SC=' sc1'
    OF=['',' nt',' sc1',' sc1 nt'][cfg.get('of',0)]
    PFF=['',' nt',' sc1',' sc0 sc1',' sc1 nt'][cfg.get('pff',0)]
    XF=['',' nt'][cfg.get('xnt',0)]
    W1F=' nt' if cfg.get('wnt',0)&1 else ''
    W2F=' nt' if cfg.get('wnt',0)&2 else ''
    TKF=' sc1' if cfg.get('toksc1',1) else ''
    SM1='' if cfg.get('small_plain') else ' sc1'
    pX,pW1,pB1,pW2,pB2,pOUT,pDBG,pWS=86,88,90,92,94,96,98,100
    sXS,sWS,sW,sT,sO,sB,sK=4,8,12,16,20,24,28
    sXC=32
    sWave,sRb,sHf,sC8,sTb,sCb=36,37,38,39,40,41
    sNon=42
    sFlg=44
    VL,VN,VG,VTO,VM,VRS=248,249,250,251,252,254
    VSM=242
    def srd(d,lo,nbytes,addreg=None,addlit=None):
        if addreg is not None: k(f's_add_u32 s{d}, s{lo}, s{addreg}\ns_addc_u32 s{d+1}, s{lo+1}, 0\ns_and_b32 s{d+1}, s{d+1}, 0xffff')
        elif addlit is not None: k(f's_add_u32 s{d}, s{lo}, {addlit}\ns_addc_u32 s{d+1}, s{lo+1}, 0\ns_and_b32 s{d+1}, s{d+1}, 0xffff')
        else: k(f's_mov_b32 s{d}, s{lo}\ns_and_b32 s{d+1}, s{lo+1}, 0xffff')
        k(f's_mov_b32 s{d+2}, {nbytes}\ns_mov_b32 s{d+3}, 0x20000')
    def signal(off_sreg, vf, keep=False, barrier=True):
        L=k.newlabel('sig')
        if barrier: k(f's_barrier\ns_cmp_lg_u32 s{sWave}, 3\ns_cbranch_scc1 {L}')
        k(f'v_mov_b32 v{vf}, s{sNon}\nv_mov_b32 v{vf+1}, s{sNon+1}')
        if not keep: k(f'v_mov_b32 v{vf+2}, 0\nv_mov_b32 v{vf+3}, 0')
        k(f's_mov_b64 exec, 15')
        t=f'buffer_store_dwordx4 {v(vf,4)}, v{VTO}, s[{sWS}:{sWS+3}], s{off_sreg} offen sc1'
        if barrier: k(t)
        else: k.vmem(t,'flag')
        k('s_mov_b64 exec, -1')
        if barrier: k.label(L)
    def poll_loads(vaddr, soff, vd, wide):
        if wide: return [f'buffer_load_dwordx4 {v(vd+4*i,4)}, v{vaddr+i}, s[{sWS}:{sWS+3}], s{soff} offen sc1' for i in range(2)]
        return [f'buffer_load_dwordx2 {v(vd,2)}, v{vaddr}, s[{sWS}:{sWS+3}], s{soff} offen sc1']
    def poll_issue(vaddr, soff, vd, wide):
        k.room(2)
        for t in poll_loads(vaddr,soff,vd,wide): k.vmem(t,'poll')
    def poll_check(vaddr, soff, vd, wide):
        L=k.newlabel('poll'); Lo=k.newlabel('pok')
        k.wait(vm=['poll'])
        k(f's_mov_b32 s47, {1<<18}')
        k.label(L)
        ld=poll_loads(vaddr,soff,vd,wide)
        k(f'v_cmp_ne_u64 vcc, s[{sNon}:{sNon+1}], {v(vd,2)}')
        if wide: k(f'v_cmp_ne_u64 s[48:49], s[{sNon}:{sNon+1}], {v(vd+4,2)}\ns_nop 1\ns_or_b64 s[44:45], vcc, s[48:49]\ns_cbranch_scc0 {Lo}\ns_sub_u32 s47, s47, 1\ns_cbranch_scc1 {Lo}')
        else: k(f's_sub_u32 s47, s47, 1\ns_cbranch_scc1 {Lo}\ns_cmp_eq_u64 vcc, 0\ns_cbranch_scc1 {Lo}')
        if cfg.get('slp',1): k(f's_sleep {cfg.get("slp",1)}')
        k(f's_mov_b64 exec, vcc\n{ld[0]}')
        if wide: k(f's_mov_b64 exec, s[48:49]\n{ld[1]}')
        k(f's_mov_b64 exec, -1\ns_waitcnt vmcnt(0)\ns_branch {L}')
        k.label(Lo)
    def poll0(vaddr, soff, vd, wide, extra=None):
        Ls=k.newlabel('pskip')
        k(f's_cmp_lg_u32 s{sWave}, 3\ns_cbranch_scc1 {Ls}')
        vm0=list(k.vm)
        poll_issue(vaddr,soff,vd,wide); poll_check(vaddr,soff,vd,wide)
        if extra: extra()
        k.vm=vm0
        k.label(Ls)
        k('s_barrier')
    if ST:
        k(f'{TM} s[60:61]\ns_memrealtime s[82:83]')
        for i in range(62,82): k(f's_mov_b32 s{i}, 0')
    DG=cfg.get('diag')
    if DG: k('s_memrealtime s[82:83]')
    k(f's_cmp_ge_u32 s2, 256\ns_cbranch_scc1 {name}_end')
    k(f's_load_dwordx2 s[{pX}:{pX+1}], s[0:1], 0\ns_load_dwordx8 s[{pW1}:{pW1+7}], s[0:1], 48\ns_load_dwordx4 s[{pOUT}:{pOUT+3}], s[0:1], 80\ns_load_dwordx2 s[{pWS}:{pWS+1}], s[0:1], 96\ns_memrealtime s[{sNon}:{sNon+1}]')
    XG=8; XT=40; PM=72; B1=80; B2=96; B2N=112; TWC=128; TWS=144; ONES=160; T=164; A1=184; D1=8; A2=200; ZD=200; TT=232
    VGR=1; VXR=3; VZW=5; VZR=6; VST=7; VSR=236; VOUT=237; VF=238; VE=239; VMX=238; VJ=247; VNON=244; VOUT2=246
    k(f'v_lshrrev_b32 v{T}, 6, v0\nv_and_b32 v{VL}, 63, v0\nv_and_b32 v{VN}, 15, v0\nv_readfirstlane_b32 s{sWave}, v{T}')
    sSlo,sWq=50,51
    sH1=46
    if cfg.get('xdup',0): k(f's_lshl_b32 s{sSlo}, s{sC8}, 4\ns_add_u32 s{sSlo}, s{sSlo}, s{sRb}\ns_mov_b32 s{sH1}, s{sHf}')
    else: k(f's_and_b32 s3, s2, 7\ns_lshl_b32 s3, s3, 4\ns_lshr_b32 s{sSlo}, s2, 4\ns_add_u32 s{sSlo}, s{sSlo}, s3\ns_bfe_u32 s{sH1}, s2, 0x10003')
    k(f'v_lshrrev_b32 v{T}, 3, v{VL}\nv_and_b32 v{T+1}, 6, v{T}\nv_and_b32 v{T+2}, 7, v{VL}\nv_xor_b32 v{T+1}, v{T+1}, v{T+2}\nv_lshlrev_b32 v{T}, 18, v{T}\nv_lshl_add_u32 v{T}, v{T+1}, 4, v{T}')
    k(f's_lshl_b32 s52, s{sSlo}, 11\ns_lshl_b32 s53, s{sWave}, 9\ns_add_u32 s52, s52, s53\ns_add_u32 s54, s52, {8<<18}\ns_lshl_b32 s55, s{sWave}, 13\ns_add_u32 s55, s55, {L_X}')
    def emit_cpf():
        if cfg.get('cpf',1):
            NL=cfg.get('cpfl',16)
            k(f's_getpc_b64 s[48:49]\ns_lshr_b32 s3, s2, 3\ns_mul_i32 s3, s3, {NL*128}\nv_lshlrev_b32 v242, 7, v0\nv_add_u32 v242, s3, v242\nv_min_u32 v242, {name}_end-{name}-512, v242\nv_cmp_gt_u32 vcc, {NL}, v0\ns_and_saveexec_b64 s[16:17], vcc\ns_cbranch_execz {name}_nocpf')
            k(f'global_load_dword a255, v242, s[48:49]'+[ '',' nt',' sc1'][cfg.get('cnt',0)])
            k.label(f'{name}_nocpf')
            k('s_mov_b64 exec, s[16:17]')
    if cfg.get('cpfpos',0)==0: emit_cpf()
    PT=T+6; E1=PT+7; H4=PT+8; S=A2; CPRE=cfg.get('cpre',0)
    def c_e1():
        k(f'v_and_b32 v{PT+4}, 4, v0\nv_lshlrev_b32 v{PT+4}, 2, v{PT+4}\nv_and_b32 v{PT+5}, 3, v0\nv_bfe_u32 v{PT+6}, v0, 3, 2\nv_lshl_add_u32 v{PT+5}, v{PT+6}, 2, v{PT+5}\nv_add_u32 v{PT+4}, v{PT+4}, v{PT+5}')
        k(f'v_lshlrev_b32 v{PT+9}, 31, v{PT+4}\nv_lshrrev_b32 v{PT+10}, 16, v{PT+9}\nv_or_b32 v{PT+9}, v{PT+9}, v{PT+10}')
        k(f'v_cvt_f32_u32 v{E1}, v{PT+4}\nv_lshrrev_b32 v{H4}, 5, v{VL}\nv_cvt_f32_u32 v{H4}, v{H4}')
    def c_b1():
        k(f'v_mul_f32 v{PT+4}, {fl(1/32)}, v{E1}\nv_mul_f32 v{PT+5}, {fl(8.0)}, v{H4}\nv_mul_f32 v{PT+5}, v{PT+5}, v{PT+4}')
        for i in range(8): k(f'v_fmamk_f32 v{S+i}, v{PT+4}, {fl(i)}, v{PT+5}')
        for i in range(8): k(f'v_sin_f32 v{S+8+i}, v{S+i}')
        for i in range(8): k(f'v_cos_f32 v{S+i}, v{S+i}')
        for i in range(4): k(f'v_cvt_pk_f16_f32 v{B1+8+i}, -v{S+8+2*i}, -v{S+9+2*i}')
        for i in range(4): k(f'v_cvt_pk_f16_f32 v{B1+i}, v{S+2*i}, v{S+1+2*i}')
        for i in range(4): k(f'v_xor_b32 v{B1+4+i}, v{B1+i}, v{PT+9}\nv_xor_b32 v{B1+12+i}, v{B1+8+i}, v{PT+9}')
    def c_tw():
        k(f'v_mul_f32 v{PT+4}, {fl(1/1024)}, v{E1}\nv_mul_f32 v{PT+5}, 4.0, v{H4}\nv_mul_f32 v{PT+5}, v{PT+5}, v{PT+4}')
        for r in range(16): k(f'v_fmamk_f32 v{TWC+r}, v{PT+4}, {fl((r&3)+8*(r>>2))}, v{PT+5}')
        for r in range(16): k(f'v_sin_f32 v{TWS+r}, v{TWC+r}')
        for r in range(16): k(f'v_cos_f32 v{TWC+r}, v{TWC+r}')
        for r in range(8): k(f'v_cvt_pk_f16_f32 v{TWS+r}, v{TWS+2*r}, v{TWS+2*r+1}')
        for r in range(8): k(f'v_cvt_pk_f16_f32 v{TWC+r}, v{TWC+2*r}, v{TWC+2*r+1}')
    if CPRE>=1: c_e1(); c_tw()
    if CPRE>=2: c_b1()
    k('s_waitcnt lgkmcnt(0)')
    stamp(1)
    srd(sXS,pX,2048*2048)
    for p in range(4):
        for rh in range(2):
            k(f's_add_u32 m0, s55, {p*2048+rh*1024-128*p}\ns_nop 0')
            k.vmem(f'buffer_load_dwordx4 v{T}, s[{sXS}:{sXS+3}], s{54 if rh else 52} offen offset:{128*p}{XF} lds',('x',p))
    if cfg.get('cpfpos',0)==1: emit_cpf()
    k(f'v_bfe_u32 v{VG}, v0, 4, 2\nv_lshlrev_b32 v{VTO}, 4, v{VL}\ns_lshl_b32 s{sWq}, s{sH1}, 2\ns_add_u32 s{sWq}, s{sWq}, s{sWave}')
    w=grp_word()
    k(f's_bfe_u32 s{sRb}, s2, 0x20001\ns_lshl_b32 s{sRb}, s{sRb}, 2\ns_bfe_u32 s3, s2, 0x20003\ns_add_u32 s3, s3, s{sRb}\ns_lshl_b32 s3, s3, 2')
    k(f's_mov_b32 s48, {hex(w&0xffffffff)}\ns_mov_b32 s49, {hex(w>>32)}\ns_lshr_b64 s[48:49], s[48:49], s3\ns_and_b32 s{sRb}, s48, 15')
    k(f's_and_b32 s{sHf}, s2, 1\ns_lshr_b32 s{sC8}, s2, 5\ns_lshl_b32 s{sCb}, s{sHf}, 3\ns_add_u32 s{sCb}, s{sCb}, s{sC8}\ns_lshl_b32 s{sTb}, s{sRb}, 2\ns_add_u32 s{sTb}, s{sTb}, s{sWave}')
    sWl=56
    k(f's_mul_i32 s57, s{sCb}, 448')
    srd(sWS,pWS,WS_HH)
    def pf_any(ptr,junk,first,nbytes,dst='a255'):
        per=nbytes//128//1024
        srd(sXC,ptr,first+nbytes)
        k(f's_lshl_b32 s3, s2, 2\ns_add_u32 s3, s3, s{sWave}\ns_mul_i32 s3, s3, {per*128}\ns_add_u32 s3, s3, {first}\nv_lshlrev_b32 v{junk}, 7, v{VL}\nv_cmp_gt_u32 vcc, {per}, v{VL}\nv_mov_b32 v{junk+1}, 0x40000000\ns_nop 0\nv_cndmask_b32 v{junk}, v{junk+1}, v{junk}, vcc')
        k.vmem(f'buffer_load_dword {dst}, v{junk}, s[{sXC}:{sXC+3}], s3 offen{PFF}','pf')
    QW=256*7168
    XT_=cfg.get('xt',0)
    def pf_xcd(ptr,i,junk,dst):
        srd(sXC,ptr,1024*7168)
        k(f's_lshr_b32 s3, s2, 3\ns_lshl_b32 s3, s3, 2\ns_add_u32 s3, s3, s{sWave}\ns_bfe_u32 s48, s2, 0x20001\ns_add_u32 s48, s48, {i}\ns_and_b32 s48, s48, 3')
        if ptr==pW1:
            k(f's_lshl_b32 s48, s48, 7\ns_add_u32 s3, s3, s48\ns_mul_i32 s3, s3, {2*7168}\ns_mul_i32 s48, s{sHf}, 3584\ns_add_u32 s3, s3, s48')
            k(f'v_lshlrev_b32 v{junk}, 7, v{VL}\nv_add_u32 v{junk+1}, {7168-28*128}, v{junk}\nv_cmp_gt_u32 vcc, 28, v{VL}\ns_nop 1\nv_cndmask_b32 v{junk}, v{junk+1}, v{junk}, vcc')
        else:
            k(f's_lshl_b32 s48, s48, 7\ns_add_u32 s3, s3, s48\ns_mul_i32 s3, s3, {56*128}\ns_mul_i32 s48, s{sHf}, {1792*2048}\ns_add_u32 s3, s3, s48\nv_lshlrev_b32 v{junk}, 7, v{VL}')
        k(f'v_cmp_gt_u32 vcc, 56, v{VL}\nv_mov_b32 v{junk+1}, 0x40000000\ns_nop 0\nv_cndmask_b32 v{junk}, v{junk+1}, v{junk}, vcc')
        k.vmem(f'buffer_load_dword {dst}, v{junk}, s[{sXC}:{sXC+3}], s3 offen{PFF}','pf')
    pieces=[(pW1,0),(pW1,QW),(pW1,3*QW),(pW1,2*QW),(pW2,0),(pW2,2*QW),(pW2,QW),(pW2,3*QW)]
    def pf_piece(junk,dst='a255'):
        nonlocal pieces
        if not pieces: return
        n_=8-len(pieces); p_,o_=pieces.pop(0)
        if XT_&(1 if p_==pW1 else 2): pf_xcd(p_,n_&3,junk,dst)
        else: pf_any(p_,junk,o_,QW,dst)
    def pf_w123(ptr,first,nbytes,junk):
        per=-(-nbytes//128//768)
        L=k.newlabel('pf3w')
        k(f's_cmp_eq_u32 s{sWave}, 3\ns_cbranch_scc1 {L}')
        srd(sXC,ptr,first+nbytes)
        k(f's_mul_i32 s3, s2, 3\ns_add_u32 s3, s3, s{sWave}\ns_mul_i32 s3, s3, {per*128}\ns_add_u32 s3, s3, {first}\nv_lshlrev_b32 v{junk}, 7, v{VL}\nv_cmp_gt_u32 vcc, {per}, v{VL}\nv_mov_b32 v{junk+1}, 0x40000000\ns_nop 0\nv_cndmask_b32 v{junk}, v{junk+1}, v{junk}, vcc')
        k(f'buffer_load_dword a255, v{junk}, s[{sXC}:{sXC+3}], s3 offen{PFF}')
        k.label(L)
    plan=str(cfg.get('plan',0)).zfill(8)
    def pf_point(i,junk,dst='a255'):
        for _ in range(int(plan[i])): pf_piece(junk,dst)
    if cfg.get('pf0',0):
        for _ in range(cfg['pf0']): pf_piece(242)
    if cfg.get('tlb',0):
        PG=cfg.get('pg',21)
        for (ptr,nb) in ((pWS,34<<20),(pW1,1024*7168),(pW2,1024*7168),(pOUT,4<<20)):
            srd(sXC,ptr,nb)
            for rnd in range(-(-nb>>PG)//256+1 if PG<19 else 1):
                k(f'v_lshlrev_b32 v242, {PG}, v0\ns_mov_b32 s3, {rnd*256<<PG}')
                k.vmem(f'buffer_load_dword a255, v242, s[{sXC}:{sXC+3}], s3 offen sc1','pf')
    srd(sB,pDBG,256)
    Ln=k.newlabel('non')
    k(f's_or_b32 s3, s2, s{sWave}\ns_cmp_lg_u32 s3, 0\ns_cbranch_scc1 {Ln}\ns_and_b32 s48, s{sNon}, -8\ns_or_b32 s48, s48, 8\nv_mov_b32 v{VNON}, s48\nv_mov_b32 v{VNON+1}, s{sNon+1}\nv_mov_b32 v{VJ}, 0\ns_mov_b64 exec, 1')
    k(f'buffer_store_dwordx2 {v(VNON,2)}, v{VJ}, s[{sB}:{sB+3}], 0 offen sc1\ns_mov_b64 exec, -1')
    k.label(Ln)
    k(f's_sub_u32 s3, {1024*7168}, s57')
    k(f's_add_u32 s{sW}, s{pW1}, s57\ns_addc_u32 s{sW+1}, s{pW1+1}, 0\ns_and_b32 s{sW+1}, s{sW+1}, 0xffff\ns_mov_b32 s{sW+2}, s3\ns_mov_b32 s{sW+3}, 0x20000')
    k(f'v_and_b32 v{T+1}, 6, v{VN}\nv_xor_b32 v{T+1}, v{T+1}, v{VG}\nv_lshlrev_b32 v{T+2}, 7, v{VN}\nv_add_u32 v{T+2}, s55, v{T+2}\nv_lshl_add_u32 v{VGR}, v{T+1}, 4, v{T+2}\nv_xor_b32 v{VGR+1}, 64, v{VGR}')
    k(f'v_bfe_u32 v{T+1}, v0, 2, 3\nv_lshlrev_b32 v{T+2}, 7, v{T+1}\nv_and_b32 v{T+1}, 6, v{T+1}\nv_lshlrev_b32 v{T+1}, 4, v{T+1}\nv_and_b32 v{T+3}, 32, v{VL}\nv_lshlrev_b32 v{T+3}, 1, v{T+3}\nv_xor_b32 v{T+1}, v{T+1}, v{T+3}')
    k(f'v_and_b32 v{T+3}, 3, v0\nv_lshlrev_b32 v{T+3}, 3, v{T+3}\nv_add3_u32 v{T+2}, v{T+2}, v{T+3}, s55\nv_add_u32 v{VXR}, v{T+2}, v{T+1}\nv_xor_b32 v{VXR+1}, 32, v{VXR}')
    k(f'v_and_b32 v{T+1}, 7, v0\nv_mul_u32_u24 v{VZW}, {ZSTR}, v{T+1}\nv_and_b32 v{T+2}, 8, v0\nv_lshlrev_b32 v{T+2}, 3, v{T+2}\nv_lshl_add_u32 v{T+2}, v{VG}, 3, v{T+2}\ns_add_u32 s3, s53, {L_Z}\nv_add3_u32 v{VZW}, v{VZW}, v{T+2}, s3')
    k(f'v_lshrrev_b32 v{T+4}, 5, v{VL}\nv_lshlrev_b32 v{T+4}, 9, v{T+4}\nv_bfe_u32 v{T+5}, v0, 2, 2\nv_lshl_add_u32 v{T+4}, v{T+5}, 6, v{T+4}')
    k(f'v_and_b32 v{T+5}, 16, v0\nv_lshlrev_b32 v{T+5}, 1, v{T+5}\nv_add3_u32 v{T+4}, v{T+4}, v{T+5}, v{T+3}\ns_mul_i32 s3, s{sWave}, {2*ZSTR}\ns_add_u32 s3, s3, {L_Z}\nv_add_u32 v{VZR}, s3, v{T+4}')
    k(f'v_lshrrev_b32 v{T+4}, 2, v{VN}\nv_cmp_eq_u32 vcc, v{T+4}, v{VG}\ns_lshl_b32 s3, s{sWave}, 3\ns_add_u32 s3, s3, {L_ST}\nv_lshl_add_u32 v{T+5}, v{VN}, 5, s3')
    k(f'v_lshlrev_b32 v{T+6}, 3, v{VL}\nv_add_u32 v{T+6}, {L_DUM}, v{T+6}\nv_cndmask_b32 v{VST}, v{T+6}, v{T+5}, vcc')
    k(f'v_and_b32 v{T+4}, 1, v{VG}\nv_lshlrev_b32 v{T+4}, 2, v{T+4}\nv_xor_b32 v{T+5}, v{VN}, v{T+4}\nv_lshlrev_b32 v{T+6}, 5, v{T+5}\nv_add_u32 v{VSR}, {L_ST}, v{T+6}')
    k(f's_lshl_b32 s31, s{sH1}, 7\ns_add_u32 s31, s31, s{sSlo}\ns_lshl_b32 s31, s31, 7\ns_add_u32 s31, s31, {WS_R1}\nv_lshlrev_b32 v{VMX}, 2, v{T+5}\nv_cmp_gt_u32 vcc, 16, v0\nv_mov_b32 v{VE}, 0x40000000\ns_nop 0\nv_cndmask_b32 v{VMX}, v{VE}, v{VMX}, vcc')
    mA,mB,mC,mE=16,18,20,22
    k(f'v_and_b32 v{T+5}, 3, v0\nv_cmp_eq_u32 s[{mA}:{mA+1}], 1, v{T+5}\nv_cmp_eq_u32 s[{mB}:{mB+1}], 2, v{T+5}\nv_cmp_eq_u32 s[{mC}:{mC+1}], 3, v{T+5}')
    k(f's_mov_b32 s28, 0x10001\ns_mov_b32 s29, 0')
    k(f's_lshl_b32 s3, s{sH1}, 3\nv_add_u32 v{T+7}, s3, v{T+1}\nv_lshrrev_b32 v{T+5}, 1, v{T+7}\nv_cmp_eq_u32 vcc, 1, v{T+7}\nv_and_b32 v{T+6}, 1, v{T+7}\ns_nop 0\nv_cndmask_b32 v{T+5}, v{T+5}, 8, vcc\nv_cndmask_b32 v{T+6}, v{T+6}, 0, vcc')
    k(f'v_and_b32 v{VE}, 3, v0\nv_mul_u32_u24 v{VE}, {2*ZSTR}, v{VE}\nv_add_u32 v{VE}, {L_Z}, v{VE}')
    k(f'v_cvt_f32_u32 v{T+5}, v{T+5}\nv_cvt_f32_u32 v{T+6}, v{T+6}\nv_cvt_f32_u32 v{T+4}, v{T+4}\nv_mul_f32 v{T+5}, {fl(1/16)}, v{T+5}\nv_mul_f32 v{T+6}, {fl(0.25)}, v{T+6}')
    k(f'v_fmac_f32 v{T+6}, v{T+5}, v{T+4}')
    for i in range(8): k(f'v_fmamk_f32 v{PM+i}, v{T+5}, {fl((i&3)+8*(i>>2))}, v{T+6}')
    for i in range(8): k(f'v_cos_f32 v{PM+i}, v{PM+i}')
    k(f'v_lshrrev_b32 v{T+4}, 3, v{VN}\nv_lshrrev_b32 v{T+5}, 1, v{VG}\nv_cmp_eq_u32 vcc, v{T+4}, v{T+5}')
    for i in range(4): k(f'v_mov_b32 v{ONES+i}, 0x3f803f80')
    for i in range(8): k(f'v_cndmask_b32 v{PM+i}, 0, v{PM+i}, vcc')
    if CPRE<1: c_e1(); c_tw()
    if CPRE<2: c_b1()
    k(f'v_cvt_f32_u32 v{T+4}, v{VN}\nv_mul_f32 v{T+4}, {fl(1/32)}, v{T+4}\nv_mul_f32 v{T+5}, 4.0, v{H4}\nv_mul_f32 v{T+5}, v{T+5}, v{T+4}')
    k(f'v_and_b32 v{T+6}, 1, v{VG}\nv_cvt_f32_u32 v{T+6}, v{T+6}\nv_fmac_f32 v{T+5}, {fl(0.25)}, v{T+6}')
    k(f'v_lshlrev_b32 v{T+9}, 31, v{VN}\nv_lshrrev_b32 v{T+10}, 16, v{T+9}\nv_or_b32 v{T+9}, v{T+9}, v{T+10}')
    for i in range(8): k(f'v_fmamk_f32 v{S+i}, v{T+4}, {fl((i&3)+8*(i>>2))}, v{T+5}')
    for i in range(8): k(f'v_sin_f32 v{S+8+i}, v{S+i}')
    for i in range(8): k(f'v_cos_f32 v{S+i}, v{S+i}')
    for i in range(4): k(f'v_cvt_pk_f16_f32 v{B2+8+i}, v{S+8+2*i}, v{S+9+2*i}')
    for i in range(4): k(f'v_cvt_pk_f16_f32 v{B2+i}, v{S+2*i}, v{S+1+2*i}')
    for i in range(4): k(f'v_xor_b32 v{B2+4+i}, v{B2+i}, v{T+9}\nv_xor_b32 v{B2+12+i}, v{B2+8+i}, v{T+9}')
    for i in range(16): k(f'v_xor_b32 v{B2N+i}, 0x80000000, v{B2+i}')
    VB=cfg.get('vblk',1)
    if VB:
        k(f'v_lshlrev_b32 v{T+5}, 4, v{VG}\nv_lshl_add_u32 v{T+5}, v{VN}, 14, v{T+5}\ns_lshl_b32 s3, s{sSlo}, 6\nv_add_u32 v{VOUT}, s3, v{T+5}\nv_add_u32 v{VOUT2}, 0x2000, v{VOUT}')
    else:
        k(f'v_lshlrev_b32 v{T+5}, 4, v{VG}\nv_lshl_add_u32 v{T+5}, v{VN}, 6, v{T+5}\ns_lshl_b32 s3, s{sSlo}, 10\nv_add_u32 v{VOUT}, s3, v{T+5}\nv_add_u32 v{VOUT2}, 0x20000, v{VOUT}')
    k(f's_lshl_b32 s58, s{sWq}, 18\ns_sub_u32 s59, 16, s{sWq}\ns_cmp_eq_u32 s{sWq}, 0\ns_cselect_b32 s59, 8, s59\ns_lshl_b32 s59, s59, 18\nv_mov_b32 v{VJ}, 0')
    def x2_early(q=None):
        q=q or A2
        k(f's_lshl_b32 s3, s{sWave}, 9\ns_add_u32 s3, s3, s{sRb}\nv_lshl_add_u32 v{q}, v{VN}, 4, s3')
        k(f'v_lshlrev_b32 v{q+2}, 3, v{VG}\ns_lshl_b32 s3, s{sCb}, 6\nv_add_u32 v{q+2}, s3, v{q+2}\nv_lshl_add_u32 v{q+3}, v{q}, 11, v{q+2}\nv_cmp_eq_u32 vcc, 0, v{q+2}\nv_mov_b32 v{q+8}, 0x40000000\ns_mov_b32 s3, {256*2048}')
        for tt in range(2):
            k(f'v_sub_u32 v{q+1}, {2048-256*tt}, v{q}\nv_and_b32 v{q+1}, 2047, v{q+1}\nv_lshlrev_b32 v{q+6+tt}, 11, v{q+1}\nv_sub_u32 v{q+4+tt}, v{q+6+tt}, v{q+2}\nv_add_u32 v{q+4+tt}, {2048-8-32}, v{q+4+tt}\nv_cndmask_b32 v{q+6+tt}, v{q+8}, v{q+6+tt}, vcc')
        for tt in range(2):
            for j in range(2): k.vmem(f'buffer_load_dwordx2 a[{(tt*2+j)*2}:{(tt*2+j)*2+1}], v{q+3}, s[{sXS}:{sXS+3}], {"s3" if tt else "0"} offen offset:{32*j}','x2')
        for tt in range(2):
            for j in range(2): k.vmem(f'buffer_load_dwordx3 a[{8+(tt*2+j)*4}:{10+(tt*2+j)*4}], v{q+4+tt}, s[{sXS}:{sXS+3}], 0 offen offset:{32*(1-j)}','x2')
            k.vmem(f'buffer_load_dword a{8+tt*8+3}, v{q+6+tt}, s[{sXS}:{sXS+3}], 0 offen offset:1024','x2')
    if cfg.get('x2pos',2)==0: x2_early()
    PF1=cfg.get('pf1',1); NQ=cfg.get('nq',4)
    if PF1:
        srd(sXC,pW1,1024*7168)
        k(f's_lshl_b32 s3, s2, 2\ns_add_u32 s3, s3, s{sWave}\ns_mul_i32 s45, s3, {14*NQ*128}\nv_lshlrev_b32 v{TT+2}, 7, v{VL}\nv_cmp_gt_u32 vcc, {14*NQ}, v{VL}\nv_mov_b32 v{TT+3}, 0x40000000\ns_nop 0\nv_cndmask_b32 v{TT+2}, v{TT+3}, v{TT+2}, vcc')
        pieces=[(pW1,o*QW) for o in range(3,NQ-1,-1)]+[p for p in pieces if p[0]!=pW1]
    def pf1(pos):
        if PF1==pos: k.vmem(f'buffer_load_dword a255, v{TT+2}, s[{sXC}:{sXC+3}], s45 offen','pf')
    pf1(4)
    G=T; SM=T+4
    for p in range(4):
        k.wait(vm=[('x',p)])
        for sub in range(2): k.lds(f'ds_read_b128 {v(XG+8*p+4*sub,4)}, v{VGR+sub} offset:{2048*p}',('g',2*p+sub))
    stamp(2)
    if cfg.get('x2pos',2)==1: x2_early()
    k.vmem(f'buffer_load_dwordx2 {v(VNON,2)}, v{VJ}, s[{sB}:{sB+3}], 0 offen sc1','non')
    pf1(1)
    pf_point(0,TT)
    for q in range(8):
        k.wait(lg=[('g',q)])
        k(f'v_mfma_f32_16x16x32_bf16 {v(G,4)}, {v(XG+4*q,4)}, {v(XG+4*q,4)}, {"0" if q==0 else v(G,4)}')
        k(f'v_mfma_f32_16x16x32_bf16 {v(SM,4)}, {v(ONES,4)}, {v(XG+4*q,4)}, {"0" if q==0 else v(SM,4)}')
    p1(3)
    for t in range(4):
        k.lds(f'ds_read_b64_tr_b16 {v(XT+4*t,2)}, v{VXR+(t&1)} offset:{2048*(t>>1)}','xt')
        k.lds(f'ds_read_b64_tr_b16 {v(XT+4*t+2,2)}, v{VXR+(t&1)} offset:{2048*(t>>1)+1024}','xt')
    k(f'v_cndmask_b32 v{SM+1}, v{G}, v{G+1}, s[{mA}:{mA+1}]\nv_cndmask_b32 v{SM+1}, v{SM+1}, v{G+2}, s[{mB}:{mB+1}]\nv_cndmask_b32 v{SM+1}, v{SM+1}, v{G+3}, s[{mC}:{mC+1}]')
    k.lds(f'ds_write_b64 v{VST}, {v(SM,2)}','sw')
    for t in range(4,8):
        k.lds(f'ds_read_b64_tr_b16 {v(XT+4*t,2)}, v{VXR+(t&1)} offset:{2048*(t>>1)}','xt2')
        k.lds(f'ds_read_b64_tr_b16 {v(XT+4*t+2,2)}, v{VXR+(t&1)} offset:{2048*(t>>1)+1024}','xt2')
    pf1(2)
    pf_point(1,TT)
    k.wait(lg=['sw']); k('s_barrier')
    p1(4)
    R=A1
    for q in range(2): k.lds(f'ds_read_b128 {v(R+4*q,4)}, v{VSR} offset:{16*q}','sr')
    k.wait(lg=['sr'])
    for a_,b_ in ((0,2),(4,6),(0,4)):
        k(f'v_pk_add_f32 {v(R+a_,2)}, {v(R+a_,2)}, {v(R+b_,2)}')
    k(f'v_mul_f32 v{R+3}, {fl(1/1024)}, v{R}\nv_mul_f32 v{R+2}, v{R+3}, v{R+3}\nv_mul_f32 v{R+1}, {fl(1/1024)}, v{R+1}\nv_sub_f32 v{R+1}, v{R+1}, v{R+2}')
    k(f'v_max_f32 v{R+1}, 0, v{R+1}\nv_add_f32 v{R+1}, {fl(1e-5)}, v{R+1}\nv_rsq_f32 v{R+1}, v{R+1}')
    M=R+4; CI=G
    k(f's_nop 0\nv_mul_f32 v{R}, -v{R+3}, v{R+1}')
    k(f'v_mov_b32 v{VSR}, v{R+3}')
    k('s_nop 0')
    for i in range(8):
        ln=(i&3)+8*(i>>2); sel=f'row_newbcast:{ln} row_mask:0xf bank_mask:0xf'
        k(f'v_mul_f32_dpp v{M+i}, v{R+1}, v{PM+i} {sel}')
        k(f'{"v_mul_f32_dpp" if i<2 else "v_fmac_f32_dpp"} v{CI+(i&1)}, v{R}, v{PM+i} {sel}')
    k(f'v_add_f32 v{CI}, v{CI}, v{CI+1}')
    MH=SM; ML=T+8
    for i in range(4): k(f'v_cvt_pk_bf16_f32 v{MH+i}, v{M+2*i}, v{M+2*i+1}')
    if cfg.get('lo',0):
        k(f'v_mov_b32 v{CI+1}, v{CI}')
        for i in range(2):
            k(f'v_lshlrev_b32 v{R+12}, 16, v{MH+i}\nv_and_b32 v{R+13}, 0xffff0000, v{MH+i}\nv_pk_add_f32 {v(M+2*i,2)}, {v(M+2*i,2)}, {v(R+12,2)} neg_lo:[0,1] neg_hi:[0,1]')
        k(f'v_permlane16_swap_b32 v{CI}, v{CI+1}')
        for i in range(2,4):
            k(f'v_lshlrev_b32 v{R+12}, 16, v{MH+i}\nv_and_b32 v{R+13}, 0xffff0000, v{MH+i}\nv_pk_add_f32 {v(M+2*i,2)}, {v(M+2*i,2)}, {v(R+12,2)} neg_lo:[0,1] neg_hi:[0,1]')
            if i==2: k(f'v_add_f32 v{CI}, v{CI}, v{CI+1}\nv_mov_b32 v{CI+1}, v{CI}')
        k(f'v_permlane32_swap_b32 v{CI}, v{CI+1}')
        for i in range(4): k(f'v_cvt_pk_bf16_f32 v{ML+i}, v{M+2*i}, v{M+2*i+1}')
        k(f'v_add_f32 v{CI}, v{CI}, v{CI+1}\nv_mov_b32 v{CI+1}, v{CI}\nv_mov_b32 v{CI+2}, v{CI}\nv_mov_b32 v{CI+3}, v{CI}')
    else:
        k(f'v_mov_b32 v{CI+1}, v{CI}\ns_nop 1\nv_permlane16_swap_b32 v{CI}, v{CI+1}\nv_add_f32 v{CI}, v{CI}, v{CI+1}\nv_mov_b32 v{CI+1}, v{CI}\ns_nop 1\nv_permlane32_swap_b32 v{CI}, v{CI+1}')
        k(f'v_add_f32 v{CI}, v{CI}, v{CI+1}\nv_mov_b32 v{CI+1}, v{CI}\nv_mov_b32 v{CI+2}, v{CI}\nv_mov_b32 v{CI+3}, v{CI}')
    k.wait(lg=['xt2']); k('s_nop 1')
    p1(5)
    for t in range(8): k(f'v_mfma_f32_16x16x32_bf16 {v(ZD+4*t,4)}, {v(XT+4*t,4)}, {v(MH,4)}, {v(CI,4)}')
    if cfg.get('lo',0):
        for t in range(8): k(f'v_mfma_f32_16x16x32_bf16 {v(ZD+4*t,4)}, {v(XT+4*t,4)}, {v(ML,4)}, {v(ZD+4*t,4)}')
    k('s_nop 0')
    for t in range(8):
        k(f'v_cvt_pk_f16_f32 v{ZD+4*t}, v{ZD+4*t}, v{ZD+4*t+1}\nv_cvt_pk_f16_f32 v{ZD+4*t+1}, v{ZD+4*t+2}, v{ZD+4*t+3}')
        k.lds(f'ds_write_b64 v{VZW}, {v(ZD+4*t,2)} offset:{128*(t>>1)+32*(t&1)}','zw')
    k.wait_all(vm=False); k('s_barrier')
    p1(6)
    for q in range(2):
        for ks in range(2):
            for hf in range(2):
                k.lds(f'ds_read_b64_tr_b16 {v(A1+8*q+4*ks+2*hf,2)}, v{VZR} offset:{q*ZSTR+(16*ks+4*hf)*64}',('a1',q,ks))
    pf1(3)
    pf_point(2,TT)
    EP=240
    k.lds(f'ds_read_u16 v{EP+2}, v{VE}','ez')
    k.lds(f'ds_read_u16 v{EP+3}, v{VE} offset:{ZSTR}','ez')
    UR,UI,VR,VI=D1,D1+16,D1+32,D1+48
    for q,(dr,di) in enumerate(((UR,UI),(VR,VI))):
        for ks in range(2):
            k.wait(lg=[('a1',q,ks)])
            k(f'v_mfma_f32_32x32x16_f16 {v(dr,16)}, {v(A1+8*q+4*ks,4)}, {v(B1+4*ks,4)}, {"0" if ks==0 else v(dr,16)}')
            k(f'v_mfma_f32_32x32x16_f16 {v(di,16)}, {v(A1+8*q+4*ks,4)}, {v(B1+8+4*ks,4)}, {"0" if ks==0 else v(di,16)}')
    k.wait(lg=['ez'])
    k(f's_xor_b32 s30, s{sH1}, 1\ns_mov_b32 s31_, 0'.replace('s31_','s29'))
    k(f'v_lshl_or_b32 v{TT}, v{EP+3}, 16, v{EP+2}\nv_xor_b32 v{TT+1}, 0x80000000, v{TT}\ns_mov_b32 s16, s30\ns_mov_b32 s17, 0\ns_nop 0')
    k(f'v_cndmask_b32 v{EP+2}, v{TT}, v{EP+2}, s[16:17]\nv_cndmask_b32 v{EP+3}, v{TT+1}, v{EP+3}, s[16:17]\ns_nop 4')
    p1(7)
    k(f's_cmp_eq_u32 s{sWq}, 0\ns_cbranch_scc1 {name}_nocomb')
    for x in (UR,UI,VR,VI):
        for r in range(8): k(f'v_cvt_pk_f16_f32 v{x+r}, v{x+2*r}, v{x+2*r+1}')
    NG='neg_lo:[0,1] neg_hi:[0,1]'
    for r in range(8): k(f'v_pk_add_f16 v{A2+r}, v{UR+r}, v{VI+r} {NG}\nv_pk_add_f16 v{A2+8+r}, v{UI+r}, v{VR+r}')
    for r in range(8): k(f'v_pk_add_f16 v{A2+16+r}, v{UR+r}, v{VI+r}\nv_pk_add_f16 v{A2+24+r}, v{UI+r}, v{VR+r} {NG}')
    k(f's_branch {name}_comb')
    k.label(f'{name}_nocomb')
    for i,x in enumerate((UR,UI,VR,VI)):
        for r in range(8): k(f'v_cvt_pk_f16_f32 v{A2+8*i+r}, v{x+2*r}, v{x+2*r+1}')
    k.label(f'{name}_comb')
    p1(8)
    OUT=[(B1,A1),(UR,UI)]
    def final(o):
        d,dn=OUT[o]
        if o==0: k.vmem(f'buffer_store_dword v{VSR}, v{VMX}, s[{sWS}:{sWS+3}], s31 offen offset:64{SC}','st1')
        k(f'v_cndmask_b32 v{d}, v{d}, v{dn}, s[28:29]')
        for r in range(8): k(f'v_cvt_pk_f16_f32 v{d+r}, v{d+2*r}, v{d+2*r+1}')
        k('s_nop 1')
        for r in range(4): k(f'v_permlane16_swap_b32 v{d+r}, v{d+4+r}')
        for hf in range(2): k.vmem(f'buffer_store_dwordx4 {v(d+4*hf,4)}, v{VOUT2 if hf else VOUT}, s[{sWS}:{sWS+3}], s{58+o} offen{SC}','st1')
    for o in range(2):
        d,dn=OUT[o]; re=A2+16*o; im=re+8
        for ks in range(2):
            for r in range(4*ks,4*ks+4): k(f'v_pk_mul_f16 v{T+2*(r&3)}, v{im+r}, v{TWS+r}\nv_pk_mul_f16 v{T+2*(r&3)+1}, v{re+r}, v{TWS+r}')
            for r in range(4*ks,4*ks+4): k(f'v_pk_fma_f16 v{re+r}, v{re+r}, v{TWC+r}, v{T+2*(r&3)}')
            for r in range(4*ks,4*ks+4): k(f'v_pk_fma_f16 v{im+r}, v{im+r}, v{TWC+r}, v{T+2*(r&3)+1} neg_lo:[0,0,1] neg_hi:[0,0,1]')
            for part in range(2):
                for (dd,B) in ((dn,B2N),(d,B2)):
                    k(f'v_mfma_f32_32x32x16_f16 {v(dd,16)}, {v(A2+16*o+8*part+4*ks,4)}, {v(B+8*part+4*ks,4)}, {"0" if (ks==0 and part==0) else v(dd,16)}')
            if o==1 and ks==0 and cfg.get('f0early',1): final(0)
    p1(9)
    if cfg.get('f0early',1): k('s_nop 11')
    else: final(0)
    final(1)
    stamp(3); p1(10)
    pf_point(3,TT)
    CT=8; VFr=72; FM=104; FD=120; XD=136; XM=144; ACC2=160; MY=176; EF=184; MXV=200; T=220; VRD=1; VMA=3; VSA=5; VT0=6; VTM=244; VDV=7
    VWA=204; VWAr=208; VWAs=212; VWB=213; VWBr=216; VWBs=219
    k(f's_lshl_b32 s3, s{sWave}, 9\ns_add_u32 s52, s3, s{sRb}\nv_lshl_add_u32 v{VT0}, v{VN}, 4, s52')
    k.wait(vm=['non'])
    Lq=k.newlabel('nspin'); Lr=k.newlabel('nok')
    k(f's_mov_b32 s47, {1<<18}')
    k.label(Lq)
    k(f'v_readfirstlane_b32 s{sNon}, v{VNON}\nv_readfirstlane_b32 s{sNon+1}, v{VNON+1}\ns_sub_u32 s47, s47, 1\ns_cbranch_scc1 {Lr}\ns_cmp_lg_u32 s{sNon}, 0\ns_cbranch_scc1 {Lr}')
    k(f's_sleep 1\nbuffer_load_dwordx2 {v(VNON,2)}, v{VJ}, s[{sB}:{sB+3}], 0 offen sc1\ns_waitcnt vmcnt(0)\ns_branch {Lq}')
    k.label(Lr)
    k(f's_cmp_eq_u32 s{sCb}, 0\ns_cselect_b32 s16, 0xffff, 0\ns_mov_b32 s17, 0')
    for tt in range(2): k(f'v_sub_u32 v{VTM+tt}, {2048-256*tt}, v{VT0}\nv_and_b32 v{VTM+tt}, 2047, v{VTM+tt}')
    TF=T+12; BS=T+14
    k(f'v_cvt_f32_u32 v{TF}, v{VT0}\nv_cvt_f32_u32 v{T+16}, v{VG}\nv_mul_f32 v{TF}, {fl(1/2048)}, v{TF}\nv_add_f32 v{TF+1}, {fl(0.125)}, v{TF}\nv_mul_f32 v{T+16}, 4.0, v{T+16}')
    k(f'v_mul_f32 v{BS}, v{TF}, v{T+16}\nv_mul_f32 v{BS+1}, v{TF+1}, v{T+16}')
    def ctgen(u,tt):
        S=VFr+16*((u*2+tt)&1)
        for i in range(8): k(f'v_fmamk_f32 v{S+i}, v{TF+tt}, {fl(32*u+(i&3)+16*(i>>2))}, v{BS+tt}')
        for i in range(8): k(f'v_sin_f32 v{S+8+i}, v{S+i}')
        for i in range(8): k(f'v_cos_f32 v{S+i}, v{S+i}')
        for i in range(4): k(f'v_cvt_pk_f16_f32 v{CT+((u+4)*2+tt)*4+i}, v{S+8+2*i}, v{S+9+2*i}')
        for i in range(4): k(f'v_cvt_pk_f16_f32 v{CT+(u*2+tt)*4+i}, v{S+2*i}, v{S+1+2*i}')
    todo=[(u,tt) for u in range(4) for tt in range(2)]
    for _ in range(cfg.get('ctpre',4)): ctgen(*todo.pop(0))
    k.wait(vm=['st1'])
    signal(31,EP,keep=True)
    stamp(4)
    if cfg.get('x2pos',2)==2: x2_early(FM)
    SEN=cfg.get('sen',0)
    pf_point(4,T)
    W2P=cfg.get('w2p',11)
    while todo: ctgen(*todo.pop(0))
    k(f'v_lshrrev_b32 v{T}, 2, v{VL}\nv_and_b32 v{T+1}, 3, v{VL}\nv_and_b32 v{T+2}, 1, v{VG}\nv_lshlrev_b32 v{T+2}, 1, v{T+2}\nv_xor_b32 v{T+1}, v{T+1}, v{T+2}')
    k(f'v_lshlrev_b32 v{T}, 6, v{T}\nv_lshl_add_u32 v{VDV}, v{T+1}, 4, v{T}')
    k(f's_lshl_b32 s23, s{sRb}, 18\ns_lshl_b32 s3, s{sCb}, 14\ns_add_u32 s23, s23, s3\ns_lshl_b32 s3, s{sWave}, 12\ns_add_u32 s23, s23, s3\ns_add_u32 s28, s3, {L_V}')
    k(f's_sub_u32 s3, 16, s{sRb}\ns_min_u32 s3, s3, s{sRb}\ns_bfe_u32 s30, s3, 0x10002\ns_lshl_b32 s30, s30, 14\ns_add_u32 s30, s30, {WS_R1}\ns_and_b32 s3, s3, 3\ns_lshl_b32 s3, s3, 4\ns_add_u32 s29, s30, s3')
    k(f'v_lshlrev_b32 v{T+4}, 7, v{VL}\nv_add_u32 v{T+5}, 0x2000, v{T+4}')
    for i,src in enumerate((VT0,VTM,VTM+1)):
        k(f'v_and_b32 v{T+9+i}, 127, v{src}\nv_lshlrev_b32 v{T+9+i}, 7, v{T+9+i}\nv_lshrrev_b32 v{T+8}, 7, v{src}\nv_lshl_add_u32 v{T+9+i}, v{T+8}, 2, v{T+9+i}')
    k(f'v_and_b32 v{T+6}, 32, v{VL}\nv_lshlrev_b32 v{T+6}, 1, v{T+6}\nv_bfe_u32 v{T+7}, v{VL}, 2, 2\nv_lshl_add_u32 v{T+6}, v{T+7}, 4, v{T+6}\nv_bfe_u32 v{T+7}, v{VL}, 4, 1\nv_lshl_add_u32 v{T+6}, v{T+7}, 3, v{T+6}\nv_and_b32 v{T+7}, 3, v{VL}\nv_lshl_add_u32 v{T+6}, v{T+7}, 1, v{T+6}')
    k(f'v_add_u32 v{T+6}, {L_E}, v{T+6}\nv_lshlrev_b32 v{T+7}, 4, v{VG}\nv_add_u32 v{T+7}, {L_E}, v{T+7}')
    k(f's_cmp_ge_u32 s{sRb}, 8\ns_cselect_b64 s[18:19], -1, 0')
    sWlA,sWlB=56,44
    k(f's_mul_i32 s{sWlA}, s{sWave}, {4*1056}')
    sCA,sCB=84,85
    k(f's_bitcmp1_b32 s{sC8}, 0\ns_cselect_b32 s{sCA}, 192, 0\ns_cselect_b32 s{sCB}, 0, 256')
    NS=8; NSTG=32; sWoff,sToff=52,53
    state={'woff':None,'toff':None,'m0':None}
    NSB=cfg.get('nsb',5)
    def slot3(S): return S%NS if S<16 else S%NSB
    def prev3(S):
        return max([x for x in range(S) if slot3(x)==slot3(S)], default=-1)
    def dma(S,q):
        p_=S>>4; s_=S&15
        sp=(s_==8 and q==0)
        want = (p_, 0 if sp else (s_*64*7168 if s_<8 else (1536-64*s_-63)*7168-4096))
        if state['woff']!=want:
            k(f's_add_u32 s{sWoff}, s{sCB if p_ else sCA}, {want[1]}'); state['woff']=want
        if state['m0']!=('W',S):
            k(f's_add_u32 m0, s{sWlB if p_ else sWlA}, {slot3(S)*STG3}'); state['m0']=('W',S)
        vo=((VWBs if p_ else VWAs) if sp else ((VWBr if p_ else VWAr) if s_>=8 else (VWB if p_ else VWA))+q)
        return lambda: k.vmem(f'buffer_load_dwordx4 v{vo}, s[{sW}:{sW+3}], s{sWoff} offen offset:{(1024 if p_ else 1056)*q}{W1F} lds', ('W',S))
    def dma_now(S,q):
        f_=dma(S,q); k('s_nop 0'); f_()
    EWP=cfg.get('ewpos',2); EW=cfg.get('ew',2)
    PD=EF
    def e_stage():
        for i in range(2):
            k(f'v_cndmask_b32 v{PD+4*i+2}, v{PD+4*i+2}, v{PD+4*i+3}, s[18:19]')
            k(f'ds_write_b16 v{T+6}, v{PD+4*i+2} offset:{128*i}\nds_write_b16_d16_hi v{T+6}, v{PD+4*i+2} offset:{128*i+256}')
        k('s_waitcnt lgkmcnt(0)')
    if W2P//10: pf_w123(pW2,0,(W2P//10)*2*QW,T)
    poll0(T+4,29,PD,True,extra=e_stage)
    stamp(5)
    k(f's_mov_b32 m0, s28\ns_mul_i32 s{sWlB}, s{sWave}, 3072')
    for q in range(4): k.vmem(f'buffer_load_dwordx4 v{VDV}, s[{sWS}:{sWS+3}], s23 offen offset:{q*1024}{SC} lds','v')
    k.vmem(f'buffer_load_dword v{MXV}, v{T+9}, s[{sWS}:{sWS+3}], s30 offen offset:64{SC}','mx')
    k.vmem(f'buffer_load_dword v{MXV+2}, v{T+9}, s[{sWS}:{sWS+3}], s30 offen offset:72{SC}','mx')
    for tt in range(2): k.vmem(f'buffer_load_dword v{MXV+2*tt+1}, v{T+10+tt}, s[{sWS}:{sWS+3}], s30 offen offset:64{SC}','mx')
    def rdE(u): k.lds(f'ds_read_b128 {v(EF+4*(u%4),4)}, v{T+7} offset:{64*u}',('er',u))
    for u in range(3): rdE(u)
    for u in range(8):
        k.wait(lg=[('er',u)])
        for tt in range(2):
            d=MY+4*tt
            k(f'v_mfma_f32_16x16x32_f16 {v(d,4)}, {v(EF+4*(u%4),4)}, {v(CT+(u*2+tt)*4,4)}, {"0" if u==0 else v(d,4)}')
        if u+3<8: rdE(u+3)
    for tt in range(2):
        k(f'v_and_b32 v{T+8}, 15, v{VTM+tt}\nv_lshlrev_b32 v{T+8}, 2, v{T+8}\nv_lshrrev_b32 v{T+9}, 9, v{VTM+tt}\nv_add_u32 v{T+8}, v{T+8}, v{T+9}')
        k(f'v_bfe_u32 v{T+9}, v{VTM+tt}, 8, 1\nv_bfe_u32 v{T+10}, v{VTM+tt}, 4, 4\nv_lshl_add_u32 v{T+11}, v{VG}, 4, v{T+10}\nv_lshlrev_b32 v{T+11}, 4, v{T+11}')
        k(f'v_lshl_add_u32 v{T+11}, v{T+9}, 10, v{T+11}\nv_lshl_add_u32 v{VMA+tt}, v{T+8}, 16, v{T+11}')
        k(f'v_lshl_add_u32 v{T+10}, v{T+9}, 4, v{T+10}\nv_lshlrev_b32 v{T+10}, 2, v{T+10}\nv_lshl_add_u32 v{T+10}, v{VG}, 9, v{T+10}\nv_lshl_add_u32 v{VSM+tt}, v{T+8}, 12, v{T+10}')
    k(f'v_and_b32 v{T+2}, 31, v{VL}\nv_lshlrev_b32 v{T+2}, 2, v{T+2}\nv_lshrrev_b32 v{T+3}, 5, v{VL}\nv_lshl_add_u32 v{VSA}, v{T+3}, 11, v{T+2}')
    k(f's_lshl_b32 s20, s{sTb}, 16\ns_lshl_b32 s21, s{sCb}, 11\ns_add_u32 s21, s21, {WS_H1}\ns_add_u32 s20, s20, s21\ns_add_u32 s21, s21, {16*2048}')
    k(f's_lshl_b32 s22, s{sTb}, 12\ns_lshl_b32 s3, s{sCb}, 7\ns_add_u32 s22, s22, s3\ns_add_u32 s22, s22, {WS_ST}')
    k(f'v_lshrrev_b32 v{T+8}, 2, v{VL}\nv_lshlrev_b32 v{T+8}, 6, v{T+8}\nv_and_b32 v{T+9}, 3, v{VL}\nv_lshl_add_u32 v{T+8}, v{T+9}, 3, v{T+8}\nv_and_b32 v{T+9}, 16, v{VL}\nv_lshlrev_b32 v{T+9}, 1, v{T+9}\nv_add_u32 v{T+8}, {L_V}, v{T+8}')
    k(f'v_add_u32 v{VRD}, v{T+8}, v{T+9}\nv_sub_u32 v{VRD+1}, v{T+8}, v{T+9}\nv_add_u32 v{VRD+1}, 32, v{VRD+1}')
    t0=T+12
    k(f's_lshr_b32 s3, s{sWave}, 1\ns_lshl_b32 s3, s3, 5\ns_and_b32 s48, s{sWave}, 1\ns_lshl_b32 s48, s48, 2\ns_add_u32 s3, s3, s48\nv_lshl_add_u32 v{t0}, v{VG}, 3, s3\nv_lshlrev_b32 v{t0+1}, 4, v{VN}\nv_mul_u32_u24 v{t0+2}, 7168, v{t0}')
    for q in range(4):
        k(f's_mov_b32 s48, {q*(7168-1056)}\nv_add3_u32 v{VWA+q}, v{t0+2}, v{t0+1}, s48')
        k(f's_mov_b32 s48, {63*7168+4096-q*(7168+1056)}\nv_sub_u32 v{VWAr+q}, s48, v{t0+2}\nv_add_u32 v{VWAr+q}, v{VWAr+q}, v{t0+1}')
    k(f'v_add_u32 v{VWAs}, {961*7168-4096}, v{VWAr}\nv_add_u32 v{t0+2}, {512*7168}, v{t0+1}\nv_cmp_eq_u32 vcc, 0, v{t0}\ns_mul_i32 s3, s{sWave}, 192\nv_add_u32 v{t0}, s3, v{VL}\nv_cndmask_b32 v{VWAs}, v{VWAs}, v{t0+2}, vcc')
    for q in range(3):
        k(f'v_mul_u32_u24 v{t0+1}, 43691, v{t0}\nv_lshrrev_b32 v{t0+1}, 19, v{t0+1}\nv_mul_u32_u24 v{t0+2}, 12, v{t0+1}\nv_sub_u32 v{t0+2}, v{t0}, v{t0+2}')
        k(f'v_lshrrev_b32 v{t0+3}, 1, v{t0+1}\nv_and_b32 v{t0+3}, 2, v{t0+3}\nv_xor_b32 v{t0+2}, v{t0+2}, v{t0+3}\nv_lshlrev_b32 v{t0+2}, 4, v{t0+2}\nv_mul_u32_u24 v{t0+3}, 7168, v{t0+1}')
        k(f'v_add_u32 v{VWB+q}, v{t0+3}, v{t0+2}\nv_sub_u32 v{t0+3}, {63*7168+4096-1024*q}, v{t0+3}\nv_add_u32 v{VWBr+q}, v{t0+3}, v{t0+2}')
        if q: k(f'v_subrev_u32 v{VWB+q}, {1024*q}, v{VWB+q}')
        else: k(f'v_add_u32 v{VWBs}, {961*7168-4096}, v{VWBr}\nv_add_u32 v{t0+3}, {512*7168}, v{t0+2}\nv_cmp_eq_u32 vcc, 0, v{t0+1}\ns_nop 1\nv_cndmask_b32 v{VWBs}, v{VWBs}, v{t0+3}, vcc')
        if q<2: k(f'v_add_u32 v{t0}, 64, v{t0}')
    k.wait(vm=['x2'])
    for i in range(24):
        if i<8 or (i&3)!=3 or (i&7)==3: k(f'v_accvgpr_read_b32 v{XD+i}, a{i}')
    for tt in range(2):
        k(f'v_cndmask_b32 v{XM+tt*8+2}, v{XM+tt*8+2}, v{XM+tt*8+3}, s[16:17]')
    for tt in range(2):
        for j in range(2):
            m=XM+(tt*2+j)*4; f=FM+(tt*2+j)*4
            k(f'v_lshlrev_b32 v{f}, 16, v{m+2}\nv_and_b32 v{f+1}, 0xffff0000, v{m+1}\nv_lshlrev_b32 v{f+2}, 16, v{m+1}\nv_and_b32 v{f+3}, 0xffff0000, v{m}')
            m=XD+(tt*2+j)*2; f=FD+(tt*2+j)*4
            k(f'v_lshlrev_b32 v{f}, 16, v{m}\nv_and_b32 v{f+1}, 0xffff0000, v{m}\nv_lshlrev_b32 v{f+2}, 16, v{m+1}\nv_and_b32 v{f+3}, 0xffff0000, v{m+1}')
    k.wait(vm=['mx'])
    k('s_barrier')
    def rd2(u):
        for j in range(2):
            for q in range(2):
                k.lds(f'ds_read_b64_tr_b16 {v(VFr+((u&3)*2+j)*4+2*q,2)}, v{VRD+j} offset:{(32*u+16*q)*64}',('f',u))
    for u in range(3): rd2(u)
    pf_point(5,T)
    for tt in range(2):
        k(f'v_pk_add_f32 {v(MXV+2*tt,2)}, {v(MXV+2*tt,2)}, {v(MY+4*tt,2)}')
    for tt in range(2):
        for (F0,which) in ((FM,1),(FD,0)):
            sel=f'op_sel:[0,{which}] op_sel_hi:[1,{which}] neg_lo:[0,1] neg_hi:[0,1]'
            for j in range(2):
                f=F0+(tt*2+j)*4
                for hh in range(2): k(f'v_pk_add_f32 {v(f+2*hh,2)}, {v(f+2*hh,2)}, {v(MXV+2*tt,2)} {sel}')
    lst=[(S,q) for S in range(EW) for q in range(4)] if EWP==2 else []
    for u in range(8):
        k.wait(lg=[('f',u)])
        for j in range(2):
            for tt in range(2):
                d=ACC2+(j*2+tt)*4
                k(f'v_mfma_f32_16x16x32_f16 {v(d,4)}, {v(VFr+((u&3)*2+j)*4,4)}, {v(CT+(u*2+tt)*4,4)}, {"0" if u==0 else v(d,4)}')
        if u+3<8: rd2(u+3)
        for _ in range(-(-EW*4//8)):
            if lst: dma_now(*lst.pop(0))
    HD=CT; HM=CT+8; Q=CT+48
    k(f'v_mov_b32 v{VM}, v{MXV}\nv_mov_b32 v{VM+1}, v{MXV+2}\ns_nop 5')
    for tt in range(2):
        for (F0,H,which) in ((FM,HM,1),(FD,HD,0)):
            if which==0: k(f'v_cndmask_b32 v{ACC2+tt*4}, v{ACC2+tt*4}, 0, s[16:17]')
            for j in range(2):
                y=ACC2+(j*2+tt)*4; f=F0+(tt*2+j)*4
                for hh in range(2): k(f'v_pk_add_f32 {v(f+2*hh,2)}, {v(f+2*hh,2)}, {v(y+2*hh,2)}')
                for hh in range(2): k(f'v_cvt_pk_bf16_f32 v{H+4*tt+2*j+hh}, v{f+2*hh}, v{f+2*hh+1}')
            if which: k.vmem(f'buffer_store_dwordx4 {v(HM+4*tt,4)}, v{VMA+tt}, s[{sWS}:{sWS+3}], s21 offen{SC}','st2')
            else: k.vmem(f'buffer_store_dwordx4 {v(HD+4*tt,4)}, v{VTO}, s[{sWS}:{sWS+3}], s20 offen offset:{1024*tt}{SC}','st2')
    for tt in range(2):
        for (F0,which) in ((FM,1),(FD,0)):
            q=Q+(which*2+tt)*2
            for j in range(2):
                f=F0+(tt*2+j)*4
                for hh in range(2):
                    if j==0 and hh==0: k(f'v_pk_mul_f32 {v(q,2)}, {v(f,2)}, {v(f,2)}')
                    else: k(f'v_pk_fma_f32 {v(q,2)}, {v(f+2*hh,2)}, {v(f+2*hh,2)}, {v(q,2)}')
    for i in range(4): k(f'v_add_f32 v{Q+2*i}, v{Q+2*i}, v{Q+2*i+1}')
    k(f's_nop 0\nv_permlane32_swap_b32 v{Q}, v{Q+4}\nv_permlane32_swap_b32 v{Q+2}, v{Q+6}\nv_add_f32 v{Q}, v{Q}, v{Q+4}\nv_add_f32 v{Q+2}, v{Q+2}, v{Q+6}\ns_nop 1')
    k(f'v_permlane16_swap_b32 v{Q}, v{Q+2}\nv_add_f32 v{Q}, v{Q}, v{Q+2}')
    k.vmem(f'buffer_store_dword v{Q}, v{VSA}, s[{sWS}:{sWS+3}], s22 offen{SC}','st2')
    stamp(6)
    LAF=7; NB=8
    ACC=[0,64]; NT_=[8,6]; WF=112; OH=144; SQ=OH+40; AUGB=200; VRA=220; VRB=223; T0=230; BFS=[OH+32,16]
    VWo,VWg,VOA,VPA=240,241,244,239; AU4=234; VBA=238
    TK=256
    k(f'v_bfe_u32 v{T0}, v{VL}, 2, 3\nv_mul_u32_u24 v{T0}, 1056, v{T0}\nv_lshrrev_b32 v{T0+1}, 5, v{VL}\nv_lshl_add_u32 v{T0}, v{T0+1}, 8, v{T0}\nv_and_b32 v{T0+2}, 3, v{VL}\nv_lshl_add_u32 v{VRA}, v{T0+2}, 3, v{T0}')
    k(f'v_lshrrev_b32 v{T0}, 2, v{VL}\nv_mul_u32_u24 v{T0}, 192, v{T0}\nv_lshl_add_u32 v{T0}, v{T0+2}, 3, v{T0}\nv_and_b32 v{T0+1}, 16, v{VL}\nv_lshlrev_b32 v{T0+1}, 1, v{T0+1}\nv_add_u32 v{VRB}, v{T0}, v{T0+1}\nv_sub_u32 v{VRB+1}, v{T0}, v{T0+1}')
    for i in (1,2): k(f'v_add_u32 v{VRA+i}, {i*3*STG3}, v{VRA}\nv_add_u32 v{VRB+2*i}, {i*3*STG3}, v{VRB}\nv_add_u32 v{VRB+2*i+1}, {i*3*STG3}, v{VRB+1}')
    k(f's_lshl_b32 s3, s{sTb}, 16\ns_add_u32 s3, s3, {WS_H1}')
    srd(sT,pWS,65536,addreg=3)
    k(f's_lshl_b32 s55, s{sRb}, 4\ns_add_u32 s55, s55, s{sCb}\ns_lshl_b32 s55, s55, 6\ns_add_u32 s54, s55, {WS_F3}\ns_add_u32 s55, s55, {WS_F2}')
    k(f's_mul_i32 s3, s{sTb}, {224*1024}\ns_mul_i32 s48, s{sCb}, {14*1024}\ns_add_u32 s3, s3, s48\ns_add_u32 s3, s3, {WS_HH}')
    srd(sO,pWS,14*1024,addreg=3)
    srd(sB,pB1,3584*2)
    k(f's_mov_b32 s46, {WS_ST}\ns_lshl_b32 s58, s{sTb}, 12\ns_add_u32 s58, s58, {WS_ST}')
    k(f'v_lshrrev_b32 v{T0+1}, 3, v{VL}\nv_and_b32 v{T0+2}, 7, v{VL}\nv_and_b32 v{T0+3}, 6, v{T0+1}\nv_xor_b32 v{T0+2}, v{T0+2}, v{T0+3}\nv_lshlrev_b32 v{T0+2}, 4, v{T0+2}\nv_lshl_add_u32 v{T0+1}, v{T0+1}, 11, v{T0+2}')
    k(f's_lshl_b32 s48, s{sWave}, 14\nv_add_u32 v{VWg}, s48, v{T0+1}\ns_mul_i32 s3, s{sC8}, {224*2048}\nv_add_u32 v{VWo}, s3, v{VWg}')
    if EWP!=2: EW=0
    WPRE=max(EW,cfg.get('wpre',6)); WMID=min(WPRE,max(EW,cfg.get('wmid',0)))
    for S in range(EW,WMID):
        for q in range(4): dma_now(S,q)
    k.wait(vm=['st2'])
    signal(55,T0)
    if cfg.get('w3skip',0):
        Lw=k.newlabel('w3')
        k('s_barrier')
        k(f's_cmp_eq_u32 s{sWave}, 3\ns_cbranch_scc1 {Lw}')
        k(f's_lshr_b32 s3, s{sWave}, 1\ns_lshl_b32 s3, s3, 5\ns_and_b32 s48, s{sWave}, 1\ns_lshl_b32 s48, s48, 2\ns_add_u32 s3, s3, s48\ns_sub_u32 s3, 36, s3\ns_mul_i32 s45, s3, 7168\ns_add_u32 s45, s45, s{sCA}')
        for S in range(WMID,WPRE):
            for q in range(4): dma_now(S,q)
        ex=[(S,q) for S in range(WMID,WPRE) for q in range(4)]
        for w_ in range(3):
            Ln_=k.newlabel('w3x')
            k(f's_cmp_lg_u32 s{sWave}, {w_}\ns_cbranch_scc1 {Ln_}')
            for (S,q) in ex[w_::3]:
                k(f's_add_u32 s3, s45, {S*64*7168}\ns_mov_b32 m0, {slot3(S)*STG3+3*4224}\ns_nop 0\nbuffer_load_dwordx4 v{VWA+q}, s[{sW}:{sW+3}], s3 offen offset:{1056*q} lds')
            k.label(Ln_)
        k.label(Lw)
        state['m0']=None; state['woff']=None
    else:
        if cfg.get('sigbar',1): k('s_barrier')
        for S in range(WMID,WPRE):
            for q in range(4): dma_now(S,q)
    k(f's_sub_u32 s3, 16, s{sRb}\ns_and_b32 s3, s3, 15\ns_lshl_b32 s3, s3, 10\ns_lshl_b32 s48, s{sRb}, 10\nv_mov_b32 v{T0}, s3\nv_mov_b32 v{T0+1}, s48\nv_and_b32 v{T0+2}, 1, v{VG}\nv_cmp_eq_u32 vcc, 0, v{T0+2}\ns_mov_b32 s59, {WS_F2}\ns_nop 0\nv_cndmask_b32 v{T0}, v{T0}, v{T0+1}, vcc\nv_lshl_add_u32 v{T0}, v{VN}, 6, v{T0}')
    pf_point(6,SQ+4)
    if W2P%10: pf_w123(pW2,(W2P//10)*2*QW,(W2P%10)*2*QW,SQ+4)
    if W2P: pieces=pieces[:max(0,len(pieces)-2*(W2P//10+W2P%10))] if False else [p for p in pieces if p[0]==pW1]+[(pW2,o) for o in (0,QW,2*QW,3*QW) if o>=2*QW*(W2P//10+W2P%10)]
    if EW==0: k.wait(vm=[('W',0),('W',1)])
    poll0(T0,59,SQ,False)
    stamp(7)
    def tok(sg,_t=0):
        base=(sg//4)*4096
        if state['toff']!=base:
            k(f's_mov_b32 s{sToff}, {base}'); state['toff']=base
        return lambda: k.vmem(f'buffer_load_dwordx4 {reg(TK+4*sg,4)}, v{VTO}, s[{sT}:{sT+3}], s{sToff} offen offset:{(sg%4)*1024}{TKF}', ('T',sg))
    P0=cfg.get('P0',8)
    for sg in range(P0): tok(sg)()
    if cfg.get('pfh',0):
        k(f's_lshl_b32 s3, s{sC8}, 13\nv_lshlrev_b32 v{T0+2}, 7, v{VL}')
        k.vmem(f'buffer_load_dword v{T0+3}, v{T0+2}, s[{sT}:{sT+3}], s3 offen','pf')
    k(f'v_lshlrev_b32 v{T0}, 2, v{VN}\nv_lshl_add_u32 v{T0}, v{VG}, 9, v{T0}')
    for tt in range(2):
        for i in range(4):
            k.vmem(f'buffer_load_dword v{SQ+8*tt+i}, v{T0}, s[{sWS}:{sWS+3}], s58 offen offset:{128*i+64*tt}{SC}','sq')
            k.vmem(f'buffer_load_dword v{SQ+8*tt+4+i}, v{VSM+tt}, s[{sWS}:{sWS+3}], s46 offen offset:{2048+128*i}{SC}','sq')
    FR=[(S,u,j) for S in range(NSTG) for u in range(2) for j in range(NT_[S>>4])]
    NFR=len(FR); F0S={}
    for f,(S,u,j) in enumerate(FR): F0S.setdefault(S,f)
    F0S[NSTG]=NFR
    NDq=lambda S: 3 if S>>4 else 4
    pend=[('tok',sg,0) for sg in range(P0,64)]+[('dma',S,q) for S in range(WPRE,NS-1) for q in range(4)]
    def rd(f,q):
        if f>=NFR: return
        S,u,j=FR[f]; slot=slot3(S)
        if S<16: ar=VRA+slot//3; off=u*8*1056+q*512+32*j
        else: ar=VRB+2*(slot//3)+(j&1); off=(32*u+16*q)*192+32*j
        k.lds(f'ds_read_b64_tr_b16 {v(WF+(f%NB)*4+2*q,2)}, v{ar} offset:{off+(slot%3)*STG3}', ('R',f))
    events={}
    def at(f,item): events.setdefault(f|1 if item[0]!='valu' else f,[]).append(item)
    def run_events(f,post):
        for ev in events.get(f,[]):
            if ev[0]=='vm': post.append(ev[1])
            elif ev[0]=='valu': post.append(lambda s_=ev[1]: k(s_))
            elif ev[0]=='wait': post.append(lambda t_=ev[1]: k.wait(vm=[t_]))
    V=[('wait','sq')]
    for tt in range(2):
        b=SQ+8*tt
        for i in (1,2,3,4,5,6,7): V.append(f'v_add_f32 v{b}, v{b}, v{b+i}')
    a_=SQ; b_=SQ+8; c_=SQ+1; d_=SQ+2
    def hilo(dst,x): return [f'v_cvt_pk_bf16_f32 v{c_}, v{x}, v{x}', f'v_and_b32 v{c_}, 0xffff0000, v{c_}', f'v_sub_f32 v{c_}, v{x}, v{c_}', f'v_cvt_pk_bf16_f32 v{dst}, v{x}, v{c_}']
    V+= [f'v_permlane32_swap_b32 v{a_}, v{b_}', f'v_add_f32 v{a_}, v{a_}, v{b_}', f'v_mov_b32 v{b_}, v{a_}', f'v_permlane16_swap_b32 v{a_}, v{b_}', f'v_add_f32 v{a_}, v{a_}, v{b_}',
         f'v_mov_b32 v{b_}, {fl(1e-5)}', f'v_fmac_f32 v{b_}, {fl(1/1024)}, v{a_}', f'v_mov_b32 v{b_+1}, v{b_}', f'v_mov_b32 v{AUGB+1}, 0', f'v_permlane32_swap_b32 v{b_}, v{b_+1}', f'v_mov_b32 v{AUGB+3}, 0']
    for tt in range(2):
        V+= [f'v_sqrt_f32 v{a_}, v{b_+tt}', f'v_rcp_f32 v{VRS+tt}, v{b_+tt}']+hilo(AUGB+2*tt,a_)+hilo(AU4+2*tt,b_+tt)+[f'v_mul_f32 v{d_}, v{b_+tt}, v{VM+tt}']+hilo(AU4+2*tt+1,d_)
    V+= [f'v_lshlrev_b32 v{VBA}, 1, v{VN}', f'v_lshl_add_u32 v{VBA}, v{VG}, 28, v{VBA}']
    for j in range(8): V.append(f'v_mov_b32 v{BFS[0]+2*j+1}, 0')
    f1=F0S[cfg.get('sq_use',4)]
    for i,x in enumerate(V): at(f1+2*i, x if isinstance(x,tuple) else ('valu',x))
    assert f1+2*len(V)<F0S[14]
    for j in range(6): at(F0S[28]+2*j,('valu',f'v_mov_b32 v{BFS[1]+2*j+1}, 0'))
    for p_ in range(2):
        for j in range(NT_[p_]):
            if j==0: at(F0S[16*p_+14],('valu',f's_add_u32 s59, s57, s{sCB if p_ else sCA}'))
            at(F0S[16*p_+14]+2*j,('vm',lambda j=j,p_=p_: k.vmem(f'buffer_load_ushort v{BFS[p_]+2*j}, v{VBA}, s[{sB}:{sB+3}], s59 offen offset:{32*j}','bf')))
    if cfg.get('trk',0):
        LPW=cfg.get('lpw',4); NP=-(-56//LPW)
        def trk_setup():
            srd(sXC,pW2,1024*7168)
            k(f's_lshl_b32 s3, s2, 2\ns_add_u32 s3, s3, s{sWave}\ns_mul_i32 s58, s3, {LPW*128}\nv_lshlrev_b32 v{T0+2}, 7, v{VL}\nv_cmp_gt_u32 vcc, {LPW}, v{VL}\nv_mov_b32 v{T0+3}, 0x40000000\ns_nop 0\nv_cndmask_b32 v{T0+2}, v{T0+3}, v{T0+2}, vcc')
        trk_setup()
        f_a=F0S[cfg.get('trk0',1)]; f_b=F0S[cfg.get('trk1',24)]
        for i_ in range(NP):
            def one(i_=i_):
                k.vmem(f'buffer_load_dword v{T0+3}, v{T0+2}, s[{sXC}:{sXC+3}], s58 offen','pf')
                k(f's_add_u32 s58, s58, {LPW*128*1024}')
            at(f_a+(f_b-f_a)*i_//NP+3,('vm',one))
    elif cfg.get('qw',0):
        quiet=[]
        def big(first,nb,fpos):
            def go():
                for p in [p for p in pend if p[0]=='dma']: flush(p)
                pf_any(pW2,T0+2,first,nb,f'v{T0+3}')
                pace['quiet']=fpos+cfg.get('qlen',48)
            at(fpos,('vm',go))
        if cfg.get('qw',1)==1: big(0,4*QW,F0S[16]-cfg.get('qpre',2))
        else:
            big(0,2*QW,F0S[16]-cfg.get('qpre',2)); big(2*QW,2*QW,F0S[cfg.get('q2',22)])
    else:
        def pf_one(): pf_piece(T0+2,f'v{T0+3}')
        for i_ in range(8):
            S_=cfg.get('pf3',16)+i_*cfg.get('pf3s',2)
            if S_<NSTG: at(F0S[S_]+cfg.get('pf3o',6),('vm',pf_one))
    def cpf_again(vt):
        L=k.newlabel('cp')
        k(f's_getpc_b64 s[88:89]')
        k.label(L)
        k(f's_lshr_b32 s3, s2, 3\ns_lshl_b32 s3, s3, 10\nv_min_u32 v{vt}, 7, v{VL}\nv_lshl_add_u32 v{vt}, v{vt}, 7, s3\nv_min_u32 v{vt}, {name}_end-{L}-4, v{vt}')
        k.vmem(f'global_load_dword v{vt+1}, v{vt}, s[88:89]','pf')
    for S_ in str(cfg.get('cpa',7)).split('0'):
        if S_: at(F0S[int(S_)*3]+5,('vm',lambda: cpf_again(T0+2)))
    if SEN:
        def clr0():
            srd(sXC,pWS,4<<20,addlit=WS_X)
            k(f's_lshl_b32 s3, s2, 2\ns_add_u32 s3, s3, s{sWave}\ns_lshl_b32 s58, s3, 12')
            for i in range(4): k(f'v_mov_b32 v{CR+i}, -1')
        fc=F0S[cfg.get('clr_at',16)]+cfg.get('clr_o',0); CR=OH if cfg.get('clr_at',16)<16 else 8
        at(fc,('vm',clr0))
        for i in range(4): at(fc+cfg.get('clr_g',6)*(i+1),('vm',lambda i=i: k.vmem(f'buffer_store_dwordx4 {v(CR,4)}, v{VTO}, s[{sXC}:{sXC+3}], s58 offen offset:{1024*i} sc1','clr')))
    later=[]
    def epilogue3(p_):
        A=ACC[p_]; tm=ACC[1-p_]; n_=NT_[p_]; BF=BFS[p_]
        k.wait(vm=['bf'])
        for j in range(n_): k(f'v_lshl_or_b32 v{BF+2*j}, v{BF+2*j}, 16, v{BF+2*j}')
        def aug(j):
            for t in range(2): k(f'v_mfma_f32_16x16x16_bf16 {v(A+(2*j+t)*4,4)}, {v(BF+2*j,2)}, {v(AUGB+2*t,2)}, {v(A+(2*j+t)*4,4)}')
        for j in range(4): aug(j)
        k('s_nop 1')
        for j in range(n_//2):
            e=4*p_+j
            for x_ in (2*j+4,2*j+5):
                if x_<n_: aug(x_)
            for jj in range(2):
                R=[A+((2*j)*2+jj)*4+r for r in range(4)]+[A+((2*j+1)*2+jj)*4+r for r in range(4)]
                d=OH+8*e+4*jj; x=tm+8*jj
                for r in range(8): k(f'v_max_f32 v{x+r}, 0, v{R[r]}')
                for r in range(0,8,2): k(f'v_pk_mul_f32 {v(R[r],2)}, {v(R[r],2)}, {v(x+r,2)}')
                for r in range(4): k(f'v_cvt_pk_bf16_f32 v{d+r}, v{R[2*r]}, v{R[2*r+1]}')
                o=(2*e+jj)*1024
                def st_(o=o,d=d):
                    if state['toff']!=o//4096*4096: k(f's_mov_b32 s{sToff}, {o//4096*4096}'); state['toff']=o//4096*4096
                    k.room(1)
                    k.vmem(f'buffer_store_dwordx4 {v(d,4)}, v{VTO}, s[{sO}:{sO+3}], s{sToff} offen offset:{o%4096} sc1',('st3',p_))
                idx=2*j+jj
                if idx<cfg.get('st_now',2) or not cfg.get('st_gap',6): st_()
                else: later.append(st_)
    NS4=32; STG4=4096; NTS=32; C=32*2048; EB=35
    DL=cfg.get('DL',20)
    U=[]
    for e in range(EB): U+= [('G',e),('K',e)]
    for tau in range(EB,56+DL):
        if tau<56: U.append(('G',tau))
        if tau>=EB+DL: U.append(('K',tau-DL))
    NU=len(U); uidx={u_:i for i,u_ in enumerate(U)}
    def estep(e):
        if e<EB: return (e-7)//4, 7*((e-7)//4)+(e-7)%4
        return (e-EB)//3, 7*((e-EB)//3)+4+(e-EB)%3
    def bias_fix(e,sr,unit,two=False):
        i,st_=estep(e)
        if e in (7,EB):
            k(f's_mul_i32 s{sr}, s{sC8}, {7*unit}\ns_add_u32 s{sr}, s{sr}, {7*unit}')
            if two:
                d_=3*unit if e==7 else (-4*unit)&0xffffffff
                k(f's_bitcmp1_b32 s{sC8}, 0\ns_cselect_b32 s3, {d_}, 0\ns_add_u32 s{sr+1}, s{sr}, s3\ns_cselect_b32 s3, 0, {d_}'.replace('s_add_u32 s%d, s%d, s3\ns_cselect_b32 s3, 0, %d'%(sr+1,sr,d_),'s_cselect_b32 s48, 0, %d\ns_add_u32 s%d, s%d, s3'%(d_,sr+1,sr))+f'\ns_add_u32 s{sr}, s{sr}, s48')
        if st_-7*i in (0,4):
            k(f's_cmp_eq_u32 s{sC8}, {7-i}\ns_cselect_b32 s3, {56*unit}, 0\ns_sub_u32 s{sr}, s{sr}, s3')
            if two: k(f's_sub_u32 s{sr+1}, s{sr+1}, s3')
    sG=sT; sOA,sOB=90,91; ROT=0 if NSB==8 else -(-NSB*STG3//4096); sGoff=50; sWl4=49; sT4off=51; sBG,sBK,sBT=86,98,46
    st4={'T':None}
    def dma4(n,_q=0):
        part,e=U[n]; sr=sG if part=='G' else sK
        vo=VWo if e<7 else VWg
        if e<EB and st4.get('ge')==e: pass
        elif e<7: k(f's_add_u32 s{sGoff}, s{sOA if e<4 else sOB}, {e*C}')
        else:
            vo=VWg; sb_=sBG if part=='G' else sBK; bias_fix(e,sb_,C,True); i,st_=estep(e); k(f's_add_u32 s{sGoff}, s{sb_+(i&1)}, {st_*C}')
        st4['ge']=e
        k(f's_add_u32 m0, s{sWl4}, {((n+ROT)%NS4)*STG4}'); state['m0']=('W4',n)
        return lambda: k.vmem(f'buffer_load_dwordx4 v{vo}, s[{sr}:{sr+3}], s{sGoff} offen{W2F} lds', ('W4',n))
    def tokreg(e,t): return (OH+8*e if e<7 else 256+8*((e-7)%NTS))+4*t
    def tok4(e,t):
        i,st_=estep(e); a_=st_-7*i; key=(e>=EB,i,a_//2)
        if t==0: bias_fix(e,sBT,2048)
        if st4['T']!=key:
            k(f's_add_u32 s{sT4off}, s{sBT}, {(7*i+a_//2*2)*2048}'); st4['T']=key
        return lambda: k.vmem(f'buffer_load_dwordx4 {reg(tokreg(e,t),4)}, v{VTO}, s[{sXS}:{sXS+3}], s{sT4off} offen offset:{(a_%2)*2048+t*1024}{TKF}', ('T4',e,t))
    def issue(p,now):
        if p[0]=='fn':
            if now: p[2](); return None
            return p[2]
        if p[0] in ('tok','tok4'):
            f_=(tok if p[0]=='tok' else tok4)(p[1],p[2])
            if now: f_(); return None
            return f_
        f_=(dma if p[0]=='dma' else dma4)(p[1],p[2])
        if now: k('s_nop 0'); f_(); return None
        return f_
    def flush(item):
        while item in pend: k.room(1); issue(pend.pop(0),True)
    LAF4=7
    def BU3(S): return cfg.get('BU3B',1) if S>=16 else cfg.get('BU3',2)
    def prio(p):
        if p[0]=='fn': return p[1]
        if p[0]=='tok': return p[1]//2*8
        if p[0]=='dma': return F0S[p[1]//BU3(p[1])*BU3(p[1])]-LAF-cfg.get('wlead',14)
        if p[0]=='tok4': return NFR+uidx[('G',p[1])]*4
        return NFR+p[1]*4-LAF4
    pace={'last':0}
    def pick(now,gap,urg):
        if len(k.vm)>=cfg.get('vmmax',56) or now<pace.get('quiet',0): return None
        for i,p in enumerate(pend):
            d=prio(p)-now
            if d>((cfg.get('wwin',48) if now<F0S[cfg.get('wfree',16)] else 999) if p[0]=='dma' else cfg.get('win',400)): continue
            if now-pace['last']>=gap or d<=urg:
                pace['last']=now; return issue(pend.pop(i),False)
            return None
        return None
    flags={'A':False,'B':False}
    def sigA():
        k.wait(vm=[('st3',0)]); signal(54,0)
    def polA_issue():
        k(f's_mul_i32 s3, s{sTb}, {56*4096}\ns_mul_i32 s48, s{sHf}, {28*4096}\ns_add_u32 s3, s3, s48\ns_add_u32 s3, s3, {WS_HH}')
        srd(sXS,pWS,28*4096,addreg=3)
        k(f's_lshl_b32 s55, s{sRb}, 10\ns_add_u32 s55, s55, {WS_F3}\ns_lshl_b32 s48, s{sHf}, 3\nv_and_b32 v{VPA}, 7, v{VL}\nv_add_u32 v{VPA}, s48, v{VPA}\ns_xor_b32 s48, s{sCb}, 8\nv_mov_b32 v4, s48\nv_cmp_gt_u32 vcc, 8, v{VL}\ns_nop 1\nv_cndmask_b32 v{VPA}, v4, v{VPA}, vcc\nv_lshlrev_b32 v{VPA}, 6, v{VPA}')
        poll_issue(VPA,55,4,False)
    def polA_check():
        poll_check(VPA,55,4,False); flags['A']=True
    at(F0S[cfg.get('sigA',21)],('vm',sigA))
    at(F0S[cfg.get('polAi',23)],('vm',polA_issue))
    at(F0S[cfg.get('polAc',25)],('vm',polA_check))
    t4_next=7; dma_next=0; w_next=NS-1; built=False
    for f in range(LAF): rd(f,0); rd(f,1)
    held=None
    for f in range(NFR):
        S,u,j=FR[f]; p_=S>>4; sg=4*(S&15)+2*u
        if f==1: stamp(8)
        if cfg.get('p3st') is not None and f==F0S[S] and S%2==0 and 0<=S//2-cfg['p3st']<8: k(f's_memtime s[{64+2*(S//2-cfg["p3st"])}:{65+2*(S//2-cfg["p3st"])}]')
        if f==F0S[16]:
            stamp(9)
            for p in [p for p in pend if p[0]=='dma']: flush(p)
            epilogue3(0); stamp(10)
            for i_,f_ in enumerate(later): at(f+3+i_*cfg.get('st_gap',6),('vm',f_))
            later.clear()
        if j==0 and p_==1 and flags['A']:
            while t4_next<EB and 2*(t4_next-7)+1<sg:
                pend+= [('tok4',t4_next,0),('tok4',t4_next,1)]; t4_next+=1
        pend.sort(key=prio)
        tw=[]
        if f%2==0:
            for ff in (f,f+1):
                S2,u2,j2=FR[ff]
                if j2==0 and S2<16:
                    for t in range(2): flush(('tok',4*S2+2*u2+t,0)); tw.append(('T',4*S2+2*u2+t))
            k.wait(vm=tw, lg=[('R',f),('R',f+1)])
        post=[]
        run_events(f,post)
        D=ACC[p_]+8*j
        k(f'v_mfma_f32_16x16x32_bf16 {v(D,4)}, {v(WF+(f%NB)*4,4)}, {reg(TK+4*sg,4)}, {"0" if sg==0 else v(D,4)}')
        if True:
            if f+LAF<NFR and f+LAF==F0S[FR[f+LAF][0]] and FR[f+LAF][0]%BU3(FR[f+LAF][0])==0:
                S1=FR[f+LAF][0]
                assert S1+BU3(S1)-1<w_next
                flush(('dma',S1+BU3(S1)-1,NDq(S1+BU3(S1)-1)-1))
                k.wait(vm=[('W',x) for x in range(S1,S1+BU3(S1))]); k('s_barrier')
                while w_next<NSTG and prev3(w_next)<=S-1:
                    pend+= [('dma',w_next,q) for q in range(NDq(w_next))]; w_next+=1
                lastuse=lambda sl: max(x for x in range(NSTG) if slot3(x)==sl)
                while dma_next<NS4 and max(lastuse(((dma_next+ROT)%NS4)*4096//STG3),lastuse((((dma_next+ROT)%NS4)*4096+4095)//STG3))<=S-1 and S>=16:
                    if not built:
                        built=True
                        assert not any(p[0]=='tok' for p in pend)
                        k(f's_mul_i32 s3, s{sHf}, {1792*2048}\ns_lshl_b32 s48, s{sC8}, 8\ns_add_u32 s3, s3, s48\ns_lshl_b32 s48, s{sHf}, 7\ns_add_u32 s47, s3, s48\ns_sub_u32 s58, s3, s48\ns_add_u32 s58, s58, 128')
                        for (d,o) in ((sG,58),(sK,47)):
                            k(f's_add_u32 s{d}, s{pW2}, s{o}\ns_addc_u32 s{d+1}, s{pW2+1}, 0\ns_and_b32 s{d+1}, s{d+1}, 0xffff\ns_sub_u32 s{d+2}, {1024*7168}, s{o}\ns_mov_b32 s{d+3}, 0x20000')
                        k(f's_lshl_b32 s{sWl4}, s{sWave}, 10\ns_bitcmp1_b32 s{sC8}, 0\ns_cselect_b32 s{sOA}, {3*C}, 0\ns_cselect_b32 s{sOB}, {(-4*C)&0xffffffff}, 0')
                    if S<cfg.get('d4from',18): break
                    pend.append(('dma4',dma_next,0)); dma_next+=1
                pend.sort(key=prio)
        rd(f+LAF,0)
        k(f'v_mfma_f32_16x16x32_bf16 {v(D+4,4)}, {v(WF+(f%NB)*4,4)}, {reg(TK+4*sg+4,4)}, {"0" if sg==0 else v(D+4,4)}')
        if f%2==1 and held: held(); held=None
        rd(f+LAF,1)
        for p in post: p()
        if f%2==0:
            nb=f+1+LAF<NFR and f+1+LAF==F0S[FR[f+1+LAF][0]] and FR[f+1+LAF][0]%BU3(FR[f+1+LAF][0])==0
            isv=nb or any(ev[0]=='vm' for ev in events.get(f+1,[]))
            x_=pick(f,999,cfg.get('urg3',20))
            if x_: k('s_nop 0'); x_()
            held=None if isv else pick(f,0,-999)
        k.check_vm()
    stamp('a')
    epilogue3(1)
    stamp('b')
    LAF=LAF4; BU=cfg.get('BU',4)
    PRE=0; AG=32; AK=64; VFL=96; VZ=100; XR=200; VRD=224; T0=104; HX=200; VS=108
    k(f'v_lshrrev_b32 v{T0}, 2, v{VL}\nv_lshlrev_b32 v{T0+1}, 7, v{T0}\nv_and_b32 v{T0+2}, 3, v{VL}\nv_lshl_add_u32 v{T0+1}, v{T0+2}, 3, v{T0+1}')
    k(f'v_and_b32 v{T0+2}, 6, v{T0}\nv_lshlrev_b32 v{T0+2}, 4, v{T0+2}')
    for j in range(4):
        k(f'v_xor_b32 v{T0+3}, {32*j}, v{T0+2}\nv_add_u32 v{VRD+j}, v{T0+1}, v{T0+3}\nv_add_u32 v{VRD+4+j}, 0x10000, v{VRD+j}')
    def rd4(f,q):
        if f>=NU*4: return
        n=f//4; j=f%4; slot=(n+ROT)%NS4
        k.lds(f'ds_read_b64_tr_b16 {v(WF+(f%NB)*4+2*q,2)}, v{VRD+4*(slot//16)+j} offset:{16*q*128+(slot%16)*STG4}', ('R4',f))
    flush(('dma4',BU-1,0))
    k.wait(vm=[('W4',n) for n in range(BU)]); k('s_barrier')
    for f in range(LAF): rd4(f,0); rd4(f,1)
    while dma_next<NS4: pend.append(('dma4',dma_next,0)); dma_next+=1
    events={}
    for i_,f_ in enumerate(later): at(3+i_*cfg.get('st_gap',6),('vm',f_))
    NF4=NU*4
    def sigB():
        k.wait(vm=[('st3',1)]); k(f's_add_u32 s54, s54, 16384'); signal(54,VFL)
    def polB_issue():
        k(f's_add_u32 s55, s55, 16384'); poll_issue(VPA,55,VFL,False)
    def polB_check():
        poll_check(VPA,55,VFL,False); flags['B']=True
    if cfg.get('cpb',0): at(cfg['cpb'],('vm',lambda: cpf_again(T0+2)))
    at(cfg.get('sigB',64),('vm',sigB))
    at(cfg.get('polBi',110),('vm',polB_issue))
    at(cfg.get('polBc',134),('vm',polB_check))
    g_end=(uidx[('G',55)]+1)*4
    fs=uidx[('G',EB)]*4+cfg.get('pre_off',min(44,DL*4-24))
    def side():
        srd(sB,pB2,2048); srd(sO,pOUT,2048*2048); srd(sXC,pWS,8<<20,addlit=WS_X)
        k(f's_lshl_b32 s57, s{sC8}, 1\ns_add_u32 s57, s57, s{sHf}')
        k(f's_sub_u32 s3, 23, s57\ns_cmp_ge_u32 s57, 8\ns_cselect_b32 s3, s3, s57\ns_cselect_b32 s48, 3, 0\ns_lshl_b32 s3, s3, 12\ns_lshl_b32 s44, s{sTb}, 16\ns_add_u32 s44, s44, {WS_H1}\ns_add_u32 s44, s44, s3')
        k(f'v_xor_b32 v{VS}, s48, v{VG}\nv_lshlrev_b32 v{VS}, 8, v{VS}\nv_lshl_add_u32 v{VS}, v{VN}, 4, v{VS}')
        k(f'v_sub_u32 v{VS+1}, 0, v{VG}\nv_and_b32 v{VS+1}, 3, v{VS+1}\nv_lshlrev_b32 v{VS+1}, 8, v{VS+1}\nv_lshl_add_u32 v{VS+1}, v{VN}, 4, v{VS+1}\nv_cmp_eq_u32 vcc, 0, v{VG}')
        k(f'v_add_u32 v{VS+2}, 8, v{VS+1}\nv_add_u32 v{VS+3}, 2040, v{VS+1}\nv_cndmask_b32 v{VS+2}, v{VS+1}, v{VS+2}, vcc\nv_cndmask_b32 v{VS+1}, v{VS+1}, v{VS+3}, vcc')
        k(f's_cmp_eq_u32 s57, 8\ns_cselect_b32 s3, {hex((-16*2048)&0xffffffff)}, 0\nv_mov_b32 v{VS+3}, s3\nv_cndmask_b32 v{VS+3}, 0, v{VS+3}, vcc\nv_add_u32 v{VS+3}, v{VS+3}, v{VS+1}\nv_add_u32 v{VS+3}, {15*4096}, v{VS+3}\ns_sub_u32 s59, s44, {15*4096}')
        k(f's_lshl_b32 s45, s57, 7\nv_mov_b32 v{OH+1}, 0x3f803f80\nv_cndmask_b32 v{OH+1}, 0, v{OH+1}, vcc\nv_mov_b32 v{OH+3}, v{OH+1}\nv_mov_b32 v{OH+5}, v{OH+1}\nv_mov_b32 v{OH+7}, v{OH+1}')
        L_=[]
        for jj in range(4):
            for tt in range(2): L_.append(f'buffer_load_dwordx2 {v(HX+(jj*2+tt)*2,2)}, v{VS}, s[{sWS}:{sWS+3}], s44 offen offset:{(jj>>1)*2048+(jj&1)*8+1024*tt}')
        for jj in range(4):
            for tt in range(2):
                if jj==3: L_.append(f'buffer_load_dword v{HX+16+jj*2+tt}, v{VS+3}, s[{sWS}:{sWS+3}], s59 offen offset:{2048+8+1024*tt}')
                else: L_.append(f'buffer_load_dword v{HX+16+jj*2+tt}, v{VS+1+(1-(jj&1))}, s[{sWS}:{sWS+3}], s44 offen offset:{(jj>>1)*2048+(jj&1)*8+1024*tt}')
        for j in range(4): L_.append(f'buffer_load_ushort v{OH+2*j}, v{VBA}, s[{sB}:{sB+3}], s45 offen offset:{32*j}')
        for i_,t_ in enumerate(L_): pend.append(('fn',NFR+fs-60+i_,lambda t_=t_: k.vmem(t_+(TKF if 'ushort' not in t_ else ''),'hx')))
        k(f's_lshl_b32 s12, s{sWave}, 9\ns_add_u32 s12, s12, s{sRb}\ns_lshl_b32 s12, s12, 11\ns_add_u32 s12, s12, s45\ns_add_u32 s13, s12, {256*2048}')
        k(f'v_lshlrev_b32 v{VOA}, 15, v{VN}\nv_and_b32 v{VZ}, 1, v{VG}\nv_lshl_add_u32 v{VOA}, v{VZ}, 5, v{VOA}\nv_lshrrev_b32 v{VZ}, 1, v{VG}\nv_lshl_add_u32 v{VOA}, v{VZ}, 4, v{VOA}')
        k(f's_lshl_b32 s3, s2, 2\ns_add_u32 s3, s3, s{sWave}\ns_lshl_b32 s14, s3, 12\ns_xor_b32 s15, s14, {4<<12}\ns_lshl_b32 s52, s3, 6\ns_add_u32 s52, s52, {WS_FX}\ns_xor_b32 s58, s52, 256\nv_mov_b32 v{VZ}, 0')
    at(cfg.get('side_at',68),('vm',side))
    def hfix():
        assert not any(p[0]=='fn' for p in pend)
        k.wait(vm=['hx'])
        L=k.newlabel('hfix')
        k(f's_cmp_lt_u32 s57, 8\ns_cbranch_scc1 {L}\ns_mov_b32 s3, 0x07060100')
        for jj in range(8):
            h=HX+jj*2; s1=HX+16+jj
            k(f'v_perm_b32 v{s1}, v{h+1}, v{s1}, s3\nv_perm_b32 v{h+1}, v{h}, v{h+1}, s3\nv_mov_b32 v{h}, v{s1}')
        for jj in range(2):
            for x in range(4): k(f'v_swap_b32 v{HX+jj*4+x}, v{HX+(3-jj)*4+x}')
        k.label(L)
    V=[('vm',hfix)]
    for j in range(4): V.append(f'v_lshl_or_b32 v{OH+2*j}, v{OH+2*j}, 16, v{OH+2*j}')
    for j in range(4):
        V.append('\n'.join(f'v_mfma_f32_16x16x16_bf16 {v(AK+(2*j+t)*4,4)}, {v(OH+2*j,2)}, {v(AU4+2*t,2)}, {v(AK+(2*j+t)*4,4)}' for t in range(2)))
    assert all(U[n_][0]=='G' for n_ in range(fs//4-1,fs//4+4))
    for r in range(32):
        V.append(f'v_lshlrev_b32 v{PRE+r}, 16, v{HX+r//2}' if r%2==0 else f'v_and_b32 v{PRE+r}, 0xffff0000, v{HX+r//2}')
    per=cfg.get('pre_per',1)
    for i,x in enumerate(V): at(fs+i//per, x if isinstance(x,tuple) else ('valu',x))
    assert fs+len(V)//per<g_end+min(cfg.get('xc',62),cfg.get('xl',52))
    for i in range(4):
        def xs(i=i):
            for r in range(4): k(f'v_cvt_pk_bf16_f32 v{AG+8*i+r}, v{AG+8*i+2*r}, v{AG+8*i+2*r+1}')
            k.vmem(f'buffer_store_dwordx4 {v(AG+8*i,4)}, v{VTO}, s[{sXC}:{sXC+3}], s14 offen offset:{i*1024} sc1','xs')
        at(g_end+4+i*cfg.get('xs_gap',6),('vm',xs))
    fA=g_end+cfg.get('xa',36); fB=g_end+cfg.get('xb',48); fC=g_end+cfg.get('xc',62)
    assert SEN or fC<NF4
    xl=[f'buffer_load_dwordx4 {v(XR+4*i,4)}, v{VTO}, s[{sXC}:{sXC+3}], s15 offen offset:{i*1024} sc1' for i in range(4)]
    if SEN:
        for i in range(4): at(g_end+cfg.get('xl',52)+2*i,('vm',lambda i=i: k.vmem(xl[i],'xr')))
    else:
        at(fA,('wait','xs'))
        at(fA,('vm',lambda: signal(52,VFL,barrier=False)))
        at(fB,('vm',lambda: poll_issue(VZ,58,VS,False)))
        def chk():
            poll_check(VZ,58,VS,False)
            k.room(4)
            for i in range(4): k.vmem(f'buffer_load_dwordx4 {v(XR+4*i,4)}, v{VTO}, s[{sXC}:{sXC+3}], s15 offen offset:{i*1024} sc1','xr')
        at(fC,('vm',chk))
    kdone=6; held=None
    for f in range(NF4):
        n=f//4; j=f%4; part,e=U[n]
        if cfg.get('p4st') is not None:
            i_=(f-cfg['p4st'])//cfg.get('qs',16)
            if f>=cfg['p4st'] and (f-cfg['p4st'])%cfg.get('qs',16)==0 and i_<10: k(f's_memtime s[{62+2*i_}:{63+2*i_}]')
        else:
            if f==uidx[('G',7)]*4: stamp('c')
            if f==uidx[('G',EB)]*4: stamp('d')
            if f==g_end: stamp('e')
        if f%4==0:
            if n>0 and U[n-1][0]=='K': kdone=U[n-1][1]
            while t4_next<56 and (t4_next<EB or flags['B']) and (t4_next-NTS<7 or t4_next-NTS<=kdone):
                pend+= [('tok4',t4_next,0),('tok4',t4_next,1)]; t4_next+=1
        pend.sort(key=prio)
        if f%2==0:
            tw=[]
            if part=='G' and e>=7 and j==0:
                assert e<t4_next
                for t in range(2): flush(('tok4',e,t)); tw.append(('T4',e,t))
            k.wait(vm=tw, lg=[('R4',f),('R4',f+1)])
        post=[]
        run_events(f,post)
        D=(AG if part=='G' else AK)+8*j
        k(f'v_mfma_f32_16x16x32_bf16 {v(D,4)}, {v(WF+(f%NB)*4,4)}, {reg(tokreg(e,0),4)}, {"0" if e==0 else v(D,4)}')
        if True:
            nn=(f+LAF)//4
            if (f+LAF)%4==0 and nn<NU and nn%BU==0:
                if held: held(); held=None
                last=min(nn+BU,NU)-1
                flush(('dma4',last,0))
                k.wait(vm=[('W4',m) for m in range(nn,last+1)]); k('s_barrier')
                while dma_next<NU and dma_next-NS4<=n-1:
                    pend.append(('dma4',dma_next,0)); dma_next+=1
                pend.sort(key=prio)
        rd4(f+LAF,0)
        k(f'v_mfma_f32_16x16x32_bf16 {v(D+4,4)}, {v(WF+(f%NB)*4,4)}, {reg(tokreg(e,1),4)}, {"0" if e==0 else v(D+4,4)}')
        if f%2==1 and held: held(); held=None
        rd4(f+LAF,1)
        for p in post: p()
        if f%2==0:
            nb=(f+1+LAF)%4==0 and ((f+1+LAF)//4)%BU==0 and cfg.get('skipbar',0)
            isv=nb or any(ev[0]=='vm' for ev in events.get(f+1,[]))
            x_=pick(NFR+f,999,cfg.get('urg4',40))
            if x_: k('s_nop 0'); x_()
            held=None if isv else pick(NFR+f,0,-999)
        k.check_vm()
    stamp('f')
    k.wait(vm=['xr'])
    if SEN:
        L=k.newlabel('xchk'); Lo=k.newlabel('xok')
        k(f's_mov_b32 s47, {1<<18}')
        k.label(L)
        for i in range(5): k(f'v_max3_u32 v{T0+(i&1)}, v{XR+3*i}, v{XR+3*i+1}, v{XR+3*i+2}' if i<2 else f'v_max3_u32 v{T0+(i&1)}, v{T0+(i&1)}, v{XR+2*i+2}, v{XR+2*i+3}')
        k(f'v_max3_u32 v{T0+1}, v{T0+1}, v{XR+12}, v{XR+13}\nv_max3_u32 v{T0}, v{T0}, v{XR+14}, v{XR+15}\nv_max_u32 v{T0}, v{T0}, v{T0+1}\nv_cmp_eq_u32 vcc, -1, v{T0}')
        k(f's_sub_u32 s47, s47, 1\ns_cbranch_scc1 {Lo}\ns_cmp_eq_u64 vcc, 0\ns_cbranch_scc1 {Lo}')
        for t_ in xl: k(t_)
        k(f's_waitcnt vmcnt(0)\ns_branch {L}')
        k.label(Lo)
    else: k('s_nop 5')
    for p in range(2):
        for tt in range(2):
            d=WF+4*(2*p+tt)
            for jj in range(2):
                j=2*p+jj; a_=AK+(j*2+tt)*4; pr=PRE+(j*2+tt)*4; x_=AG+(j*2+tt)*4; xr=XR+(j*2+tt)*2
                for hh in range(2): k(f'v_lshlrev_b32 v{x_+2*hh}, 16, v{xr+hh}\nv_and_b32 v{x_+2*hh+1}, 0xffff0000, v{xr+hh}')
                for hh in range(2): k(f'v_pk_add_f32 {v(a_+2*hh,2)}, {v(a_+2*hh,2)}, {v(x_+2*hh,2)}')
                for hh in range(2):
                    k(f'v_pk_fma_f32 {v(a_+2*hh,2)}, {v(a_+2*hh,2)}, {v(VRS,2)}, {v(pr+2*hh,2)} op_sel:[0,{tt},0] op_sel_hi:[1,{tt},1]')
                for hh in range(2): k(f'v_cvt_pk_bf16_f32 v{d+2*jj+hh}, v{a_+2*hh}, v{a_+2*hh+1}')
            k(f's_nop 1\nv_permlane16_swap_b32 v{d}, v{d+2}\nv_permlane16_swap_b32 v{d+1}, v{d+3}')
            k.vmem(f'buffer_store_dwordx4 {v(d,4)}, v{VOA}, s[{sO}:{sO+3}], s{12+tt} offen offset:{64*p}{OF}')
    if ST:
        k(f's_waitcnt vmcnt(0)\n{TM} s[56:57]\ns_memrealtime s[84:85]\ns_waitcnt lgkmcnt(0)')
        k(f's_lshl_b32 s3, s2, 2\ns_add_u32 s3, s3, s{sWave}\ns_lshl_b32 s3, s3, 7\ns_add_u32 s3, s3, {WS_STAMP}\ns_add_u32 s50, s{pWS}, s3\ns_addc_u32 s51, s{pWS+1}, 0')
        for i in range(26): k(f'v_mov_b32 v{i}, s{60+i}')
        k(f'v_mov_b32 v26, s56\nv_mov_b32 v27, s57\nv_mov_b32 v28, 0\nv_mov_b32 v29, 0\nv_mov_b32 v30, 0\nv_mov_b32 v31, 0\nv_mov_b32 v32, 0\ns_mov_b64 exec, 1')
        for i in range(8): k(f'global_store_dwordx4 v32, v[{4*i}:{4*i+3}], s[50:51] offset:{16*i}')
    if DG:
        k('s_waitcnt vmcnt(0)\ns_memrealtime s[84:85]\ns_waitcnt lgkmcnt(0)')
        k(f's_load_dwordx2 s[{pDBG}:{pDBG+1}], s[0:1], 88\ns_waitcnt lgkmcnt(0)')
        srd(sB,pDBG,256)
        k('s_not_b32 s3, s82\ns_mov_b64 exec, 1\nv_mov_b32 v0, 0')
        for i,r in enumerate((3,82,60,62,64,66,84)):
            k(f'v_mov_b32 v1, s{r}\nbuffer_atomic_umax v1, v0, s[{sB}:{sB+3}], 0 offen offset:{16+4*i}\ns_waitcnt vmcnt(0)')
    k.label(f'{name}_end')
    k('s_endpgm')

    return (k,512,102,256), LDS_TOTAL

NAME='sequential_preLN__spectral_fnet__dense_activation_squared_relu__prompt_kernel'
def build(path,stamps=False,over={},listform=False):
    cfg=dict(stamps=stamps); cfg.update(over)
    kk,l=gen(NAME,cfg)
    hdr=[f'; @launch {"kernel="+NAME+" " if listform else ""}grid=(256,1,1) block=(256,1,1) lds={l}']
    open(path,'w').write(assemble_file(hdr,[kk]))
if __name__=='__main__':
    over={}
    for a in sys.argv[3:]:
        kk,vv=a.split('='); over[kk]=int(vv)
    build(sys.argv[1], sys.argv[2]=='1', over, listform=True)
```
